```python
import torch

def _softmax(x, axis=-1):
    return torch.softmax(x, dim=axis)

def _gelu(x):
    return torch.nn.functional.gelu(x, approximate='tanh')

def _silu(x):
    return torch.nn.functional.silu(x)

def _sigmoid(x):
    return torch.sigmoid(x)

def _layernorm(x, axis=-1, eps=1e-05):
    m = x.mean(dim=axis, keepdim=True)
    v = x.var(dim=axis, keepdim=True, unbiased=False)
    return (x - m) / torch.sqrt(v + eps)

def _scatter_add(tgt, idx, src, axis=0):
    return tgt.clone().index_add_(axis, idx, src)

def _segment_sum(src, seg, n):
    out = torch.zeros((n,) + src.shape[1:], dtype=src.dtype)
    return out.index_add_(0, seg, src)

def _pad(x, pw):
    flat = tuple((v for pair in reversed(pw) for v in pair))
    return torch.nn.functional.pad(x, flat)
kernel_name = 'standalone__conformer_family_e_branchformer__speech'

def setup_inputs():

    _w = lambda a: (lambda t: t.to(torch.bfloat16) if t.is_floating_point() else t)(torch.as_tensor(a))
    B, T, D, K = (2, 1000, 512, 31)
    return {'x': _w((lambda *s: torch.randn(*s, dtype=torch.bfloat16) * 0.05)(B, T, D)), 'w_qkv': _w((lambda *s: torch.randn(*s, dtype=torch.bfloat16) * 0.05)(D, 3 * D)), 'w_att_out': _w((lambda *s: torch.randn(*s, dtype=torch.bfloat16) * 0.05)(D, D)), 'w_mlp_in': _w((lambda *s: torch.randn(*s, dtype=torch.bfloat16) * 0.05)(D, 2 * D)), 'dw_csgu': _w((lambda *s: torch.randn(*s, dtype=torch.bfloat16) * 0.05)(K, D)), 'w_mlp_out': _w((lambda *s: torch.randn(*s, dtype=torch.bfloat16) * 0.05)(D, D)), 'dw_merge': _w((lambda *s: torch.randn(*s, dtype=torch.bfloat16) * 0.05)(K, 2 * D)), 'w_merge': _w((lambda *s: torch.randn(*s, dtype=torch.bfloat16) * 0.05)(2 * D, D))}

def reference(x, w_qkv, w_att_out, w_mlp_in, dw_csgu, w_mlp_out, dw_merge, w_merge):
    B, T, D = x.shape
    K = dw_csgu.shape[0]
    pad = K // 2
    xa = _layernorm(x, axis=-1)
    qkv = torch.einsum('btd,de->bte', xa, w_qkv)
    q, k, v = (qkv[..., :D].clone(), qkv[..., D:2 * D].clone(), qkv[..., 2 * D:].clone())
    scores = torch.einsum('btd,bsd->bts', q, k) * D ** (-0.5)
    p = _softmax(scores, axis=-1)
    attn = torch.einsum('bts,bsd->btd', p, v)
    glob = torch.einsum('btd,de->bte', attn, w_att_out)
    xc = _layernorm(x, axis=-1)
    h = _gelu(torch.einsum('btd,de->bte', xc, w_mlp_in))
    u, g = (h[..., :D].clone(), h[..., D:].clone())
    g = _layernorm(g, axis=-1)
    gp = _pad(g, ((0, 0), (pad, pad), (0, 0)))
    gc = torch.zeros_like(g)
    for i in range(K):
        gc = gc + gp[:, i:i + T, :] * dw_csgu[i][None, None, :]
    loc = torch.einsum('btd,de->bte', u * gc, w_mlp_out)
    m = torch.concatenate([glob, loc], axis=-1)
    mp = _pad(m, ((0, 0), (pad, pad), (0, 0)))
    mc = torch.zeros_like(m)
    for i in range(K):
        mc = mc + mp[:, i:i + T, :] * dw_merge[i][None, None, :]
    m = m + mc
    return x + torch.einsum('btc,cd->btd', m, w_merge)
```

```python
from gcore import *
GT_STRIDE_DEFAULT = 384
TB_STRIDE = 352
TB_BYTES = 64*TB_STRIDE

def zero_lds(a, vlane_tid, vz, base, nbytes, vtmp):
    for k in range(4): a(f"v_mov_b32 {v(vz+k)}, 0")
    a(f"v_lshlrev_b32 {v(vtmp)}, 4, {v(vlane_tid)}")
    a(f"v_add_u32 {v(vtmp)}, {base}, {v(vtmp)}")
    n = -(-nbytes // 4096)
    for i in range(n):
        if (i+1)*4096 <= nbytes:
            a(f"ds_write_b128 {v(vtmp)}, {v(vz,4)} offset:{i*4096}")
        else:
            rem = nbytes - i*4096
            assert rem % 1024 == 0 or True
            a(f"v_cmp_gt_u32 vcc, {rem//16}, {v(vlane_tid)}")
            a("s_and_saveexec_b64 s[96:97], vcc")
            a(f"ds_write_b128 {v(vtmp)}, {v(vz,4)} offset:{i*4096}")
            a("s_mov_b64 exec, s[96:97]")

def taps_load(a, vtid, vt, vdst, srd, s_col, ld):
    a(f"v_and_b32 {v(vt)}, 63, {v(vtid)}")
    a(f"v_lshrrev_b32 {v(vt+1)}, 6, {v(vtid)}")
    a(f"v_mul_u32_u24 {v(vt+1)}, {ld}, {v(vt+1)}")
    a(f"v_lshl_add_u32 {v(vt)}, {v(vt)}, 1, {v(vt+1)}")
    a(f"v_add_u32 {v(vt)}, {s(s_col)}, {v(vt)}")
    for m in range(8):
        a(f"s_mov_b32 s99, {4*m*ld}")
        a(f"buffer_load_ushort {v(vdst+m)}, {v(vt)}, {s(srd,4)}, s99 offen")

def taps_write(a, vtid, vt, vsrc, tb_base):
    a(f"v_and_b32 {v(vt)}, 63, {v(vtid)}")
    a(f"v_lshrrev_b32 {v(vt+1)}, 6, {v(vtid)}")
    a(f"v_mul_u32_u24 {v(vt)}, {TB_STRIDE}, {v(vt)}")
    a(f"v_lshl_add_u32 {v(vt)}, {v(vt+1)}, 1, {v(vt)}")
    a(f"v_add_u32 {v(vt)}, {tb_base}, {v(vt)}")
    for m in range(8):
        if m == 7:
            a(f"v_cmp_gt_u32 vcc, 3, {v(vt+1)}")
            a("s_and_saveexec_b64 s[96:97], vcc")
        a(f"ds_write_b16 {v(vt)}, {v(vsrc+m)} offset:{(4*m+16)*2}")
        a(f"ds_write_b16 {v(vt)}, {v(vsrc+m)} offset:{176 + (4*m+15)*2}")
        if m == 7: a("s_mov_b64 exec, s[96:97]")

class Conv:
    def __init__(self, V, gt_base, gt_stride, tb_base, out_base, residual):
        self.gt_base = gt_base; self.gs = gt_stride; self.tb = tb_base; self.out = out_base; self.res = residual
        self.vA = V.alloc(); self.vX = [V.alloc(), V.alloc()]; self.vXa = [V.alloc(), V.alloc()]
        self.vO = [V.alloc(), V.alloc()]
        self.fa = [V.alloc(8, 4) for _ in range(2)]; self.fb = [V.alloc(8, 4) for _ in range(2)]
        self.D = [V.alloc(16, 4) for _ in range(2)]
        self.pk = V.alloc(8, 2); self.vAc = V.alloc()
        if residual: self.vI = V.alloc(4, 4)
    def setup(self, a, vlane, sW, vt):
        t0, t1, t2 = vt, vt+1, vt+2
        a(f"v_and_b32 {v(t0)}, 15, {v(vlane)}")
        a(f"v_lshrrev_b32 {v(t1)}, 4, {v(vlane)}")
        a(f"v_lshlrev_b32 {v(t2)}, 3, {v(t1)}")
        a(f"v_sub_u32 {v(t2)}, {v(t2)}, {v(t0)}")
        a(f"v_add_u32 {v(t2)}, 15, {v(t2)}")
        a(f"v_and_b32 {v(self.vA)}, 1, {v(t2)}")
        a(f"v_mul_u32_u24 {v(self.vA)}, 176, {v(self.vA)}")
        a(f"v_lshrrev_b32 {v(t2)}, 1, {v(t2)}")
        a(f"v_lshl_add_u32 {v(self.vA)}, {v(t2)}, 2, {v(self.vA)}")
        a(f"s_mul_i32 s99, {s(sW)}, {16*TB_STRIDE}")
        a(f"s_add_u32 s99, s99, {self.tb}")
        a(f"v_add_u32 {v(self.vA)}, s99, {v(self.vA)}")
        a(f"v_lshl_add_u32 {v(t2)}, {v(t0)}, 1, {v(t1)}")
        a(f"s_mul_i32 s99, {s(sW)}, {16*self.gs}")
        a(f"s_add_u32 s99, s99, {self.gt_base}")
        a(f"v_lshlrev_b32 {v(t2)}, 4, {v(t2)}")
        a(f"v_add_u32 {v(self.vX[0])}, s99, {v(t2)}")
        a(f"v_add_u32 {v(self.vX[1])}, 64, {v(self.vX[0])}")
        a(f"v_lshlrev_b32 {v(t2)}, 2, {v(t1)}")
        a(f"v_lshl_add_u32 {v(t2)}, {v(t0)}, 4, {v(t2)}")
        a(f"v_lshlrev_b32 {v(t2)}, 7, {v(t2)}")
        a(f"v_add_u32 {v(t2)}, {self.out}, {v(t2)}")
        a(f"v_and_b32 {v(t0)}, 7, {v(t0)}")
        for hi in range(2):
            a(f"s_lshl_b32 s99, {s(sW)}, 1")
            if hi: a("s_add_u32 s99, s99, 1")
            a(f"v_xor_b32 {v(t1)}, s99, {v(t0)}")
            a(f"v_lshl_add_u32 {v(self.vO[hi])}, {v(t1)}, 4, {v(t2)}")
        if self.res:
            a(f"v_and_b32 {v(t0)}, 15, {v(vlane)}")
            a(f"v_lshrrev_b32 {v(t1)}, 4, {v(vlane)}")
            a(f"v_lshlrev_b32 {v(t1)}, 3, {v(t1)}")
            a(f"v_sub_u32 {v(t0)}, {v(t0)}, {v(t1)}")
            a(f"v_add_u32 {v(t0)}, 16, {v(t0)}")
            for d in range(4):
                a(f"v_mov_b32 {v(self.vI+d)}, 0")
                a(f"v_mov_b32 {v(t1)}, 0x3f80")
                a(f"v_cmp_eq_u32 vcc, {2*d}, {v(t0)}")
                a(f"v_mov_b32 {v(t2)}, 0x3f800000")
                a("s_nop 0")
                a(f"v_cndmask_b32 {v(self.vI+d)}, {v(self.vI+d)}, {v(t1)}, vcc")
                a(f"v_cmp_eq_u32 vcc, {2*d+1}, {v(t0)}")
                a("s_nop 1")
                a(f"v_cndmask_b32 {v(self.vI+d)}, {v(self.vI+d)}, {v(t2)}, vcc")
    def loads(self, j, st):
        o = []
        fa, fb = self.fa[st], self.fb[st]
        o.append(f"v_add_u32 {v(self.vAc)}, {j*TB_STRIDE}, {v(self.vA)}")
        for sidx in range(2):
            o.append(f"ds_read2_b32 {v(fa+4*sidx,2)}, {v(self.vAc)} offset0:{16*sidx} offset1:{16*sidx+1}")
            o.append(f"ds_read2_b32 {v(fa+4*sidx+2,2)}, {v(self.vAc)} offset0:{16*sidx+2} offset1:{16*sidx+3}")
        g = (j >> 1) & 7
        if j % 2 == 0:
            for sidx in range(2):
                o.append(f"v_xor_b32 {v(self.vXa[sidx])}, {g*16}, {v(self.vX[sidx])}")
        for sidx in range(2):
            o.append(f"ds_read_b128 {v(fb+4*sidx,4)}, {v(self.vXa[sidx])} offset:{j*self.gs}")
        return o
    def mfmas(self, j, st):
        d = self.D[(j >> 2) & 1] + 4*(j & 3)
        fa, fb = self.fa[st], self.fb[st]
        o = [f"v_mfma_f32_16x16x32_bf16 {v(d,4)}, {v(fa,4)}, {v(fb,4)}, 0",
             f"v_mfma_f32_16x16x32_bf16 {v(d,4)}, {v(fa+4,4)}, {v(fb+4,4)}, {v(d,4)}"]
        if self.res:
            o.append(f"v_mfma_f32_16x16x32_bf16 {v(d,4)}, {v(self.vI,4)}, {v(fb,4)}, {v(d,4)}")
        return o
    def flush(self, jg, exec_mask):
        D = self.D[jg & 1]
        o = []
        for r in range(4):
            o.append(f"v_cvt_pk_bf16_f32 {v(self.pk+2*r)}, {v(D+r)}, {v(D+4+r)}")
            o.append(f"v_cvt_pk_bf16_f32 {v(self.pk+2*r+1)}, {v(D+8+r)}, {v(D+12+r)}")
        if exec_mask is not None:
            o.append(f"s_mov_b32 exec_lo, {exec_mask & 0xffffffff}\ns_mov_b32 exec_hi, {exec_mask >> 32}")
        for r in range(4):
            o.append(f"ds_write_b64 {v(self.vO[jg >> 1])}, {v(self.pk+2*r,2)} offset:{r*128 + (jg & 1)*8}")
        if exec_mask is not None: o.append("s_mov_b64 exec, -1")
        return o
    def emit(self, a, nblk):
        mask = 0
        for l in range(64):
            if (l & 15) < nblk: mask |= 1 << l
        if nblk >= 16: mask = None
        for l in self.loads(0, 0): a(l)
        for j in range(16):
            st = j & 1
            if j + 1 < 16:
                nxt = self.loads(j+1, st ^ 1)
                nreads = sum(1 for l in nxt if l.startswith("ds_"))
                for l in nxt: a(l)
                a(f"s_waitcnt lgkmcnt({nreads})")
            else:
                a("s_waitcnt lgkmcnt(0)")
            for l in self.mfmas(j, st): a(l)
            if j % 4 == 1 and j >= 5:
                for l in self.flush(j//4 - 1, mask): a(l)
        a("s_nop 7")
        a("s_nop 1")
        for l in self.flush(3, mask): a(l)
```

```python
import struct
def f2u(f): return struct.unpack("<I", struct.pack("<f", f))[0]

class Asm:
    def __init__(self):
        self.lines = []
    def __call__(self, s=""):
        for l in s.split("\n"):
            l = l.strip()
            if not l: continue
            if l.endswith(":"): self.lines.append(l)
            else: self.lines.append("    " + l)
    def c(self, s): self.lines.append("    ; " + s)
    def text(self): return "\n".join(self.lines) + "\n"

class Regs:
    def __init__(self, start, limit, prefix):
        self.n = start; self.limit = limit; self.p = prefix; self.hi = start
    def alloc(self, cnt=1, align=1):
        self.n = (self.n + align - 1) // align * align
        r = self.n; self.n += cnt
        assert self.n <= self.limit, f"out of {self.p} regs: {self.n}"
        self.hi = max(self.hi, self.n)
        return r
    def mark(self): return self.n
    def release(self, m): self.n = m

def v(r, n=1): return f"v{r}" if n == 1 else f"v[{r}:{r+n-1}]"
def s(r, n=1): return f"s{r}" if n == 1 else f"s[{r}:{r+n-1}]"

X,WQKV,WO,WIN,DWC,WMO,DWM,WM,OUT,DBG,WS = range(11)
SIZES = {X:2*1000*512*2, WQKV:512*1536*2, WO:512*512*2, WIN:512*1024*2, DWC:31*512*2, WMO:512*512*2,
         DWM:31*1024*2, WM:1024*512*2, OUT:2*1000*512*2, WS:1<<28}

def interleave(main, fill, start=0):
    out = []
    n = len(main)
    k = 0
    for i, m in enumerate(main):
        out.append(m)
        if i < start: continue
        rem_slots = n - i
        take = -(-(len(fill) - k) // rem_slots)
        for _ in range(take):
            if k < len(fill): out.append(fill[k]); k += 1
    out += fill[k:]
    return out

def kernel_header(name):
    return f".globl {name}\n.p2align 8\n.type {name},@function\n{name}:\n"
def kernel_desc(name, vgpr, sgpr=96, accum=None):
    if accum is None: accum = (vgpr + 3) // 4 * 4
    return f""".amdhsa_kernel {name}
  .amdhsa_next_free_vgpr {vgpr}
  .amdhsa_next_free_sgpr {sgpr}
  .amdhsa_accum_offset {accum}
  .amdhsa_group_segment_fixed_size 0
  .amdhsa_kernarg_size 88
  .amdhsa_user_sgpr_count 2
  .amdhsa_user_sgpr_kernarg_segment_ptr 1
  .amdhsa_system_sgpr_workgroup_id_x 1
.end_amdhsa_kernel
"""
def make_file(launches, kernels, head=""):
    t = head
    for (n, g, b, l) in launches:
        t += f"; @launch kernel={n} grid=({g},1,1) block=({b},1,1) lds={l}\n"
    t += '.amdgcn_target "amdgcn-amd-amdhsa--gfx950"\n.text\n'
    for k in kernels:
        t += kernel_header(k[0]) + k[1]
    t += '.section .rodata,"a"\n'
    for k in kernels:
        t += ".p2align 6\n" + kernel_desc(k[0], k[2], k[3], k[4])
    return t

PROF = False
O_PROF = 0x3000000
def stamp(a, idx):
    if PROF: a(f"s_memtime s[{84+2*idx}:{85+2*idx}]")
def prof_flush(a, ws_ptr, kidx, nst, vt):
    if not PROF: return
    a("s_waitcnt lgkmcnt(0)")
    a(f"s_memrealtime s[80:81]")
    a(f"s_add_u32 s76, s{ws_ptr}, {O_PROF + kidx*65536}")
    a(f"s_addc_u32 s77, s{ws_ptr+1}, 0")
    a("s_mov_b32 s78, 65536")
    a("s_mov_b32 s79, 0x20000")
    a("s_waitcnt lgkmcnt(0)")
    a(f"s_lshl_b32 s98, s2, 6")
    a(f"v_mov_b32 {v(vt)}, s98")
    a(f"v_cmp_eq_u32 vcc, 0, v0")
    a("s_and_saveexec_b64 s[82:83], vcc")
    a("s_cbranch_execz .Lprof_skip_%d_%d" % (kidx, len(a.lines)))
    lab = ".Lprof_skip_%d_%d" % (kidx, len(a.lines)-1)
    for i in range(nst):
        a(f"v_mov_b32 {v(vt+1)}, s{84+2*i}")
        a(f"buffer_store_dword {v(vt+1)}, {v(vt)}, s[76:79], 0 offen offset:{4*i}")
    a(f"v_mov_b32 {v(vt+1)}, s80")
    a(f"buffer_store_dword {v(vt+1)}, {v(vt)}, s[76:79], 0 offen offset:60")
    a(lab + ":")
    a("s_mov_b64 exec, s[82:83]")
```

```python
from gcore import *

class OpK:
    def __init__(self, rows, lds_off):
        self.rows = rows; self.lds_off = lds_off; self.bytes = rows * 128
        self.nper = rows // 32
        assert rows % 32 == 0
    def alloc(self, V, S, NS, nsets=1):
        self.NS = NS
        self.voff = [V.alloc() for _ in range(self.nper)]
        self.addr = [[[V.alloc() for _ in range(4)] for _ in range(NS)] for _ in range(nsets)]
        self.s_ldsw = S.alloc(); self.s_k = S.alloc()
    def setup_dma(self, a, vlane, swave, vtmp, ld, srowbase=None, rowfn=None):
        t0, t1, t2 = vtmp, vtmp+1, vtmp+2
        rpw = self.rows // 4
        assert rpw % 16 == 0 or self.nper == 1
        a(f"s_mul_i32 s99, {s(swave)}, {rpw}")
        a(f"s_mul_i32 {s(self.s_ldsw)}, {s(swave)}, {self.nper*1024}")
        if rowfn is None:
            if srowbase is not None: a(f"s_add_u32 s99, s99, {s(srowbase)}")
            a(f"v_lshrrev_b32 {v(t0)}, 3, {v(vlane)}")
            a(f"v_lshrrev_b32 {v(t1)}, 4, {v(vlane)}")
            if self.nper == 1 and rpw % 16:
                a(f"s_and_b32 s98, {s(swave)}, 1")
                a(f"s_lshl_b32 s98, s98, 2")
                a(f"v_add_u32 {v(t1)}, s98, {v(t1)}")
            a(f"v_and_b32 {v(t2)}, 7, {v(vlane)}")
            a(f"v_xor_b32 {v(t1)}, {v(t1)}, {v(t2)}")
            a(f"v_add_u32 {v(t0)}, s99, {v(t0)}")
            if ld & (ld-1) == 0: a(f"v_lshlrev_b32 {v(t0)}, {ld.bit_length()-1}, {v(t0)}")
            else: a(f"v_mul_i32_i24 {v(t0)}, {ld}, {v(t0)}")
            a(f"v_lshl_add_u32 {v(self.voff[0])}, {v(t1)}, 4, {v(t0)}")
            if self.nper > 1:
                a(f"v_xor_b32 {v(t1)}, 4, {v(t1)}")
                a(f"v_lshl_add_u32 {v(t2)}, {v(t1)}, 4, {v(t0)}")
            for j in range(1, self.nper):
                src = t2 if j & 1 else self.voff[0]
                a(f"v_add_u32 {v(self.voff[j])}, {8*j*ld - (j%4)*1024}, {v(src)}")
            return
        a(f"v_lshrrev_b32 {v(t2)}, 3, {v(vlane)}")
        a(f"v_add_u32 {v(t2)}, s99, {v(t2)}")
        for j in range(self.nper):
            o = self.voff[j]
            if j: a(f"v_add_u32 {v(t0)}, {8*j}, {v(t2)}")
            else: a(f"v_mov_b32 {v(t0)}, {v(t2)}")
            a(f"v_bfe_u32 {v(t1)}, {v(t0)}, 1, 3")
            a(f"v_and_b32 {v(o)}, 7, {v(vlane)}")
            a(f"v_xor_b32 {v(t1)}, {v(t1)}, {v(o)}")
            rowfn(a, t0)
            if ld & (ld-1) == 0: a(f"v_lshlrev_b32 {v(t0)}, {ld.bit_length()-1}, {v(t0)}")
            else: a(f"v_mul_u32_u24 {v(t0)}, {ld}, {v(t0)}")
            a(f"v_lshl_add_u32 {v(o)}, {v(t1)}, 4, {v(t0)}")
            if j % 4: a(f"v_subrev_u32 {v(o)}, {(j%4)*1024}, {v(o)}")
    def setup_read(self, a, vlane, vtmp, st, vrow0, slot_bytes):
        t0, t1 = vtmp, vtmp+1
        a(f"v_bfe_u32 {v(t0)}, {v(vrow0)}, 1, 3")
        a(f"v_lshrrev_b32 {v(t1)}, 5, {v(vlane)}")
        a(f"v_xor_b32 {v(t0)}, {v(t0)}, {v(t1)}")
        a(f"v_lshlrev_b32 {v(t0)}, 4, {v(t0)}")
        a(f"v_lshl_add_u32 {v(t0)}, {v(vrow0)}, 7, {v(t0)}")
        for ks in range(4):
            if ks: a(f"v_xor_b32 {v(t1)}, {ks*32}, {v(t0)}")
            src = t1 if ks else t0
            for sl in range(self.NS):
                a(f"v_add_u32 {v(self.addr[st][sl][ks])}, {self.lds_off + sl*slot_bytes}, {v(src)}")
    def dma(self, srd, slot_off, masks=None, flags=""):
        out = []
        for j in range(self.nper):
            at = []
            if j % 4 == 0:
                at.append(f"s_add_u32 m0, {s(self.s_ldsw)}, {slot_off + self.lds_off + (j//4)*4096}")
                at.append("s_nop 0")
            if masks and j in masks: at.append(f"s_mov_b64 exec, {s(masks[j],2)}")
            at.append(f"buffer_load_dwordx4 {v(self.voff[j])}, {s(srd,4)}, {s(self.s_k)} offen offset:{(j%4)*1024} lds {flags}")
            if masks and j in masks: at.append("s_mov_b64 exec, -1")
            out.append("\n".join(at))
        return out
    def read(self, dst, slot, ks, tile_rows=0, st=0):
        return [f"ds_read_b128 {v(dst,4)}, {v(self.addr[st][slot][ks])} offset:{tile_rows*128}"]

class OpT:
    def __init__(self, width_elems, lds_off):
        self.W = width_elems * 2; self.lds_off = lds_off; self.bytes = 64 * self.W
        assert self.W in (128, 256, 384, 512)
        self.cpr = self.W // 16
        self.nper = self.bytes // 1024 // 4
    def key_from_row(self, a, dst, row):
        if self.W in (256, 512): a(f"v_and_b32 {v(dst)}, 3, {v(row)}")
        else: a(f"v_bfe_u32 {v(dst)}, {v(row)}, 1, 1")
    def alloc(self, V, S, NS, ntiles):
        self.NS = NS
        self.voff = [V.alloc() for _ in range(self.nper)]
        self.addr = [[V.alloc() for _ in range(ntiles)] for _ in range(NS)]
        self.s_ldsw = S.alloc(); self.s_k = S.alloc()
    def setup_dma(self, a, vlane, swave, vtmp, ld, colbase_s=None):
        t0, t1, t2 = vtmp, vtmp+1, vtmp+2
        a(f"s_mul_i32 {s(self.s_ldsw)}, {s(swave)}, {self.nper*1024}")
        period = 3 if self.cpr == 24 else 1
        rows_per = period * 64 // self.cpr
        rows_wave = self.nper * 64 // self.cpr
        if self.W in (256, 512): assert rows_per % 4 == 0 or self.W == 512
        a(f"s_mul_i32 s99, {s(swave)}, {rows_wave*ld}")
        if colbase_s is not None: a(f"s_add_u32 s99, s99, {s(colbase_s)}")
        npat = period
        if self.W == 512: npat = 2
        for j in range(min(npat, self.nper)):
            o = self.voff[j]
            if self.cpr == 24:
                if j: a(f"v_add_u32 {v(t0)}, {64*j}, {v(vlane)}")
                src = t0 if j else vlane
                a(f"v_mul_u32_u24 {v(t1)}, 2731, {v(src)}")
                a(f"v_lshrrev_b32 {v(t1)}, 16, {v(t1)}")
                a(f"v_mul_u32_u24 {v(t2)}, 24, {v(t1)}")
                a(f"v_sub_u32 {v(t0)}, {v(src)}, {v(t2)}")
            else:
                sh = self.cpr.bit_length() - 1
                a(f"v_lshrrev_b32 {v(t1)}, {sh}, {v(vlane)}")
                if j: a(f"v_add_u32 {v(t1)}, {j*rows_per}, {v(t1)}")
                a(f"v_and_b32 {v(t0)}, {self.cpr-1}, {v(vlane)}")
            assert rows_wave % 4 == 0
            self.key_from_row(a, t2, t1)
            a(f"v_lshlrev_b32 {v(t2)}, 2, {v(t2)}")
            a(f"v_xor_b32 {v(t0)}, {v(t0)}, {v(t2)}")
            a(f"v_mul_u32_u24 {v(t1)}, {ld}, {v(t1)}")
            a(f"v_lshl_add_u32 {v(o)}, {v(t0)}, 4, {v(t1)}")
            a(f"v_add_u32 {v(o)}, s99, {v(o)}")
        for j in range(self.nper-1, -1, -1):
            b = j % npat
            step = (j - b) // npat * (rows_per * (npat if self.W == 512 else 1))
            c = step*ld - (j%4)*1024
            if j >= npat or c:
                a(f"v_add_u32 {v(self.voff[j])}, {c & 0xffffffff}, {v(self.voff[b])}")
    def setup_read(self, a, vlane, vtmp, s_seg0, slot_bytes):
        t0, t1, t2, t3 = vtmp, vtmp+1, vtmp+2, vtmp+3
        a(f"v_bfe_u32 {v(t0)}, {v(vlane)}, 2, 2")
        a(f"v_lshrrev_b32 {v(t1)}, 5, {v(vlane)}")
        a(f"v_lshl_add_u32 {v(t0)}, {v(t1)}, 3, {v(t0)}")
        self.key_from_row(a, t1, t0)
        a(f"v_mul_u32_u24 {v(t0)}, {self.W}, {v(t0)}")
        a(f"v_bfe_u32 {v(t2)}, {v(vlane)}, 4, 1")
        a(f"v_lshl_add_u32 {v(t0)}, {v(t2)}, 5, {v(t0)}")
        a(f"v_and_b32 {v(t2)}, 3, {v(vlane)}")
        a(f"v_lshl_add_u32 {v(t0)}, {v(t2)}, 3, {v(t0)}")
        for t in range(len(self.addr[0])):
            if isinstance(s_seg0, int) and s_seg0 < 0:
                a(f"v_xor_b32 {v(t3)}, {(-s_seg0-1)+t}, {v(t1)}")
            else:
                a(f"s_add_u32 s99, {s(s_seg0)}, {t}")
                a(f"v_xor_b32 {v(t3)}, s99, {v(t1)}")
            a(f"v_lshl_add_u32 {v(t3)}, {v(t3)}, 6, {v(t0)}")
            for sl in range(self.NS):
                a(f"v_add_u32 {v(self.addr[sl][t])}, {self.lds_off + sl*slot_bytes}, {v(t3)}")
    def dma(self, srd, slot_off, flags=""):
        out = []
        for j in range(self.nper):
            at = []
            if j % 4 == 0:
                at.append(f"s_add_u32 m0, {s(self.s_ldsw)}, {slot_off + self.lds_off + (j//4)*4096}")
                at.append("s_nop 0")
            at.append(f"buffer_load_dwordx4 {v(self.voff[j])}, {s(srd,4)}, {s(self.s_k)} offen offset:{(j%4)*1024} lds {flags}")
            out.append("\n".join(at))
        return out
    def read(self, dst, slot, t, ks):
        o = ks * 16 * self.W
        return [f"ds_read_b64_tr_b16 {v(dst,2)}, {v(self.addr[slot][t])} offset:{o}",
                f"ds_read_b64_tr_b16 {v(dst+2,2)}, {v(self.addr[slot][t])} offset:{o + 4*self.W}"]

def spread(main, fill):
    out = []; n = len(main); k = 0
    for i, m in enumerate(main):
        out.append(m)
        take = -(-(len(fill) - k) // (n - i))
        for _ in range(take):
            out.append(fill[k]); k += 1
    return out

def split(lst, parts):
    n = len(lst); r = []; k = 0
    for p in range(parts):
        take = -(-(n - k) // (parts - p)); r.append(lst[k:k+take]); k += take
    return r

def emit_main(a, n, NS, slot_bytes, dma_fn, ndma, kadv_fn, reads_fn, mfma_fn, extra=None, vm_extra=None, stage_head=None, npre=2):
    extra = extra or {}; vm_extra = vm_extra or {}
    d = []
    for st in range(npre, NS):
        d += dma_fn(st*slot_bytes) + kadv_fn()
    pend = split(d, 3) if d else []
    for i in range(n):
        slot = i % NS
        if stage_head: stage_head(a, i)
        for ks in range(4):
            cur = ks & 1
            m = mfma_fn(i, ks, cur)
            ex = extra.get((i, ks), [])
            if ks < 3:
                a("s_waitcnt lgkmcnt(0)")
                fill = reads_fn(slot, ks+1, cur ^ 1) + (pend.pop(0) if pend else []) + ex
                for l in spread(m, fill): a(l)
            else:
                a("s_waitcnt lgkmcnt(0)")
                if i == n-1:
                    for l in spread(m, ex): a(l)
                else:
                    newer = min(NS-2, n-2-i)
                    a(m[0])
                    a(f"s_waitcnt vmcnt({newer*ndma + vm_extra.get(i,0)})")
                    a("s_barrier")
                    if i + NS < n:
                        d = dma_fn(slot*slot_bytes)
                        parts = split(d, 4)
                        parts[3] = parts[3] + kadv_fn()
                        pend = parts
                    else:
                        pend = []
                    fill = reads_fn((i+1) % NS, 0, 0) + (pend.pop(0) if pend else []) + ex
                    for l in spread(m[1:], fill) if len(m) > 1 else fill: a(l)

def store_rows(a, V, vlane, sW, t, RB, RS, lds_base, rows_per_wave, ld, srd, s_base, buf, nbuf, sTmp, rowlimit=None, sf="", s_rowlimit=None):
    cpr = RB // 16
    m = V.mark()
    nst = rows_per_wave * cpr // 64
    assert rows_per_wave * cpr % 64 == 0
    if cpr in (24, 12):
        period = 3; magic = 2731 if cpr == 24 else 5462
    else:
        period = 1
    rows_per = period * 64 // cpr
    npat = min(period, nst)
    vRd = [V.alloc() for _ in range(npat)]; vGo = [V.alloc() for _ in range(npat)]; vRow = [V.alloc() for _ in range(npat)]
    for j in range(npat):
        if period == 3:
            if j: a(f"v_add_u32 {v(t)}, {64*j}, {v(vlane)}")
            src = t if j else vlane
            a(f"v_mul_u32_u24 {v(t+1)}, {magic}, {v(src)}")
            a(f"v_lshrrev_b32 {v(t+1)}, 16, {v(t+1)}")
            a(f"v_mul_u32_u24 {v(t+2)}, {cpr}, {v(t+1)}")
            a(f"v_sub_u32 {v(t)}, {v(src)}, {v(t+2)}")
        else:
            sh = cpr.bit_length() - 1
            a(f"v_lshrrev_b32 {v(t+1)}, {sh}, {v(vlane)}")
            a(f"v_and_b32 {v(t)}, {cpr-1}, {v(vlane)}")
        a(f"s_mul_i32 s99, {s(sW)}, {rows_per_wave}")
        a(f"v_add_u32 {v(vRow[j])}, s99, {v(t+1)}")
        a(f"v_mul_u32_u24 {v(t+2)}, {RS}, {v(vRow[j])}")
        a(f"v_lshl_add_u32 {v(vRd[j])}, {v(t)}, 4, {v(t+2)}")
        if lds_base: a(f"v_add_u32 {v(vRd[j])}, {lds_base}, {v(vRd[j])}")
        a(f"v_mul_u32_u24 {v(t+2)}, {ld}, {v(vRow[j])}")
        a(f"v_lshl_add_u32 {v(t+2)}, {v(t)}, 4, {v(t+2)}")
        a(f"v_add_u32 {v(vGo[j])}, {s(s_base)}, {v(t+2)}")
    items = [(i // npat, i % npat) for i in range(nst)]
    for b0 in range(0, len(items), nbuf):
        grp = items[b0:b0+nbuf]
        for i2, (p, j) in enumerate(grp):
            a(f"ds_read_b128 {v(buf+4*i2,4)}, {v(vRd[j])} offset:{p*rows_per*RS}")
        for i2, (p, j) in enumerate(grp):
            masked = (rowlimit is not None and (p+1)*rows_per + 3*rows_per_wave > rowlimit) or s_rowlimit is not None
            if masked:
                a(f"v_add_u32 {v(t)}, {p*rows_per}, {v(vRow[j])}")
                a(f"v_cmp_gt_u32 vcc, {s(s_rowlimit) if s_rowlimit is not None else rowlimit}, {v(t)}")
                a(f"v_mov_b32 {v(t+1)}, 0x80000000")
                a(f"v_add_u32 {v(t+2)}, {p*rows_per*ld}, {v(vGo[j])}")
                a(f"v_cndmask_b32 {v(t+2)}, {v(t+1)}, {v(t+2)}, vcc")
                a(f"s_waitcnt lgkmcnt({len(grp)-1-i2})")
                a(f"buffer_store_dwordx4 {v(buf+4*i2,4)}, {v(t+2)}, {s(srd,4)}, 0 offen {sf}")
            else:
                a(f"s_mov_b32 {s(sTmp)}, {p*rows_per*ld}")
                a(f"s_waitcnt lgkmcnt({len(grp)-1-i2})")
                a(f"buffer_store_dwordx4 {v(buf+4*i2,4)}, {v(vGo[j])}, {s(srd,4)}, {s(sTmp)} offen {sf}")
        if b0 + nbuf < len(items): a("s_nop 1")
    V.release(m)
```

```python
import sys, gcore
from gcore import *
import k1, k2, k3, k4
def build_all(prof=False, sf="", sf_last=""):
    gcore.PROF = prof
    a, la = k1.k1(sf); b, lb = k2.k2(sf); c, lc = k3.k3(sf); d, ld = k4.k4(sf_last)
    head = open("standalone__conformer_family_e_branchformer__speech.s.ref").read().split("; Override")[0] if False else ""
    print("vgprs", a[2], b[2], c[2], d[2], "lds", la, lb, lc, ld)
    return make_file([("k1_kernel",256,256,la),("k2_kernel",256,256,lb),("k3_kernel",256,256,lc),("k4_kernel",256,256,ld)], [a,b,c,d])
if __name__ == "__main__":
    import build
    prof = "prof" in sys.argv
    sf = " ".join(x for x in sys.argv[1:] if x in ("sc1","sc0","nt"))
    open("all.s","w").write(build_all(prof, sf, sf))
    build.build("all.s","all.co")
```

```python
from gcore import *
import gcore
from gemm2 import *

O_Y   = 0
Y_LD  = 5120
Y_BYTES = 2000*Y_LD
O_GS  = 0xA00000
GS_BYTES = 8*2048*8
O_XS  = 0xA20000
XS_BYTES = 16*128*8
OPT = {}

def srd_from(a, dst, ptr, size, off=0):
    if off:
        a(f"s_add_u32 {s(dst)}, {s(ptr)}, {off}")
        a(f"s_addc_u32 {s(dst+1)}, {s(ptr+1)}, 0")
    else:
        a(f"s_mov_b32 {s(dst)}, {s(ptr)}")
        a(f"s_mov_b32 {s(dst+1)}, {s(ptr+1)}")
    a(f"s_mov_b32 {s(dst+2)}, {size}")
    a(f"s_mov_b32 {s(dst+3)}, 0x20000")

def halfsum(a, x, t):
    a(f"v_mov_b32 {v(t)}, {v(x)}")
    a("s_nop 1")
    a(f"v_permlane32_swap_b32 {v(x)}, {v(t)}")
    a("s_nop 1")
    a(f"v_add_f32 {v(x)}, {v(x)}, {v(t)}")

def k1_type(a, typ, S0, sf=""):
    name = f"k1{typ}"
    NE = 192 if typ == 'A' else 128
    MT = NE // 64
    NS = 3
    V = Regs(1, 256, "v"); S = Regs(S0, 76, "s")
    vlane = V.alloc(); vtmp = V.alloc(8, 4)
    opW = OpT(NE, 0); opX = OpK(128, opW.bytes)
    slot = opW.bytes + opX.bytes
    CS = NS*slot
    lds_total = CS + 768
    opW.alloc(V, S, NS, MT); opX.alloc(V, S, NS, 1)
    acc = V.alloc(MT*2*16, 4)
    frb = V.alloc(max(8*(MT+2), 16*MT), 4)
    fr = [frb, frb + 4*(MT+2)]
    fW = lambda st, mt: fr[st] + 4*mt
    fX = lambda st, nt: fr[st] + 4*MT + 4*nt
    A_ = lambda mt, nt: acc + (mt*2 + nt)*16
    sW, sTi, sTj, sC0, sG, sNidx = 20, 21, 22, 23, 36, 35
    srdX, srdW, srdY, srdG, srdXS, srdF = 8, 12, 16, 24, 44, 48
    S.n = max(S.n, 52)
    sMask = S.alloc(2, 2); sWm = S.alloc(); sWn = S.alloc(); sSeg = S.alloc(); sKc = S.alloc(); sCol = S.alloc(); sRow0 = S.alloc()
    ldW = 3072 if typ == 'A' else 2048
    a(f"{name}_start:")
    a(f"v_and_b32 {v(vlane)}, 63, v0")
    a(f"s_mul_i32 {s(sRow0)}, {s(sTi)}, 125")
    vSt = V.alloc(32, 4) if typ == 'B' else None
    if typ == 'B':
        a.c("producer: load 32 rows of x for the row statistics (wave: 8 rows, 8 lanes per row)")
        a(f"s_cmp_eq_u32 {s(sNidx)}, 2")
        a(f"s_cbranch_scc0 {name}_np0")
        a(f"v_lshrrev_b32 {v(vtmp)}, 3, {v(vlane)}")
        a(f"s_lshl_b32 s99, {s(sG)}, 5")
        a(f"s_lshl_b32 s98, {s(sW)}, 3")
        a(f"s_add_u32 s99, s99, s98")
        a(f"v_add_u32 {v(vtmp)}, s99, {v(vtmp)}")
        a(f"v_min_u32 {v(vtmp+2)}, 124, {v(vtmp)}")
        a(f"v_add_u32 {v(vtmp+2)}, {s(sRow0)}, {v(vtmp+2)}")
        a(f"v_lshlrev_b32 {v(vtmp+2)}, 10, {v(vtmp+2)}")
        a(f"v_and_b32 {v(vtmp+1)}, 7, {v(vlane)}")
        a(f"v_lshl_add_u32 {v(vtmp+2)}, {v(vtmp+1)}, 4, {v(vtmp+2)}")
        for j in range(8):
            a(f"buffer_load_dwordx4 {v(vSt+4*j,4)}, {v(vtmp+2)}, {s(srdX,4)}, 0 offen offset:{j*128}")
        vPRow = V.alloc()
        a(f"v_mov_b32 {v(vPRow)}, {v(vtmp)}")
        a(f"{name}_np0:")
    opX.setup_dma(a, vlane, sW, vtmp, 1024, srowbase=sRow0)
    a(f"s_mul_i32 {s(sCol)}, {s(sTj)}, {NE*2}")
    opW.setup_dma(a, vlane, sW, vtmp, ldW, colbase_s=sCol)
    a(f"s_cmp_eq_u32 {s(sW)}, 3")
    a(f"s_cselect_b32 {s(sMask)}, 0xffffffff, 0xffffffff")
    a(f"s_cselect_b32 {s(sMask+1)}, 0xff, 0xffffffff")
    def ksets():
        return [f"s_mul_i32 {s(opW.s_k)}, {s(sKc)}, {64*ldW}", f"s_lshl_b32 {s(opX.s_k)}, {s(sKc)}, 7"]
    def kadv():
        return [f"s_add_u32 {s(sKc)}, {s(sKc)}, 1\ns_and_b32 {s(sKc)}, {s(sKc)}, 7\n" + "\n".join(ksets())]
    a(f"s_mov_b32 {s(sKc)}, {s(sC0)}")
    for l in ksets(): a(l)
    def dma(slot_off):
        w = opW.dma(srdW, slot_off); x = opX.dma(srdX, slot_off, masks={3: sMask})
        return x + w
    ndma = opW.nper + opX.nper
    for l in dma(0) + kadv(): a(l)
    stamp(a, 1)
    a(f"s_and_b32 {s(sWm)}, {s(sW)}, 1")
    a(f"s_lshr_b32 {s(sWn)}, {s(sW)}, 1")
    a(f"v_mov_b32 {v(vtmp+4)}, 0x3f803f80")
    for k in range(1, 4): a(f"v_mov_b32 {v(vtmp+4+k)}, 0x3f803f80")
    a(f"v_lshlrev_b32 {v(vtmp)}, 4, {v(vlane)}")
    a(f"s_mov_b64 exec, 0xffffff")
    for sl in range(NS):
        a(f"v_add_u32 {v(vtmp+1)}, {sl*slot + opW.bytes + 125*128}, {v(vtmp)}")
        a(f"ds_write_b128 {v(vtmp+1)}, {v(vtmp+4,4)}")
    a("s_mov_b64 exec, -1")
    for l in dma(slot) + kadv(): a(l)
    a(f"s_mul_i32 {s(sSeg)}, {s(sWm)}, {MT}")
    opW.setup_read(a, vlane, vtmp, sSeg, slot)
    vrow = V.alloc()
    a(f"v_and_b32 {v(vtmp)}, 31, {v(vlane)}")
    a(f"s_lshl_b32 s99, {s(sWn)}, 6")
    a(f"v_add_u32 {v(vrow)}, s99, {v(vtmp)}")
    opX.setup_read(a, vlane, vtmp, 0, vrow, slot)
    vFlag = V.alloc(4, 4); vZero = V.alloc(); vXS = [V.alloc(2, 2), V.alloc(2, 2)]; vXoff = V.alloc()
    a(f"v_mov_b32 {v(vZero)}, 0")
    a(f"s_lshl_b32 s99, {s(sTi)}, 7")
    a(f"v_add_u32 {v(vXoff)}, s99, {v(vrow)}")
    a(f"v_lshlrev_b32 {v(vXoff)}, 3, {v(vXoff)}")
    extra = {}; vm_extra = {}
    if typ == 'B':
        a(f"s_cmp_eq_u32 {s(sNidx)}, 2")
        a(f"s_cbranch_scc0 {name}_np1")
        a(f"s_waitcnt vmcnt({2*ndma})")
        sm, sq = vtmp, vtmp+1
        a(f"v_mov_b32 {v(sm)}, 0"); a(f"v_mov_b32 {v(sq)}, 0")
        a(f"v_mov_b32 {v(vtmp+2)}, 0"); a(f"v_mov_b32 {v(vtmp+3)}, 0")
        for d in range(32):
            r = vSt + d
            lo, hi = vtmp+4+2*(d&1), vtmp+5+2*(d&1)
            a(f"v_lshlrev_b32 {v(lo)}, 16, {v(r)}")
            a(f"v_and_b32 {v(hi)}, 0xffff0000, {v(r)}")
            a(f"v_pk_add_f32 {v(vtmp,2)}, {v(vtmp,2)}, {v(lo,2)}")
            a(f"v_pk_fma_f32 {v(vtmp+2,2)}, {v(lo,2)}, {v(lo,2)}, {v(vtmp+2,2)}")
        a(f"v_add_f32 {v(vtmp)}, {v(vtmp)}, {v(vtmp+1)}")
        a(f"v_add_f32 {v(vtmp+1)}, {v(vtmp+2)}, {v(vtmp+3)}")
        for dpp in ("quad_perm:[1,0,3,2]", "quad_perm:[2,3,0,1]", "row_half_mirror"):
            a("s_nop 1")
            a(f"v_add_f32_dpp {v(vtmp)}, {v(vtmp)}, {v(vtmp)} {dpp} row_mask:0xf bank_mask:0xf")
            a(f"v_add_f32_dpp {v(vtmp+1)}, {v(vtmp+1)}, {v(vtmp+1)} {dpp} row_mask:0xf bank_mask:0xf")
        a(f"v_mul_f32 {v(vtmp)}, {f2u(1/512)}, {v(vtmp)}")
        a(f"v_mul_f32 {v(vtmp+1)}, {f2u(1/512)}, {v(vtmp+1)}")
        a(f"v_fma_f32 {v(vtmp+1)}, -{v(vtmp)}, {v(vtmp)}, {v(vtmp+1)}")
        a(f"v_max_f32 {v(vtmp+1)}, 0, {v(vtmp+1)}")
        a(f"v_add_f32 {v(vtmp+1)}, {f2u(1e-5)}, {v(vtmp+1)}")
        a(f"v_rsq_f32 {v(vtmp+2)}, {v(vtmp+1)}")
        a("s_nop 0")
        a(f"v_mul_f32 {v(vtmp+3)}, {v(vtmp)}, {v(vtmp+2)}")
        a(f"s_lshl_b32 s99, {s(sTi)}, 7")
        a(f"v_add_u32 {v(vtmp+4)}, s99, {v(vPRow)}")
        a(f"v_lshlrev_b32 {v(vtmp+4)}, 3, {v(vtmp+4)}")
        a(f"v_and_b32 {v(vtmp+5)}, 7, {v(vlane)}")
        a(f"v_cmp_eq_u32 vcc, 0, {v(vtmp+5)}")
        a(f"v_mov_b32 {v(vtmp+6)}, 0x80000000")
        a("s_nop 0")
        a(f"v_cndmask_b32 {v(vtmp+4)}, {v(vtmp+6)}, {v(vtmp+4)}, vcc")
        a(f"buffer_store_dwordx2 {v(vtmp+2,2)}, {v(vtmp+4)}, {s(srdXS,4)}, 0 offen sc1")
        a(f"{name}_np1:")
        vFl = V.alloc(); vOne = V.alloc()
        a(f"s_lshl_b32 s99, {s(sTi)}, 2")
        a(f"s_add_u32 s99, s99, {s(sG)}")
        a(f"s_lshl_b32 s99, s99, 2")
        a(f"s_cmp_eq_u32 {s(sNidx)}, 2")
        a(f"s_cselect_b32 s99, s99, 0x80000000")
        a(f"s_cmp_eq_u32 {s(sW)}, 0")
        a(f"s_cselect_b32 s99, s99, 0x80000000")
        a(f"v_mov_b32 {v(vFl)}, s99")
        a(f"v_mov_b32 {v(vtmp)}, 0x80000000")
        a(f"v_cmp_eq_u32 vcc, 0, {v(vlane)}")
        a(f"v_mov_b32 {v(vOne)}, 1")
        a("s_nop 0")
        a(f"v_cndmask_b32 {v(vFl)}, {v(vtmp)}, {v(vFl)}, vcc")
        extra[(0, 3)] = [f"buffer_store_dword {v(vOne)}, {v(vFl)}, {s(srdF,4)}, 0 offen sc1"]
        vm_extra[1] = 1
    sFo = S.alloc()
    a(f"s_lshl_b32 {s(sFo)}, {s(sTi)}, 4")
    extra[(5, 3)] = extra.get((5, 3), []) + [f"buffer_load_dwordx4 {v(vFlag,4)}, {v(vZero)}, {s(srdF,4)}, {s(sFo)} offen sc1"]
    chk = "\n".join([
        f"v_and_b32 {v(vFlag)}, {v(vFlag)}, {v(vFlag+1)}",
        f"v_and_b32 {v(vFlag+2)}, {v(vFlag+2)}, {v(vFlag+3)}",
        f"v_and_b32 {v(vFlag)}, {v(vFlag)}, {v(vFlag+2)}",
        "s_nop 0",
        f"v_readfirstlane_b32 s99, {v(vFlag)}",
        "s_nop 3",
        "s_cmp_eq_u32 s99, 1",
        f"s_cbranch_scc0 {name}_spin",
        f"{name}_spun:",
        f"buffer_load_dwordx2 {v(vXS[0],2)}, {v(vXoff)}, {s(srdXS,4)}, 0 offen sc1",
        f"buffer_load_dwordx2 {v(vXS[1],2)}, {v(vXoff)}, {s(srdXS,4)}, 0 offen offset:256 sc1"])
    extra[(6, 3)] = [chk]
    a(f"s_waitcnt vmcnt({ndma}) lgkmcnt(0)")
    a("s_barrier")
    stamp(a, 2)
    def reads(sl, ks, st):
        o = []
        for nt in range(2): o += opX.read(fX(st, nt), sl, ks, tile_rows=32*nt)
        for mt in range(MT): o += opW.read(fW(st, mt), sl, mt, ks)
        return o
    def mfma(i, ks, st):
        return [f"v_mfma_f32_32x32x16_bf16 {v(A_(mt,nt),16)}, {v(fW(st,mt),4)}, {v(fX(st,nt),4)}, " + ("0" if (i == 0 and ks == 0) else v(A_(mt,nt),16))
                for mt in range(MT) for nt in range(2)]
    for l in reads(0, 0, 0): a(l)
    emit_main(a, 8, NS, slot, dma, ndma, kadv, reads, mfma, extra=extra, vm_extra=vm_extra)
    stamp(a, 3)
    t = vtmp
    a.c("column sums from the ones row (local row 125): waves wn==1, lanes 29/61, n-tile 1")
    a(f"v_lshrrev_b32 {v(t+5)}, 5, {v(vlane)}")
    a(f"v_lshlrev_b32 {v(t+5)}, 4, {v(t+5)}")
    a(f"s_mul_i32 s99, {s(sWm)}, {NE*2}")
    a(f"s_add_u32 s99, s99, {CS}")
    a(f"v_add_u32 {v(t+5)}, s99, {v(t+5)}")
    a("s_nop 7")
    a(f"s_cmp_eq_u32 {s(sWn)}, 1")
    a(f"s_cbranch_scc0 {name}_nocs")
    a(f"s_mov_b32 exec_lo, {1<<29}")
    a(f"s_mov_b32 exec_hi, {1<<29}")
    for mt in range(MT):
        for q in range(4): a(f"ds_write_b128 {v(t+5)}, {v(A_(mt,1)+4*q,4)} offset:{mt*128+q*32}")
    a("s_mov_b64 exec, -1")
    a(f"{name}_nocs:")
    a("s_waitcnt lgkmcnt(0)")
    a("s_barrier")
    vCS = frb
    for mt in range(MT):
        for q in range(4): a(f"ds_read_b128 {v(vCS+16*mt+4*q,4)}, {v(t+5)} offset:{mt*128+q*32}")
    RS = NE*2 + 16
    vStg = V.alloc()
    a(f"v_mul_u32_u24 {v(vStg)}, {RS}, {v(vrow)}")
    a(f"v_lshrrev_b32 {v(t)}, 5, {v(vlane)}")
    a(f"v_lshl_add_u32 {v(vStg)}, {v(t)}, 3, {v(vStg)}")
    a(f"s_mul_i32 s99, {s(sWm)}, {NE}")
    a(f"v_add_u32 {v(vStg)}, s99, {v(vStg)}")
    if typ == 'B':
        sC = S.alloc(6, 2)
        k1c = 2*0.7978845608028654*1.4426950408889634
        for i, val in enumerate([-k1c*0.044715, -k1c, 1.0]):
            a(f"s_mov_b32 {s(sC+2*i)}, {f2u(val)}"); a(f"s_mov_b32 {s(sC+2*i+1)}, {f2u(val)}")
        vG = [[V.alloc(2,2), V.alloc(2,2)] for _ in range(2)]
        for sl in range(2):
            for r in vG[sl]:
                a(f"v_mov_b32 {v(r)}, 0"); a(f"v_mov_b32 {v(r+1)}, 0")
    vT = V.alloc(16, 2); vP = V.alloc(8, 2)
    a("s_waitcnt vmcnt(0) lgkmcnt(0)")
    for mt in range(MT):
        for nt in range(2):
            ac = A_(mt, nt)
            for pr in range(8):
                r = ac + 2*pr; c = vCS + 16*mt + 2*pr; tt = vT + 2*pr
                a(f"v_pk_mul_f32 {v(tt,2)}, {v(c,2)}, {v(vXS[nt],2)} op_sel:[0,1] op_sel_hi:[1,1]")
            for pr in range(8):
                r = ac + 2*pr; tt = vT + 2*pr
                a(f"v_pk_fma_f32 {v(r,2)}, {v(r,2)}, {v(vXS[nt],2)}, {v(tt,2)} op_sel_hi:[1,0,1] neg_lo:[0,0,1] neg_hi:[0,0,1]")
            if typ == 'B':
                P = range(8)
                R_ = lambda pr: ac + 2*pr
                T_ = lambda pr: vT + 2*pr
                for pr in P: a(f"v_pk_mul_f32 {v(T_(pr),2)}, {v(R_(pr),2)}, {v(R_(pr),2)}")
                for pr in P: a(f"v_pk_mul_f32 {v(T_(pr),2)}, {v(T_(pr),2)}, {s(sC,2)}")
                for pr in P: a(f"v_pk_add_f32 {v(T_(pr),2)}, {v(T_(pr),2)}, {s(sC+2,2)}")
                for pr in P: a(f"v_pk_mul_f32 {v(T_(pr),2)}, {v(T_(pr),2)}, {v(R_(pr),2)}")
                for pr in P:
                    a(f"v_exp_f32 {v(T_(pr))}, {v(T_(pr))}"); a(f"v_exp_f32 {v(T_(pr)+1)}, {v(T_(pr)+1)}")
                for pr in P: a(f"v_pk_add_f32 {v(T_(pr),2)}, {v(T_(pr),2)}, {s(sC+4,2)}")
                for pr in P:
                    a(f"v_rcp_f32 {v(T_(pr))}, {v(T_(pr))}"); a(f"v_rcp_f32 {v(T_(pr)+1)}, {v(T_(pr)+1)}")
                for pr in P: a(f"v_pk_mul_f32 {v(R_(pr),2)}, {v(R_(pr),2)}, {v(T_(pr),2)}")
                for pr in P:
                    a(f"v_pk_add_f32 {v(vG[nt][0],2)}, {v(vG[nt][0],2)}, {v(R_(pr),2)}")
                    a(f"v_pk_fma_f32 {v(vG[nt][1],2)}, {v(R_(pr),2)}, {v(R_(pr),2)}, {v(vG[nt][1],2)}")
            for q in range(4):
                pk = vP + 2*q
                a(f"v_cvt_pk_bf16_f32 {v(pk)}, {v(ac+4*q)}, {v(ac+4*q+1)}")
                a(f"v_cvt_pk_bf16_f32 {v(pk+1)}, {v(ac+4*q+2)}, {v(ac+4*q+3)}")
            for q in range(4):
                a(f"ds_write_b64 {v(vStg)}, {v(vP+2*q,2)} offset:{nt*32*RS + mt*64 + q*16}")
    stamp(a, 4)
    a("s_waitcnt lgkmcnt(0)")
    a("s_barrier")
    colbase = 0 if typ == 'A' else 1536
    sLim = S.alloc(); sBase = S.alloc()
    a(f"s_mul_i32 {s(sCol)}, {s(sTj)}, {NE*2}")
    a(f"s_mul_i32 {s(sBase)}, {s(sRow0)}, {Y_LD}")
    a(f"s_add_u32 {s(sBase)}, {s(sBase)}, {s(sCol)}")
    a(f"s_add_u32 {s(sBase)}, {s(sBase)}, {colbase*2}")
    store_rows(a, V, vlane, sW, t, NE*2, RS, 0, 32, Y_LD, srdY, sBase, frb, 8, sLim, rowlimit=125, sf=sf)
    if typ == 'B':
        a.c("g LN partial stats (tiles 4..7)")
        a(f"s_cmp_ge_u32 {s(sTj)}, 4")
        a(f"s_cbranch_scc0 {name}_end")
        a(f"s_sub_u32 s99, {s(sTj)}, 4")
        a(f"s_lshl_b32 s99, s99, 1")
        a(f"s_add_u32 s99, s99, {s(sWm)}")
        a(f"s_lshl_b32 {s(sCol)}, s99, 14")
        for nt in range(2):
            a(f"v_add_f32 {v(t)}, {v(vG[nt][0])}, {v(vG[nt][0]+1)}")
            a(f"v_add_f32 {v(t+1)}, {v(vG[nt][1])}, {v(vG[nt][1]+1)}")
            halfsum(a, t, t+2); halfsum(a, t+1, t+3)
            a(f"v_add_u32 {v(t+5)}, {32*nt}, {v(vrow)}")
            a(f"v_add_u32 {v(t+4)}, {s(sRow0)}, {v(t+5)}")
            a(f"v_lshlrev_b32 {v(t+4)}, 3, {v(t+4)}")
            a(f"v_cmp_gt_u32 vcc, 125, {v(t+5)}")
            a(f"v_mov_b32 {v(t+6)}, 0x80000000")
            a("s_nop 0")
            a(f"v_cndmask_b32 {v(t+4)}, {v(t+6)}, {v(t+4)}, vcc")
            a(f"s_mov_b32 exec_hi, 0")
            a(f"buffer_store_dwordx2 {v(t,2)}, {v(t+4)}, {s(srdG,4)}, {s(sCol)} offen {sf}")
            a(f"s_mov_b32 exec_hi, -1")
            a("s_nop 1")
    a(f"{name}_end:")
    stamp(a, 5)
    if gcore.PROF:
        a("s_waitcnt vmcnt(0)")
        stamp(a, 6)
        prof_flush(a, 30, 0, 7, vtmp)
    a("s_endpgm")
    a(f"{name}_spin:")
    a(f"s_mov_b32 s98, 0")
    a(f"{name}_spin1:")
    a(f"s_sleep 2")
    a(f"buffer_load_dwordx4 {v(vFlag,4)}, {v(vZero)}, {s(srdF,4)}, {s(sFo)} offen sc1")
    a("s_waitcnt vmcnt(0)")
    a(f"v_and_b32 {v(vFlag)}, {v(vFlag)}, {v(vFlag+1)}")
    a(f"v_and_b32 {v(vFlag+2)}, {v(vFlag+2)}, {v(vFlag+3)}")
    a(f"v_and_b32 {v(vFlag)}, {v(vFlag)}, {v(vFlag+2)}")
    a("s_nop 0")
    a(f"v_readfirstlane_b32 s99, {v(vFlag)}")
    a("s_add_u32 s98, s98, 1")
    a("s_nop 3")
    a("s_cmp_eq_u32 s99, 1")
    a(f"s_cbranch_scc1 {name}_spun")
    a("s_cmp_lt_u32 s98, 0x40000")
    a(f"s_cbranch_scc1 {name}_spin1")
    a(f"s_branch {name}_spun")
    return V.hi, lds_total

def k1(sf=""):
    a = Asm()
    stamp(a, 0)
    a("""
    s_cmp_ge_u32 s2, 256
    s_cbranch_scc1 k1_exit
    s_load_dwordx4 s[4:7], s[0:1], 0          ; x, wqkv
    s_load_dwordx2 s[28:29], s[0:1], 24       ; win
    s_load_dwordx4 s[40:43], s[0:1], 72
    v_lshrrev_b32 v1, 6, v0
    s_and_b32 s32, s2, 7                      ; xcd
    s_lshr_b32 s33, s2, 3                     ; li
    v_readfirstlane_b32 s20, v1               ; wave
    s_and_b32 s34, s33, 7
    s_and_b32 s21, s32, 1
    s_lshl_b32 s21, s21, 3
    s_add_u32 s21, s21, s34                   ; ti
    s_lshr_b32 s35, s33, 3                    ; nidx 0..3
    s_lshl_b32 s23, s35, 1
    s_add_u32 s23, s23, s34
    s_and_b32 s23, s23, 7                     ; c0
    s_lshr_b32 s36, s32, 1                    ; g
    s_lshl_b32 s22, s36, 1
    s_and_b32 s37, s35, 1
    s_add_u32 s22, s22, s37
    s_waitcnt lgkmcnt(0)
    s_mov_b32 s30, s42
    s_mov_b32 s31, s43
    """)
    srd_from(a, 8, 4, SIZES[X])
    srd_from(a, 16, 30, Y_BYTES, O_Y)
    srd_from(a, 24, 30, GS_BYTES, O_GS)
    srd_from(a, 44, 30, XS_BYTES, O_XS)
    srd_from(a, 48, 40, 256)
    a("s_cmp_ge_u32 s35, 2")
    a("s_cbranch_scc1 k1_typeB")
    srd_from(a, 12, 6, SIZES[WQKV])
    va, la = k1_type(a, 'A', 52, sf)
    a("k1_typeB:")
    srd_from(a, 12, 28, SIZES[WIN])
    vb, lb = k1_type(a, 'B', 52, sf)
    a("k1_exit:")
    a("s_endpgm")
    return ("k1_kernel", a.text(), max(va, vb), 100, None), max(la, lb)

if __name__ == "__main__":
    import build, sys
    gcore.PROF = "prof" in sys.argv
    for o in sys.argv[1:]: OPT[o] = True
    k, lds = k1(sf=" ".join(x for x in sys.argv[1:] if x in ("sc1","sc0","nt")))
    print("vgpr", k[2], "lds", lds)
    open("t_k1.s","w").write(make_file([("k1_kernel",256,256,lds)], [k]))
    build.build("t_k1.s","t_k1.co")
```

```python
from gcore import *
import gcore
from gemm2 import *
from conv import *
from k1 import srd_from, halfsum, O_Y, Y_LD, O_GS, GS_BYTES

O_P  = 0xB00000;  P_LD = 2176;  P_BYTES = 2*1024*P_LD
O_ML = 0xF80000;  ML_BYTES = 16*2048*8
O_VT = 0x1000000; VT_LD = 2176; VT_BYTES = 2*512*VT_LD
O_Z  = 0x1300000; Z_LD = 1024;  Z_BYTES = 2000*Z_LD
CSC = 512**-0.5 * 1.4426950408889634

def k2_S(a, S0, sf):
    name = "k2S"
    NS = 3
    V = Regs(1, 256, "v"); S = Regs(S0, 76, "s")
    vlane = V.alloc(); vtmp = V.alloc(8, 4); t = vtmp
    opK = OpK(128, 0); opQ = OpK(128, opK.bytes)
    slot = opK.bytes + opQ.bytes
    opK.alloc(V, S, NS); opQ.alloc(V, S, NS)
    acc = V.alloc(64, 4); frb = V.alloc(32, 4); fr = [frb, frb+16]
    A_ = lambda mt, nt: acc + (mt*2+nt)*16
    sW, sB, sTq, sTs, sC0 = 20, 21, 22, 23, 24
    srdY, srdP, srdML = 8, 12, 16
    sWm = S.alloc(); sWn = S.alloc(); sKc = S.alloc(); sR = S.alloc(); sT = S.alloc(); sBase = S.alloc()
    a(f"{name}_start:")
    a(f"v_and_b32 {v(vlane)}, 63, v0")
    a(f"s_lshl_b32 {s(sR)}, {s(sTs)}, 7")
    opK.setup_dma(a, vlane, sW, vtmp, Y_LD, srowbase=sR)
    a(f"s_lshl_b32 {s(sR)}, {s(sTq)}, 7")
    opQ.setup_dma(a, vlane, sW, vtmp, Y_LD, srowbase=sR)
    def ksets():
        return [f"s_lshl_b32 {s(opQ.s_k)}, {s(sKc)}, 7", f"s_add_u32 {s(opK.s_k)}, {s(opQ.s_k)}, 1024"]
    def kadv():
        return [f"s_add_u32 {s(sKc)}, {s(sKc)}, 1\ns_and_b32 {s(sKc)}, {s(sKc)}, 7\n" + "\n".join(ksets())]
    a(f"s_mov_b32 {s(sKc)}, {s(sC0)}")
    for l in ksets(): a(l)
    def dma(so): return opK.dma(srdY, so) + opQ.dma(srdY, so)
    ndma = 8
    for l in dma(0) + kadv(): a(l)
    stamp(a, 1)
    a(f"s_and_b32 {s(sWm)}, {s(sW)}, 1")
    a(f"s_lshr_b32 {s(sWn)}, {s(sW)}, 1")
    vrowK = V.alloc(); vrowQ = V.alloc()
    a(f"v_and_b32 {v(t)}, 31, {v(vlane)}")
    a(f"s_lshl_b32 s99, {s(sWm)}, 6")
    a(f"v_add_u32 {v(vrowK)}, s99, {v(t)}")
    a(f"s_lshl_b32 s99, {s(sWn)}, 6")
    a(f"v_add_u32 {v(vrowQ)}, s99, {v(t)}")
    opK.setup_read(a, vlane, vtmp, 0, vrowK, slot)
    for l in dma(slot) + kadv(): a(l)
    opQ.setup_read(a, vlane, vtmp, 0, vrowQ, slot)
    a(f"s_waitcnt vmcnt({ndma}) lgkmcnt(0)")
    a("s_barrier")
    stamp(a, 2)
    def reads(sl, ks, st):
        o = []
        for i in range(2): o += opK.read(fr[st]+4*i, sl, ks, tile_rows=32*i)
        for i in range(2): o += opQ.read(fr[st]+8+4*i, sl, ks, tile_rows=32*i)
        return o
    def mfma(i, ks, st):
        return [f"v_mfma_f32_32x32x16_bf16 {v(A_(mt,nt),16)}, {v(fr[st]+4*mt,4)}, {v(fr[st]+8+4*nt,4)}, " + ("0" if (i == 0 and ks == 0) else v(A_(mt,nt),16))
                for mt in range(2) for nt in range(2)]
    for l in reads(0, 0, 0): a(l)
    emit_main(a, 8, NS, slot, dma, ndma, kadv, reads, mfma)
    stamp(a, 3)
    a.c("softmax epilogue: chunk of 64 keys per wave")
    a("s_nop 7"); a("s_nop 7")
    a(f"s_cmp_eq_u32 {s(sTs)}, 7")
    a(f"s_cbranch_scc0 {name}_nomask")
    a(f"s_cmp_eq_u32 {s(sWm)}, 1")
    a(f"s_cbranch_scc0 {name}_nomask")
    for nt in range(2):
        for r in range(4, 16): a(f"v_mov_b32 {v(A_(1,nt)+r)}, 0xff800000")
    a(f"{name}_nomask:")
    RS = 272
    vStg = V.alloc(); vM = V.alloc(4, 2); vL = V.alloc(4, 2); vP = V.alloc(8, 2)
    sC = S.alloc(2, 2)
    a(f"s_mov_b32 {s(sC)}, {f2u(CSC)}"); a(f"s_mov_b32 {s(sC+1)}, {f2u(CSC)}")
    a(f"v_mul_u32_u24 {v(vStg)}, {RS}, {v(vrowQ)}")
    a(f"v_lshrrev_b32 {v(t)}, 5, {v(vlane)}")
    a(f"v_lshl_add_u32 {v(vStg)}, {v(t)}, 3, {v(vStg)}")
    a(f"s_lshl_b32 s99, {s(sWm)}, 7")
    a(f"v_add_u32 {v(vStg)}, s99, {v(vStg)}")
    a("s_barrier")
    for nt in range(2):
        regs = [A_(mt, nt) + r for mt in range(2) for r in range(16)]
        m = vM + 2*nt
        a(f"v_max3_f32 {v(m)}, {v(regs[0])}, {v(regs[1])}, {v(regs[2])}")
        a(f"v_max3_f32 {v(m+1)}, {v(regs[3])}, {v(regs[4])}, {v(regs[5])}")
        k = 6
        tog = 0
        while k < 32:
            a(f"v_max3_f32 {v(m+tog)}, {v(m+tog)}, {v(regs[k])}, {v(regs[k+1])}")
            k += 2; tog ^= 1
        a(f"v_max_f32 {v(m)}, {v(m)}, {v(m+1)}")
        a(f"v_mov_b32 {v(t)}, {v(m)}")
        a("s_nop 1")
        a(f"v_permlane32_swap_b32 {v(m)}, {v(t)}")
        a("s_nop 1")
        a(f"v_max_f32 {v(m)}, {v(m)}, {v(t)}")
        a(f"v_mul_f32 {v(m)}, {f2u(CSC)}, {v(m)}")
        a(f"v_sub_f32 {v(m+1)}, 0, {v(m)}")
        l = vL + 2*nt
        a(f"v_mov_b32 {v(l)}, 0"); a(f"v_mov_b32 {v(l+1)}, 0")
        for mt in range(2):
            ac = A_(mt, nt)
            for pr in range(8):
                a(f"v_pk_fma_f32 {v(ac+2*pr,2)}, {v(ac+2*pr,2)}, {s(sC,2)}, {v(m,2)} op_sel:[0,0,1] op_sel_hi:[1,1,1]")
            for r in range(16): a(f"v_exp_f32 {v(ac+r)}, {v(ac+r)}")
            for pr in range(8): a(f"v_pk_add_f32 {v(l,2)}, {v(l,2)}, {v(ac+2*pr,2)}")
            for q in range(4):
                a(f"v_cvt_pk_bf16_f32 {v(vP+2*q)}, {v(ac+4*q)}, {v(ac+4*q+1)}")
                a(f"v_cvt_pk_bf16_f32 {v(vP+2*q+1)}, {v(ac+4*q+2)}, {v(ac+4*q+3)}")
            for q in range(4):
                a(f"ds_write_b64 {v(vStg)}, {v(vP+2*q,2)} offset:{nt*32*RS + mt*64 + q*16}")
        a(f"v_add_f32 {v(l)}, {v(l)}, {v(l+1)}")
        halfsum(a, l, t)
        a(f"v_mov_b32 {v(m+1)}, {v(l)}")
    stamp(a, 4)
    a(f"s_lshl_b32 s99, {s(sTs)}, 1")
    a(f"s_add_u32 s99, s99, {s(sWm)}")
    a(f"s_lshl_b32 {s(sT)}, s99, 14")
    a(f"s_lshl_b32 s99, {s(sB)}, 10")
    a(f"s_lshl_b32 s98, {s(sTq)}, 7")
    a(f"s_add_u32 s99, s99, s98")
    a(f"v_add_u32 {v(t)}, s99, {v(vrowQ)}")
    a(f"v_lshlrev_b32 {v(t)}, 3, {v(t)}")
    a("s_mov_b32 exec_hi, 0")
    for nt in range(2):
        a(f"buffer_store_dwordx2 {v(vM+2*nt,2)}, {v(t)}, {s(srdML,4)}, {s(sT)} offen offset:{nt*256} {sf}")
    a("s_mov_b32 exec_hi, -1")
    a("s_waitcnt lgkmcnt(0)")
    a("s_barrier")
    a(f"s_lshl_b32 s99, {s(sB)}, 10")
    a(f"s_lshl_b32 s98, {s(sTq)}, 7")
    a(f"s_add_u32 s99, s99, s98")
    a(f"s_mul_i32 {s(sBase)}, s99, {P_LD}")
    a(f"s_lshl_b32 s98, {s(sTs)}, 8")
    a(f"s_add_u32 {s(sBase)}, {s(sBase)}, s98")
    store_rows(a, V, vlane, sW, t, 256, RS, 0, 32, P_LD, srdP, sBase, frb, 8, sT, sf=sf)
    stamp(a, 5)
    if gcore.PROF:
        a("s_waitcnt vmcnt(0)"); stamp(a, 6); prof_flush(a, 30, 1, 7, vtmp)
    a("s_endpgm")
    return V.hi, NS*slot

def k2_V(a, S0, sf):
    name = "k2V"
    NS = 3
    V = Regs(1, 256, "v"); S = Regs(S0, 76, "s")
    vlane = V.alloc(); vtmp = V.alloc(8, 4); t = vtmp
    opV = OpK(128, 0); opW = OpT(64, opV.bytes)
    slot = opV.bytes + opW.bytes
    GT = NS*slot; TB = GT + 64*384; OUT = TB + TB_BYTES; ST = OUT + 128*128
    lds_total = ST + 2048
    sW, sB, sTs, sTc, sC0 = 20, 21, 23, 22, 24
    srdY, srdWo, srdVT, srdGS, srdDW, srdZ = 8, 44, 48, 52, 56, 60
    S.n = max(S.n, 64)
    opV.alloc(V, S, NS); opW.alloc(V, S, NS, 1)
    sWm = S.alloc(); sWn = S.alloc(); sKc = S.alloc(); sR = S.alloc(); sT = S.alloc(); sBase = S.alloc(); sT0 = S.alloc()
    a(f"{name}_start:")
    a(f"v_and_b32 {v(vlane)}, 63, v0")
    a(f"s_lshl_b32 {s(sT0)}, {s(sTs)}, 7")
    mk = V.mark()
    vGSd = V.alloc(16, 2); vTap = V.alloc(8); vG = V.alloc(20); vU = V.alloc(16, 4); vGo = V.alloc(); vUo = V.alloc()
    a(f"s_sub_u32 s99, {s(sT0)}, 16")
    a(f"v_add_u32 {v(t)}, s99, v0")
    a(f"v_max_i32 {v(t+1)}, 0, {v(t)}")
    a(f"v_min_i32 {v(t+1)}, 999, {v(t+1)}")
    a(f"s_mul_i32 s99, {s(sB)}, 1000")
    a(f"v_add_u32 {v(t+1)}, s99, {v(t+1)}")
    a(f"v_lshlrev_b32 {v(t+1)}, 3, {v(t+1)}")
    for k in range(8):
        a(f"s_mov_b32 s99, {k*16384}")
        a(f"buffer_load_dwordx2 {v(vGSd+2*k,2)}, {v(t+1)}, {s(srdGS,4)}, s99 offen")
    vValid = V.alloc()
    a(f"v_cmp_gt_u32 vcc, 1000, {v(t)}")
    a(f"v_mov_b32 {v(t+2)}, 0")
    a(f"v_mov_b32 {v(t+3)}, 1.0")
    a(f"v_cndmask_b32 {v(vValid)}, {v(t+2)}, {v(t+3)}, vcc")
    a(f"s_lshl_b32 {s(sT)}, {s(sTc)}, 7")
    taps_load(a, 0, t, vTap, srdDW, sT, 1024)
    a(f"v_lshrrev_b32 {v(t)}, 5, {v(vlane)}")
    a(f"v_lshlrev_b32 {v(t)}, 2, {v(t)}")
    a(f"s_lshl_b32 s99, {s(sW)}, 3")
    a(f"s_add_u32 s99, s99, {s(sT0)}")
    a(f"s_sub_u32 s99, s99, 16")
    a(f"v_add_u32 {v(t)}, s99, {v(t)}")
    a(f"s_mov_b32 s99, {Y_LD}")
    a(f"v_mul_lo_u32 {v(t)}, {v(t)}, s99")
    a(f"v_and_b32 {v(t+1)}, 31, {v(vlane)}")
    a(f"v_lshl_add_u32 {v(t)}, {v(t+1)}, 2, {v(t)}")
    a(f"s_add_u32 s99, {s(sT)}, 4096")
    a(f"v_add_u32 {v(vGo)}, s99, {v(t)}")
    for gi in range(5):
        for r in range(4):
            a(f"v_add_u32 {v(t)}, {(32*gi + r)*Y_LD}, {v(vGo)}")
            a(f"buffer_load_dword {v(vG+4*gi+r)}, {v(t)}, {s(srdY,4)}, 0 offen")
    a(f"v_lshrrev_b32 {v(t)}, 3, v0")
    a(f"v_add_u32 {v(t)}, {s(sT0)}, {v(t)}")
    a(f"v_mul_u32_u24 {v(t)}, {Y_LD}, {v(t)}")
    a(f"v_and_b32 {v(t+1)}, 7, v0")
    a(f"v_lshl_add_u32 {v(t)}, {v(t+1)}, 4, {v(t)}")
    a(f"s_add_u32 s99, {s(sT)}, 3072")
    a(f"v_add_u32 {v(vUo)}, s99, {v(t)}")
    for i in range(4):
        a(f"s_mov_b32 s99, {32*i*Y_LD}")
        a(f"buffer_load_dwordx4 {v(vU+4*i,4)}, {v(vUo)}, {s(srdY,4)}, s99 offen")
    nconv = 8 + 8 + 20 + 4
    a(f"s_lshl_b32 {s(sR)}, {s(sTs)}, 7")
    opV.setup_dma(a, vlane, sW, vtmp, Y_LD, srowbase=sR)
    opW.setup_dma(a, vlane, sW, vtmp, 1024, colbase_s=sT)
    def ksets():
        return [f"s_lshl_b32 {s(opV.s_k)}, {s(sKc)}, 7\ns_add_u32 {s(opV.s_k)}, {s(opV.s_k)}, 2048", f"s_lshl_b32 {s(opW.s_k)}, {s(sKc)}, 16"]
    def kadv():
        return [f"s_add_u32 {s(sKc)}, {s(sKc)}, 1\ns_and_b32 {s(sKc)}, {s(sKc)}, 7\n" + "\n".join(ksets())]
    a(f"s_mov_b32 {s(sKc)}, {s(sC0)}")
    for l in ksets(): a(l)
    def dma(so): return opV.dma(srdY, so) + opW.dma(srdWo, so)
    ndma = opV.nper + opW.nper
    for l in dma(0) + kadv() + dma(slot) + kadv(): a(l)
    stamp(a, 1)
    vz = V.alloc(4, 4)
    zero_lds(a, 0, vz, GT, 64*384 + TB_BYTES, t)
    a(f"s_waitcnt vmcnt({2*ndma + 20 + 4 + 8})")
    a(f"v_add_f32 {v(Vs:=t)}, {v(vGSd)}, {v(vGSd+2)}")
    a(f"v_add_f32 {v(t+1)}, {v(vGSd+1)}, {v(vGSd+3)}")
    for k in range(2, 8):
        a(f"v_add_f32 {v(t)}, {v(t)}, {v(vGSd+2*k)}")
        a(f"v_add_f32 {v(t+1)}, {v(t+1)}, {v(vGSd+2*k+1)}")
    a(f"v_mul_f32 {v(t)}, {f2u(1/512)}, {v(t)}")
    a(f"v_mul_f32 {v(t+1)}, {f2u(1/512)}, {v(t+1)}")
    a(f"v_fma_f32 {v(t+1)}, -{v(t)}, {v(t)}, {v(t+1)}")
    a(f"v_max_f32 {v(t+1)}, 0, {v(t+1)}")
    a(f"v_add_f32 {v(t+1)}, {f2u(1e-5)}, {v(t+1)}")
    a(f"v_rsq_f32 {v(t+2)}, {v(t+1)}")
    a("s_nop 0")
    a(f"v_mul_f32 {v(t+2)}, {v(t+2)}, {v(vValid)}")
    a(f"v_mul_f32 {v(t+3)}, -{v(t)}, {v(t+2)}")
    a(f"v_lshlrev_b32 {v(t+4)}, 3, v0")
    a(f"v_add_u32 {v(t+4)}, {ST}, {v(t+4)}")
    a(f"ds_write_b64 {v(t+4)}, {v(t+2,2)}")
    a("s_waitcnt lgkmcnt(0)")
    a("s_barrier")
    a(f"s_waitcnt vmcnt({2*ndma + 20 + 4})")
    taps_write(a, 0, t, vTap, TB)
    vAB = V.alloc(8, 4); vX = V.alloc(8, 2); vW = [V.alloc(), V.alloc()]; vSt = V.alloc(); vPk = V.alloc(4, 2)
    a(f"v_lshrrev_b32 {v(t)}, 5, {v(vlane)}")
    a(f"s_lshl_b32 s99, {s(sW)}, 6")
    a(f"v_lshl_add_u32 {v(vSt)}, {v(t)}, 5, s99")
    a(f"v_add_u32 {v(vSt)}, {ST}, {v(vSt)}")
    a(f"v_and_b32 {v(t+1)}, 31, {v(vlane)}")
    a(f"v_and_b32 {v(t+2)}, 7, {v(t+1)}")
    a(f"v_xor_b32 {v(t+2)}, {s(sW)}, {v(t+2)}")
    a(f"v_mul_u32_u24 {v(t+1)}, 768, {v(t+1)}")
    a(f"v_lshl_add_u32 {v(t+1)}, {v(t)}, 3, {v(t+1)}")
    a(f"v_add_u32 {v(t+1)}, {GT}, {v(t+1)}")
    a(f"v_lshl_add_u32 {v(vW[0])}, {v(t+2)}, 4, {v(t+1)}")
    a(f"v_xor_b32 {v(t+2)}, 4, {v(t+2)}")
    a(f"v_lshl_add_u32 {v(vW[1])}, {v(t+2)}, 4, {v(t+1)}")
    a(f"s_waitcnt vmcnt({2*ndma + 4})")
    for gi in range(5):
        a(f"ds_read_b128 {v(vAB,4)}, {v(vSt)} offset:{gi*256}")
        a(f"ds_read_b128 {v(vAB+4,4)}, {v(vSt)} offset:{gi*256+16}")
        for r in range(4):
            a(f"v_lshlrev_b32 {v(vX+2*r)}, 16, {v(vG+4*gi+r)}")
            a(f"v_and_b32 {v(vX+2*r+1)}, 0xffff0000, {v(vG+4*gi+r)}")
        a("s_waitcnt lgkmcnt(0)")
        for r in range(4):
            a(f"v_pk_fma_f32 {v(vX+2*r,2)}, {v(vX+2*r,2)}, {v(vAB+2*r,2)}, {v(vAB+2*r,2)} op_sel:[0,0,1] op_sel_hi:[1,0,1]")
        a(f"v_cvt_pk_bf16_f32 {v(vPk)}, {v(vX)}, {v(vX+2)}")
        a(f"v_cvt_pk_bf16_f32 {v(vPk+1)}, {v(vX+4)}, {v(vX+6)}")
        a(f"v_cvt_pk_bf16_f32 {v(vPk+2)}, {v(vX+1)}, {v(vX+3)}")
        a(f"v_cvt_pk_bf16_f32 {v(vPk+3)}, {v(vX+5)}, {v(vX+7)}")
        a(f"ds_write_b64 {v(vW[gi&1])}, {v(vPk,2)} offset:{(gi>>1)*128}")
        a(f"ds_write_b64 {v(vW[gi&1])}, {v(vPk+2,2)} offset:{(gi>>1)*128 + 384}")
    cv = Conv(V, GT, 384, TB, OUT, residual=False)
    cv.setup(a, vlane, sW, t)
    a("s_waitcnt lgkmcnt(0)")
    a("s_barrier")
    cv.emit(a, 8)
    a("s_waitcnt lgkmcnt(0)")
    a("s_barrier")
    vGc = V.alloc(16, 4); vRo = V.alloc(); vZo = V.alloc(); vA = V.alloc(4, 2); vB = V.alloc(4, 2)
    a(f"v_lshrrev_b32 {v(t)}, 3, v0")
    a(f"v_and_b32 {v(t+1)}, 7, v0")
    a(f"v_lshrrev_b32 {v(t+2)}, 4, {v(t)}")
    a(f"v_add_u32 {v(t+3)}, {s(sT0)}, {v(t)}")
    a(f"v_lshlrev_b32 {v(t+3)}, 10, {v(t+3)}")
    a(f"v_lshl_add_u32 {v(t+3)}, {v(t+1)}, 4, {v(t+3)}")
    a(f"v_add_u32 {v(vZo)}, {s(sT)}, {v(t+3)}")
    for i in range(4):
        a(f"v_add_u32 {v(t+3)}, {2*i}, {v(t+2)}")
        a(f"v_xor_b32 {v(t+3)}, {v(t+3)}, {v(t+1)}")
        a(f"v_lshlrev_b32 {v(t+3)}, 4, {v(t+3)}")
        a(f"v_lshl_add_u32 {v(t+3)}, {v(t)}, 7, {v(t+3)}")
        a(f"v_add_u32 {v(t+3)}, {OUT + i*32*128}, {v(t+3)}")
        a(f"ds_read_b128 {v(vGc+4*i,4)}, {v(t+3)}")
    a(f"s_waitcnt vmcnt({2*ndma}) lgkmcnt(0)")
    for i in range(4):
        for d in range(4):
            g_, u_ = vGc+4*i+d, vU+4*i+d
            a(f"v_lshlrev_b32 {v(vA)}, 16, {v(g_)}")
            a(f"v_and_b32 {v(vA+1)}, 0xffff0000, {v(g_)}")
            a(f"v_lshlrev_b32 {v(vB)}, 16, {v(u_)}")
            a(f"v_and_b32 {v(vB+1)}, 0xffff0000, {v(u_)}")
            a(f"v_pk_mul_f32 {v(vA,2)}, {v(vA,2)}, {v(vB,2)}")
            a(f"v_cvt_pk_bf16_f32 {v(g_)}, {v(vA)}, {v(vA+1)}")
        a(f"s_mov_b32 s99, {32*i*Z_LD}")
        a(f"buffer_store_dwordx4 {v(vGc+4*i,4)}, {v(vZo)}, {s(srdZ,4)}, s99 offen {sf}")
    stamp(a, 2)
    V.release(mk)
    acc = V.alloc(32, 4); frb = V.alloc(32, 4); fr = [frb, frb+12]
    A_ = lambda mt: acc + mt*16
    a(f"s_and_b32 {s(sWm)}, {s(sW)}, 1")
    a(f"s_lshr_b32 {s(sWn)}, {s(sW)}, 1")
    vrowV = V.alloc()
    a(f"v_and_b32 {v(t)}, 31, {v(vlane)}")
    a(f"s_lshl_b32 s99, {s(sWm)}, 6")
    a(f"v_add_u32 {v(vrowV)}, s99, {v(t)}")
    opV.setup_read(a, vlane, vtmp, 0, vrowV, slot)
    opW.setup_read(a, vlane, vtmp, sWn, slot)
    a(f"s_waitcnt vmcnt({ndma + 4}) lgkmcnt(0)")
    a("s_barrier")
    def reads(sl, ks, st):
        o = []
        for i in range(2): o += opV.read(fr[st]+4*i, sl, ks, tile_rows=32*i)
        o += opW.read(fr[st]+8, sl, 0, ks)
        return o
    def mfma(i, ks, st):
        return [f"v_mfma_f32_32x32x16_bf16 {v(A_(mt),16)}, {v(fr[st]+4*mt,4)}, {v(fr[st]+8,4)}, " + ("0" if (i == 0 and ks == 0) else v(A_(mt),16))
                for mt in range(2)]
    for l in reads(0, 0, 0): a(l)
    emit_main(a, 8, NS, slot, dma, ndma, kadv, reads, mfma)
    stamp(a, 3)
    RS = 272
    vStg = V.alloc(); vP = V.alloc(8, 2)
    a(f"v_and_b32 {v(t)}, 31, {v(vlane)}")
    a(f"s_lshl_b32 s99, {s(sWn)}, 5")
    a(f"v_add_u32 {v(t)}, s99, {v(t)}")
    a(f"v_mul_u32_u24 {v(vStg)}, {RS}, {v(t)}")
    a(f"v_lshrrev_b32 {v(t)}, 5, {v(vlane)}")
    a(f"v_lshl_add_u32 {v(vStg)}, {v(t)}, 3, {v(vStg)}")
    a(f"s_lshl_b32 s99, {s(sWm)}, 7")
    a(f"v_add_u32 {v(vStg)}, s99, {v(vStg)}")
    a("s_nop 7")
    a("s_barrier")
    for mt in range(2):
        ac = A_(mt)
        for q in range(4):
            a(f"v_cvt_pk_bf16_f32 {v(vP+2*q)}, {v(ac+4*q)}, {v(ac+4*q+1)}")
            a(f"v_cvt_pk_bf16_f32 {v(vP+2*q+1)}, {v(ac+4*q+2)}, {v(ac+4*q+3)}")
        for q in range(4):
            a(f"ds_write_b64 {v(vStg)}, {v(vP+2*q,2)} offset:{mt*64 + q*16}")
    stamp(a, 4)
    a("s_waitcnt lgkmcnt(0)")
    a("s_barrier")
    a(f"s_lshl_b32 s99, {s(sB)}, 9")
    a(f"s_lshl_b32 s98, {s(sTc)}, 6")
    a(f"s_add_u32 s99, s99, s98")
    a(f"s_mul_i32 {s(sBase)}, s99, {VT_LD}")
    a(f"s_lshl_b32 s98, {s(sTs)}, 8")
    a(f"s_add_u32 {s(sBase)}, {s(sBase)}, s98")
    store_rows(a, V, vlane, sW, t, 256, RS, 0, 16, VT_LD, srdVT, sBase, frb, 8, sT, sf=sf)
    stamp(a, 5)
    if gcore.PROF:
        a("s_waitcnt vmcnt(0)"); stamp(a, 6); prof_flush(a, 30, 1, 7, vtmp)
    a("s_endpgm")
    return V.hi, lds_total

def k2(sf=""):
    a = Asm()
    stamp(a, 0)
    a("""
    s_cmp_ge_u32 s2, 256
    s_cbranch_scc1 k2_exit
    s_load_dwordx2 s[4:5], s[0:1], 16         ; w_att_out
    s_load_dwordx2 s[6:7], s[0:1], 32         ; dw_csgu
    s_load_dwordx2 s[30:31], s[0:1], 80       ; ws
    v_lshrrev_b32 v1, 6, v0
    s_and_b32 s32, s2, 7                      ; xcd
    s_lshr_b32 s33, s2, 3                     ; li
    v_readfirstlane_b32 s20, v1               ; wave
    s_lshr_b32 s21, s32, 2                    ; b
    s_and_b32 s34, s32, 3                     ; quadrant
    s_and_b32 s35, s33, 3                     ; li&3
    s_bfe_u32 s36, s33, 0x20002               ; (li>>2)&3
    s_and_b32 s37, s34, 1
    s_lshl_b32 s37, s37, 2
    s_add_u32 s23, s37, s35
    s_lshr_b32 s37, s34, 1
    s_lshl_b32 s37, s37, 2
    s_add_u32 s22, s37, s36
    s_lshl_b32 s24, s35, 1
    s_add_u32 s24, s24, s36
    s_and_b32 s24, s24, 7                     ; c0
    s_waitcnt lgkmcnt(0)
    """)
    a(f"s_mul_i32 s38, s21, {1000*Y_LD}")
    a(f"s_add_u32 s8, s30, s38"); a("s_addc_u32 s9, s31, 0")
    if O_Y: a(f"s_add_u32 s8, s8, {O_Y}"); a("s_addc_u32 s9, s9, 0")
    a(f"s_mov_b32 s10, {1000*Y_LD}"); a("s_mov_b32 s11, 0x20000")
    a("s_cmp_ge_u32 s33, 16")
    a("s_cbranch_scc1 k2_typeV")
    srd_from(a, 12, 30, P_BYTES, O_P)
    srd_from(a, 16, 30, ML_BYTES, O_ML)
    va, la = k2_S(a, 40, sf)
    a("k2_typeV:")
    srd_from(a, 44, 4, SIZES[WO])
    srd_from(a, 48, 30, VT_BYTES, O_VT)
    srd_from(a, 52, 30, GS_BYTES, O_GS)
    srd_from(a, 56, 6, SIZES[DWC])
    a(f"s_mul_i32 s38, s21, {1000*Z_LD}")
    a(f"s_add_u32 s60, s30, s38"); a("s_addc_u32 s61, s31, 0")
    a(f"s_add_u32 s60, s60, {O_Z}"); a("s_addc_u32 s61, s61, 0")
    a(f"s_mov_b32 s62, {1000*Z_LD}"); a("s_mov_b32 s63, 0x20000")
    vb, lb = k2_V(a, 64, sf)
    a("k2_exit:")
    a("s_endpgm")
    return ("k2_kernel", a.text(), max(va, vb), 100, None), max(la, lb)

if __name__ == "__main__":
    import build, sys, k1
    gcore.PROF = "prof" in sys.argv
    sf = " ".join(x for x in sys.argv[1:] if x in ("sc1","sc0","nt"))
    ka, la = k1.k1(sf); kb, lb = k2(sf)
    print("k2 vgpr", kb[2], "lds", lb)
    open("t_k2.s","w").write(make_file([("k1_kernel",256,256,la),("k2_kernel",256,256,lb)], [ka, kb]))
    build.build("t_k2.s","t_k2.co")
```

```python
from gcore import *
import gcore
from gemm2 import *
from conv import *
from k1 import srd_from, halfsum
from k2 import O_P, P_LD, O_ML, ML_BYTES, O_VT, VT_LD, VT_BYTES, O_Z, Z_LD

O_MC = 0x1500000; MC_LD = 2048; MC_BYTES = 2000*MC_LD

def out_pass(a, V, t, OUT, nrows, sT0, sCol, srdMC, sf):
    m = V.mark()
    n = nrows // 32
    vD = V.alloc(4*n, 4); vZo = V.alloc()
    a(f"v_lshrrev_b32 {v(t)}, 3, v0")
    a(f"v_and_b32 {v(t+1)}, 7, v0")
    a(f"v_lshrrev_b32 {v(t+2)}, 4, {v(t)}")
    a(f"v_add_u32 {v(t+3)}, {s(sT0)}, {v(t)}")
    a(f"v_lshlrev_b32 {v(t+3)}, 11, {v(t+3)}")
    a(f"v_lshl_add_u32 {v(t+3)}, {v(t+1)}, 4, {v(t+3)}")
    a(f"v_add_u32 {v(vZo)}, {s(sCol)}, {v(t+3)}")
    for i in range(n):
        a(f"v_add_u32 {v(t+3)}, {2*i}, {v(t+2)}")
        a(f"v_and_b32 {v(t+3)}, 7, {v(t+3)}")
        a(f"v_xor_b32 {v(t+3)}, {v(t+3)}, {v(t+1)}")
        a(f"v_lshlrev_b32 {v(t+3)}, 4, {v(t+3)}")
        a(f"v_lshl_add_u32 {v(t+3)}, {v(t)}, 7, {v(t+3)}")
        a(f"v_add_u32 {v(t+3)}, {OUT + i*32*128}, {v(t+3)}")
        a(f"ds_read_b128 {v(vD+4*i,4)}, {v(t+3)}")
    for i in range(n):
        a(f"s_mov_b32 s99, {32*i*MC_LD}")
        a(f"s_waitcnt lgkmcnt({n-1-i})")
        a(f"buffer_store_dwordx4 {v(vD+4*i,4)}, {v(vZo)}, {s(srdMC,4)}, s99 offen {sf}")
    V.release(m)

def k3_PV(a, S0, sf):
    name = "k3P"
    NS = 3
    V = Regs(1, 256, "v"); S = Regs(S0, 76, "s")
    vlane = V.alloc(); vtmp = V.alloc(8, 4); t = vtmp
    opV = OpK(64, 0); opP = OpK(128, opV.bytes)
    slot = opV.bytes + opP.bytes
    FT = NS*slot
    TB = FT + 16384
    GT = TB + TB_BYTES
    OUT = 0
    lds_total = GT + 64*384
    sW, sB, sTt, sTc, sC0 = 20, 21, 22, 23, 24
    srdP, srdVT, srdML, srdDW, srdMC = 8, 12, 16, 44, 48
    S.n = max(S.n, 52)
    opV.alloc(V, S, NS); opP.alloc(V, S, NS)
    sWm = S.alloc(); sWn = S.alloc(); sKc = S.alloc(); sR = S.alloc(); sT = S.alloc(); sT0 = S.alloc(); sCol = S.alloc()
    a(f"{name}_start:")
    a(f"v_and_b32 {v(vlane)}, 63, v0")
    a(f"s_mul_i32 {s(sT0)}, {s(sTt)}, 96")
    mk = V.mark()
    vML = V.alloc(32, 2); vTap = V.alloc(8); vValid = V.alloc()
    a(f"v_and_b32 {v(t)}, 127, v0")
    a(f"s_sub_u32 s99, {s(sT0)}, 16")
    a(f"v_add_u32 {v(t)}, s99, {v(t)}")
    a(f"v_cmp_gt_u32 vcc, 1000, {v(t)}")
    a(f"v_mov_b32 {v(t+2)}, 0")
    a(f"v_mov_b32 {v(t+3)}, 1.0")
    a(f"v_cndmask_b32 {v(vValid)}, {v(t+2)}, {v(t+3)}, vcc")
    a(f"v_max_i32 {v(t+1)}, 0, {v(t)}")
    a(f"v_min_i32 {v(t+1)}, 999, {v(t+1)}")
    a(f"s_lshl_b32 s99, {s(sB)}, 10")
    a(f"v_add_u32 {v(t+1)}, s99, {v(t+1)}")
    a(f"v_lshlrev_b32 {v(t+1)}, 3, {v(t+1)}")
    for k in range(16):
        a(f"s_mov_b32 s99, {k*16384}")
        a(f"buffer_load_dwordx2 {v(vML+2*k,2)}, {v(t+1)}, {s(srdML,4)}, s99 offen")
    a(f"s_lshl_b32 {s(sCol)}, {s(sTc)}, 7")
    taps_load(a, 0, t, vTap, srdDW, sCol, 2048)
    a(f"s_lshl_b32 {s(sR)}, {s(sTc)}, 6")
    a(f"s_lshl_b32 s98, {s(sB)}, 9")
    a(f"s_add_u32 {s(sR)}, {s(sR)}, s98")
    opV.setup_dma(a, vlane, sW, vtmp, VT_LD, srowbase=sR)
    a(f"s_sub_u32 {s(sR)}, {s(sT0)}, 16")
    opP.setup_dma(a, vlane, sW, vtmp, P_LD, srowbase=sR)
    def ksets():
        return [f"s_lshl_b32 {s(opV.s_k)}, {s(sKc)}, 7", f"s_mov_b32 {s(opP.s_k)}, {s(opV.s_k)}"]
    def kadv():
        return [f"s_add_u32 {s(sKc)}, {s(sKc)}, 1\ns_and_b32 {s(sKc)}, {s(sKc)}, 15\n" + "\n".join(ksets())]
    a(f"s_mov_b32 {s(sKc)}, {s(sC0)}")
    for l in ksets(): a(l)
    def dma(so): return opP.dma(srdP, so) + opV.dma(srdVT, so)
    ndma = opV.nper + opP.nper
    for l in dma(0) + kadv() + dma(slot) + kadv(): a(l)
    stamp(a, 1)
    vz = V.alloc(4, 4)
    zero_lds(a, 0, vz, TB, TB_BYTES + 64*384, t)
    a(f"s_waitcnt vmcnt({2*ndma + 8})")
    M = t
    a(f"v_max3_f32 {v(M)}, {v(vML)}, {v(vML+2)}, {v(vML+4)}")
    for k in range(3, 15, 2): a(f"v_max3_f32 {v(M)}, {v(M)}, {v(vML+2*k)}, {v(vML+2*k+2)}")
    a(f"v_max_f32 {v(M)}, {v(M)}, {v(vML+30)}")
    for k in range(16): a(f"v_sub_f32 {v(vML+2*k)}, {v(vML+2*k)}, {v(M)}")
    for k in range(16): a(f"v_exp_f32 {v(vML+2*k)}, {v(vML+2*k)}")
    a(f"v_mul_f32 {v(t+1)}, {v(vML)}, {v(vML+1)}")
    for k in range(1, 16): a(f"v_fmac_f32 {v(t+1)}, {v(vML+2*k)}, {v(vML+2*k+1)}")
    a(f"v_rcp_f32 {v(t+1)}, {v(t+1)}")
    a("s_nop 0")
    a(f"v_mul_f32 {v(t+1)}, {v(t+1)}, {v(vValid)}")
    a(f"v_and_b32 {v(t+2)}, 127, v0")
    a(f"v_lshlrev_b32 {v(t+2)}, 2, {v(t+2)}")
    a(f"v_lshrrev_b32 {v(t+3)}, 7, v0")
    a(f"v_lshl_add_u32 {v(t+2)}, {v(t+3)}, 13, {v(t+2)}")
    a(f"v_add_u32 {v(t+2)}, {FT}, {v(t+2)}")
    for k in range(16):
        a(f"v_mul_f32 {v(vML+2*k)}, {v(vML+2*k)}, {v(t+1)}")
    for k in range(16):
        a(f"ds_write_b32 {v(t+2)}, {v(vML+2*k)} offset:{k*512}")
    a("s_waitcnt lgkmcnt(0)")
    a("s_barrier")
    a(f"s_waitcnt vmcnt({2*ndma})")
    taps_write(a, 0, t, vTap, TB)
    V.release(mk)
    cur = [V.alloc(32, 4), V.alloc(32, 4)]; tot = V.alloc(32, 4); frb = V.alloc(24, 4); fr = [frb, frb+12]
    vF = V.alloc(32, 2)
    a(f"s_and_b32 {s(sWm)}, {s(sW)}, 1")
    a(f"s_lshr_b32 {s(sWn)}, {s(sW)}, 1")
    vrowV = V.alloc(); vrowP = V.alloc()
    a(f"v_and_b32 {v(t)}, 31, {v(vlane)}")
    a(f"s_lshl_b32 s99, {s(sWm)}, 5")
    a(f"v_add_u32 {v(vrowV)}, s99, {v(t)}")
    a(f"s_lshl_b32 s99, {s(sWn)}, 6")
    a(f"v_add_u32 {v(vrowP)}, s99, {v(t)}")
    opV.setup_read(a, vlane, vtmp, 0, vrowV, slot)
    opP.setup_read(a, vlane, vtmp, 0, vrowP, slot)
    a(f"v_lshlrev_b32 {v(t)}, 2, {v(vrowP)}")
    a(f"s_lshl_b32 s99, {s(sC0)}, 9")
    a(f"s_add_u32 s99, s99, {FT}")
    a(f"v_add_u32 {v(t)}, s99, {v(t)}")
    for i in range(16):
        for nt in range(2):
            a(f"ds_read_b32 {v(vF+2*i+nt)}, {v(t)} offset:{i*512 + nt*128}")
    for r in range(32): a(f"v_mov_b32 {v(tot+r)}, 0")
    a(f"s_waitcnt vmcnt({ndma}) lgkmcnt(0)")
    a("s_barrier")
    stamp(a, 2)
    def reads(sl, ks, st):
        o = opV.read(fr[st], sl, ks)
        for i in range(2): o += opP.read(fr[st]+4+4*i, sl, ks, tile_rows=32*i)
        return o
    def mfma(i, ks, st):
        c = cur[i & 1]
        return [f"v_mfma_f32_32x32x16_bf16 {v(c+16*nt,16)}, {v(fr[st],4)}, {v(fr[st]+4+4*nt,4)}, " + ("0" if ks == 0 else v(c+16*nt,16))
                for nt in range(2)]
    def fmas(i):
        c = cur[i & 1]
        return [f"v_fmac_f32 {v(tot+16*nt+r)}, {v(c+16*nt+r)}, {v(vF+2*i+nt)}" for nt in range(2) for r in range(16)]
    extra = {}
    for i in range(1, 16):
        parts = split(fmas(i-1), 3)
        for k in range(3): extra[(i, k+1)] = parts[k]
    for l in reads(0, 0, 0): a(l)
    emit_main(a, 16, NS, slot, dma, ndma, kadv, reads, mfma, extra=extra)
    stamp(a, 3)
    a("s_nop 7"); a("s_nop 7")
    for l in fmas(15): a(l)
    vX = V.alloc(); vAd = V.alloc(4); vP = V.alloc(8)
    for nt in range(2):
        a(f"v_add_u32 {v(t)}, {32*nt}, {v(vrowP)}")
        a(f"v_lshrrev_b32 {v(t+1)}, 3, {v(t)}")
        a(f"v_lshrrev_b32 {v(t+2)}, 5, {v(vlane)}")
        a(f"v_lshlrev_b32 {v(t+3)}, 1, {v(t+2)}")
        a(f"v_xor_b32 {v(t+1)}, {v(t+1)}, {v(t+3)}")
        a(f"v_and_b32 {v(t)}, 7, {v(t)}")
        a(f"v_lshlrev_b32 {v(t)}, 1, {v(t)}")
        a(f"v_mul_u32_u24 {v(t+2)}, {4*384}, {v(t+2)}")
        a(f"v_add_u32 {v(t)}, {v(t)}, {v(t+2)}")
        a(f"s_mul_i32 s99, {s(sWm)}, {32*384}")
        a(f"s_add_u32 s99, s99, {GT}")
        a(f"v_add_u32 {v(t)}, s99, {v(t)}")
        for var in range(4):
            st_ = ((var >> 1) << 2) | (var & 1)
            a(f"v_xor_b32 {v(t+2)}, {st_}, {v(t+1)}")
            a(f"v_lshl_add_u32 {v(vAd+var)}, {v(t+2)}, 4, {v(t)}")
        for q in range(4):
            for rp in range(2):
                r0 = tot + 16*nt + 4*q + 2*rp
                a(f"v_cvt_pk_bf16_f32 {v(vP+2*q+rp)}, {v(r0)}, {v(r0+1)}")
        for q in range(4):
            for rp in range(2):
                ad = vAd + ((q & 1) << 1) + rp
                a(f"ds_write_b16 {v(ad)}, {v(vP+2*q+rp)} offset:{(8*q + 2*rp)*384}")
                a(f"ds_write_b16_d16_hi {v(ad)}, {v(vP+2*q+rp)} offset:{(8*q + 2*rp + 1)*384}")
    V.release(mk)
    cv = Conv(V, GT, 384, TB, OUT, residual=True)
    cv.setup(a, vlane, sW, t)
    a("s_waitcnt lgkmcnt(0)")
    a("s_barrier")
    stamp(a, 4)
    cv.emit(a, 6)
    a("s_waitcnt lgkmcnt(0)")
    a("s_barrier")
    out_pass(a, V, t, OUT, 96, sT0, sCol, srdMC, sf)
    stamp(a, 5)
    if gcore.PROF:
        a("s_waitcnt vmcnt(0)"); stamp(a, 6); prof_flush(a, 30, 2, 7, vtmp)
    a("s_endpgm")
    return V.hi, lds_total

def k3_L(a, S0, sf):
    name = "k3L"
    NS = 2 if False else 3
    V = Regs(1, 256, "v"); S = Regs(S0, 76, "s")
    vlane = V.alloc(); vtmp = V.alloc(8, 4); t = vtmp
    opZ = OpK(256, 0); opW = OpT(64, opZ.bytes)
    slot = opZ.bytes + opW.bytes
    GS_ = 640
    TB = NS*slot
    GT = 0
    OUT = 64*GS_
    lds_total = TB + TB_BYTES
    sW, sB, sTt, sTe, sC0 = 20, 21, 22, 23, 24
    srdZ, srdW, srdDW, srdMC = 8, 12, 44, 48
    S.n = max(S.n, 52)
    opZ.alloc(V, S, NS); opW.alloc(V, S, NS, 2)
    sKc = S.alloc(); sR = S.alloc(); sT = S.alloc(); sT0 = S.alloc(); sCol = S.alloc(); sZero = S.alloc()
    a(f"{name}_start:")
    a(f"v_and_b32 {v(vlane)}, 63, v0")
    a(f"s_mul_i32 {s(sT0)}, {s(sTt)}, 224")
    mk = V.mark()
    vTap = V.alloc(8)
    a(f"s_lshl_b32 {s(sCol)}, {s(sTe)}, 7")
    a(f"s_add_u32 {s(sT)}, {s(sCol)}, 1024")
    taps_load(a, 0, t, vTap, srdDW, sT, 2048)
    a(f"s_sub_u32 {s(sR)}, {s(sT0)}, 16")
    opZ.setup_dma(a, vlane, sW, vtmp, Z_LD, srowbase=sR)
    opW.setup_dma(a, vlane, sW, vtmp, 1024, colbase_s=sCol)
    def ksets():
        return [f"s_lshl_b32 {s(opZ.s_k)}, {s(sKc)}, 7", f"s_lshl_b32 {s(opW.s_k)}, {s(sKc)}, 16"]
    def kadv():
        return [f"s_add_u32 {s(sKc)}, {s(sKc)}, 1\ns_and_b32 {s(sKc)}, {s(sKc)}, 7\n" + "\n".join(ksets())]
    a(f"s_mov_b32 {s(sKc)}, {s(sC0)}")
    for l in ksets(): a(l)
    def dma(so): return opZ.dma(srdZ, so) + opW.dma(srdW, so)
    ndma = opZ.nper + opW.nper
    for l in dma(0) + kadv() + dma(slot) + kadv(): a(l)
    stamp(a, 1)
    vz = V.alloc(4, 4)
    zero_lds(a, 0, vz, TB, TB_BYTES, t)
    a("s_waitcnt lgkmcnt(0)")
    a("s_barrier")
    a(f"s_waitcnt vmcnt({2*ndma})")
    taps_write(a, 0, t, vTap, TB)
    V.release(mk)
    acc = V.alloc(64, 4); frb = V.alloc(32, 4); fr = [frb, frb+16]
    A_ = lambda mt, nt: acc + (mt*2+nt)*16
    vrowZ = V.alloc()
    a(f"v_and_b32 {v(t)}, 31, {v(vlane)}")
    a(f"s_lshl_b32 s99, {s(sW)}, 6")
    a(f"v_add_u32 {v(vrowZ)}, s99, {v(t)}")
    opZ.setup_read(a, vlane, vtmp, 0, vrowZ, slot)
    a(f"s_mov_b32 {s(sZero)}, 0")
    opW.setup_read(a, vlane, vtmp, sZero, slot)
    a(f"s_waitcnt vmcnt({ndma}) lgkmcnt(0)")
    a("s_barrier")
    stamp(a, 2)
    def reads(sl, ks, st):
        o = []
        for i in range(2): o += opZ.read(fr[st]+4*i, sl, ks, tile_rows=32*i)
        for i in range(2): o += opW.read(fr[st]+8+4*i, sl, i, ks)
        return o
    def mfma(i, ks, st):
        return [f"v_mfma_f32_32x32x16_bf16 {v(A_(mt,nt),16)}, {v(fr[st]+4*mt,4)}, {v(fr[st]+8+4*nt,4)}, " + ("0" if (i == 0 and ks == 0) else v(A_(mt,nt),16))
                for mt in range(2) for nt in range(2)]
    for l in reads(0, 0, 0): a(l)
    emit_main(a, 8, NS, slot, dma, ndma, kadv, reads, mfma)
    stamp(a, 3)
    vAd = V.alloc(8); vP = V.alloc(8, 2)
    a(f"v_and_b32 {v(t)}, 31, {v(vlane)}")
    a(f"v_bfe_u32 {v(t+1)}, {v(vlane)}, 1, 3")
    a(f"v_mul_u32_u24 {v(t)}, {GS_}, {v(t)}")
    a(f"v_lshrrev_b32 {v(t+2)}, 5, {v(vlane)}")
    a(f"v_lshl_add_u32 {v(t)}, {v(t+2)}, 3, {v(t)}")
    a(f"s_lshl_b32 s99, {s(sW)}, 7")
    a(f"s_add_u32 s99, s99, {GT}")
    a(f"v_add_u32 {v(t)}, s99, {v(t)}")
    for k in range(8):
        a(f"v_xor_b32 {v(t+2)}, {k}, {v(t+1)}")
        a(f"v_lshl_add_u32 {v(vAd+k)}, {v(t+2)}, 4, {v(t)}")
    a("s_nop 7")
    a("s_barrier")
    a(f"v_mov_b32 {v(vP)}, 0"); a(f"v_mov_b32 {v(vP+1)}, 0"); a(f"v_mov_b32 {v(vP+2)}, 0"); a(f"v_mov_b32 {v(vP+3)}, 0")
    a(f"v_lshrrev_b32 {v(t+3)}, 2, v0")
    a(f"v_mul_u32_u24 {v(t+3)}, {GS_}, {v(t+3)}")
    a(f"v_and_b32 {v(t+4)}, 3, v0")
    a(f"v_lshl_add_u32 {v(t+3)}, {v(t+4)}, 5, {v(t+3)}")
    vP4 = V.alloc(4, 4)
    for k in range(4): a(f"v_mov_b32 {v(vP4+k)}, 0")
    a(f"ds_write_b128 {v(t+3)}, {v(vP4,4)} offset:{GT + 512}")
    a(f"ds_write_b128 {v(t+3)}, {v(vP4,4)} offset:{GT + 528}")
    for nt in range(2):
        for mt in range(2):
            ac = A_(mt, nt)
            for q in range(4):
                a(f"v_cvt_pk_bf16_f32 {v(vP+2*q)}, {v(ac+4*q)}, {v(ac+4*q+1)}")
                a(f"v_cvt_pk_bf16_f32 {v(vP+2*q+1)}, {v(ac+4*q+2)}, {v(ac+4*q+3)}")
            for q in range(4):
                a(f"ds_write_b64 {v(vAd+4*mt+q)}, {v(vP+2*q,2)} offset:{nt*32*GS_}")
    V.release(mk)
    cv = Conv(V, GT, GS_, TB, OUT, residual=True)
    cv.setup(a, vlane, sW, t)
    a("s_waitcnt lgkmcnt(0)")
    a("s_barrier")
    stamp(a, 4)
    cv.emit(a, 14)
    a("s_waitcnt lgkmcnt(0)")
    a("s_barrier")
    a(f"s_add_u32 {s(sCol)}, {s(sCol)}, 1024")
    out_pass(a, V, t, OUT, 224, sT0, sCol, srdMC, sf)
    stamp(a, 5)
    if gcore.PROF:
        a("s_waitcnt vmcnt(0)"); stamp(a, 6); prof_flush(a, 30, 2, 7, vtmp)
    a("s_endpgm")
    return V.hi, lds_total

def k3(sf=""):
    a = Asm()
    stamp(a, 0)
    a("""
    s_cmp_ge_u32 s2, 256
    s_cbranch_scc1 k3_exit
    s_load_dwordx2 s[4:5], s[0:1], 40         ; w_mlp_out
    s_load_dwordx2 s[6:7], s[0:1], 48         ; dw_merge
    s_load_dwordx2 s[30:31], s[0:1], 80       ; ws
    v_lshrrev_b32 v1, 6, v0
    s_and_b32 s32, s2, 7                      ; xcd
    s_lshr_b32 s33, s2, 3                     ; li
    v_readfirstlane_b32 s20, v1               ; wave
    s_cmp_ge_u32 s33, 22
    s_cbranch_scc1 k3_typeL
    s_lshr_b32 s21, s32, 2                    ; b
    s_and_b32 s34, s32, 3
    s_mul_i32 s34, s34, 22
    s_add_u32 s34, s34, s33                   ; n = 22q + li
    s_lshr_b32 s22, s34, 3                    ; tt
    s_and_b32 s23, s34, 7                     ; tc
    s_lshl_b32 s24, s23, 1
    s_add_u32 s24, s24, s22
    s_and_b32 s24, s24, 15                    ; c0
    s_waitcnt lgkmcnt(0)
    """)
    def batch_srd(dst, off, rows_per_batch_stride, nbytes):
        a(f"s_mul_i32 s38, s21, {rows_per_batch_stride}")
        a(f"s_add_u32 s{dst}, s30, s38"); a(f"s_addc_u32 s{dst+1}, s31, 0")
        a(f"s_add_u32 s{dst}, s{dst}, {off}"); a(f"s_addc_u32 s{dst+1}, s{dst+1}, 0")
        a(f"s_mov_b32 s{dst+2}, {nbytes}"); a(f"s_mov_b32 s{dst+3}, 0x20000")
    batch_srd(8, O_P, 1024*P_LD, 1000*P_LD)
    srd_from(a, 12, 30, VT_BYTES, O_VT)
    srd_from(a, 16, 30, ML_BYTES, O_ML)
    srd_from(a, 44, 6, SIZES[DWM])
    batch_srd(48, O_MC, 1000*MC_LD, 1000*MC_LD)
    va, la = k3_PV(a, 52, sf)
    a("""k3_typeL:
    s_mul_i32 s34, s32, 10
    s_add_u32 s34, s34, s33
    s_sub_u32 s34, s34, 22                    ; n = 10x + li - 22
    s_lshr_b32 s35, s34, 3                    ; bt 0..9
    s_and_b32 s23, s34, 7                     ; te
    s_cmp_ge_u32 s35, 5
    s_cselect_b32 s21, 1, 0                   ; b
    s_mul_i32 s36, s21, 5
    s_sub_u32 s22, s35, s36                   ; tt
    s_add_u32 s24, s23, s22
    s_and_b32 s24, s24, 7                     ; c0
    s_waitcnt lgkmcnt(0)
    """)
    batch_srd(8, O_Z, 1000*Z_LD, 1000*Z_LD)
    srd_from(a, 12, 4, SIZES[WMO])
    srd_from(a, 44, 6, SIZES[DWM])
    batch_srd(48, O_MC, 1000*MC_LD, 1000*MC_LD)
    vb, lb = k3_L(a, 52, sf)
    a("k3_exit:")
    a("s_endpgm")
    return ("k3_kernel", a.text(), max(va, vb), 100, None), max(la, lb)
```

```python
from gcore import *
import gcore
from gemm2 import *
from k1 import srd_from
from k3 import O_MC, MC_LD, MC_BYTES

def k4(sf=""):
    a = Asm()
    name = "k4"
    stamp(a, 0)
    a("""
    s_cmp_ge_u32 s2, 256
    s_cbranch_scc1 k4_exit
    s_load_dwordx2 s[4:5], s[0:1], 0          ; x
    s_load_dwordx4 s[40:43], s[0:1], 56
    s_load_dwordx2 s[30:31], s[0:1], 80       ; ws
    v_lshrrev_b32 v1, 6, v0
    s_and_b32 s32, s2, 7
    s_lshr_b32 s33, s2, 3
    v_readfirstlane_b32 s20, v1
    s_lshr_b32 s34, s33, 3
    s_lshl_b32 s21, s32, 2
    s_add_u32 s21, s21, s34
    s_and_b32 s22, s33, 7                     ; te
    s_lshl_b32 s24, s22, 1
    s_add_u32 s24, s24, s34
    s_and_b32 s24, s24, 15                    ; c0
    s_waitcnt lgkmcnt(0)
    """)
    srd_from(a, 8, 30, MC_BYTES, O_MC)
    srd_from(a, 12, 40, SIZES[WM])
    srd_from(a, 16, 4, SIZES[X])
    srd_from(a, 44, 42, SIZES[OUT])
    NS = 4
    V = Regs(1, 256, "v"); S = Regs(52, 76, "s")
    vlane = V.alloc(); vtmp = V.alloc(8, 4); t = vtmp
    opW = OpT(64, 0); opM = OpK(64, opW.bytes)
    slot = opW.bytes + opM.bytes
    sW, sTr, sTe, sC0 = 20, 21, 22, 24
    srdM, srdW, srdX, srdO = 8, 12, 16, 44
    opW.alloc(V, S, NS, 1); opM.alloc(V, S, NS)
    sWm = S.alloc(); sWn = S.alloc(); sKc = S.alloc(); sR = S.alloc(); sCol = S.alloc(); sT = S.alloc(); sBase = S.alloc()
    a(f"v_and_b32 {v(vlane)}, 63, v0")
    a(f"s_lshl_b32 {s(sR)}, {s(sTr)}, 6")
    opM.setup_dma(a, vlane, sW, vtmp, MC_LD, srowbase=sR)
    a(f"s_lshl_b32 {s(sCol)}, {s(sTe)}, 7")
    opW.setup_dma(a, vlane, sW, vtmp, 1024, colbase_s=sCol)
    def ksets():
        return [f"s_lshl_b32 {s(opM.s_k)}, {s(sKc)}, 7", f"s_lshl_b32 {s(opW.s_k)}, {s(sKc)}, 16"]
    def kadv():
        return [f"s_add_u32 {s(sKc)}, {s(sKc)}, 1\ns_and_b32 {s(sKc)}, {s(sKc)}, 15\n" + "\n".join(ksets())]
    a(f"s_mov_b32 {s(sKc)}, {s(sC0)}")
    for l in ksets(): a(l)
    def dma(so): return opM.dma(srdM, so) + opW.dma(srdW, so)
    ndma = opM.nper + opW.nper
    for l in dma(0) + kadv() + dma(slot) + kadv() + dma(2*slot) + kadv(): a(l)
    stamp(a, 1)
    acc = V.alloc(16, 4); frb = V.alloc(32, 4); fr = [frb, frb+8]; vXr = V.alloc(8, 2)
    a(f"s_and_b32 {s(sWm)}, {s(sW)}, 1")
    a(f"s_lshr_b32 {s(sWn)}, {s(sW)}, 1")
    vrow = V.alloc()
    a(f"v_and_b32 {v(t)}, 31, {v(vlane)}")
    a(f"s_lshl_b32 s99, {s(sWn)}, 5")
    a(f"v_add_u32 {v(vrow)}, s99, {v(t)}")
    opM.setup_read(a, vlane, vtmp, 0, vrow, slot)
    opW.setup_read(a, vlane, vtmp, sWm, slot)
    vXo = V.alloc()
    a(f"v_add_u32 {v(t)}, {s(sR)}, {v(vrow)}")
    a(f"v_lshlrev_b32 {v(t)}, 10, {v(t)}")
    a(f"v_lshrrev_b32 {v(t+1)}, 5, {v(vlane)}")
    a(f"v_lshl_add_u32 {v(t)}, {v(t+1)}, 3, {v(t)}")
    a(f"s_lshl_b32 s99, {s(sWm)}, 6")
    a(f"s_add_u32 s99, s99, {s(sCol)}")
    a(f"v_add_u32 {v(vXo)}, s99, {v(t)}")
    extra = {(12, 3): [f"buffer_load_dwordx2 {v(vXr+2*q,2)}, {v(vXo)}, {s(srdX,4)}, 0 offen offset:{16*q}" for q in range(4)]}
    a(f"s_waitcnt vmcnt({2*ndma}) lgkmcnt(0)")
    a("s_barrier")
    stamp(a, 2)
    def reads(sl, ks, st):
        return opW.read(fr[st], sl, 0, ks) + opM.read(fr[st]+4, sl, ks)
    def mfma(i, ks, st):
        return [f"v_mfma_f32_32x32x16_bf16 {v(acc,16)}, {v(fr[st],4)}, {v(fr[st]+4,4)}, " + ("0" if (i == 0 and ks == 0) else v(acc,16))]
    for l in reads(0, 0, 0): a(l)
    emit_main(a, 16, NS, slot, dma, ndma, kadv, reads, mfma, extra=extra, vm_extra={13: 4}, npre=3)
    stamp(a, 3)
    RS = 144
    vStg = V.alloc(); vP = V.alloc(8, 2); vU = V.alloc(4, 2)
    a(f"v_mul_u32_u24 {v(vStg)}, {RS}, {v(vrow)}")
    a(f"v_lshrrev_b32 {v(t)}, 5, {v(vlane)}")
    a(f"v_lshl_add_u32 {v(vStg)}, {v(t)}, 3, {v(vStg)}")
    a(f"s_lshl_b32 s99, {s(sWm)}, 6")
    a(f"v_add_u32 {v(vStg)}, s99, {v(vStg)}")
    a("s_waitcnt vmcnt(0)")
    a("s_nop 7")
    a("s_barrier")
    for q in range(4):
        for d in range(2):
            x_ = vXr + 2*q + d; r0 = acc + 4*q + 2*d
            a(f"v_lshlrev_b32 {v(vU)}, 16, {v(x_)}")
            a(f"v_and_b32 {v(vU+1)}, 0xffff0000, {v(x_)}")
            a(f"v_pk_add_f32 {v(r0,2)}, {v(r0,2)}, {v(vU,2)}")
            a(f"v_cvt_pk_bf16_f32 {v(vP+2*q+d)}, {v(r0)}, {v(r0+1)}")
        a(f"ds_write_b64 {v(vStg)}, {v(vP+2*q,2)} offset:{q*16}")
    stamp(a, 4)
    a("s_waitcnt lgkmcnt(0)")
    a("s_barrier")
    a(f"s_lshl_b32 {s(sBase)}, {s(sR)}, 10")
    a(f"s_add_u32 {s(sBase)}, {s(sBase)}, {s(sCol)}")
    store_rows(a, V, vlane, sW, t, 128, RS, 0, 16, 1024, srdO, sBase, frb, 8, sT, sf=sf)
    stamp(a, 5)
    if gcore.PROF:
        a("s_waitcnt vmcnt(0)"); stamp(a, 6); prof_flush(a, 30, 3, 7, vtmp)
    a("k4_exit:")
    a("s_endpgm")
    return ("k4_kernel", a.text(), V.hi, 100, None), NS*slot
```

```python
import gen_all, sys
ref = open("standalone__conformer_family_e_branchformer__speech.s.ref").read()
head = ref.split("; Override")[0]
sf = " ".join(x for x in sys.argv[1:] if x in ("sc1","sc0","nt"))
body = gen_all.build_all(False, sf, sf)
dst = [x for x in sys.argv[1:] if x.endswith(".s")]
dst = dst[0] if dst else "standalone__conformer_family_e_branchformer__speech.s"
open(dst,"w").write(head + body)
print("wrote", dst, len(head+body))
```

```python
from gcore import *
GT_STRIDE_DEFAULT = 384
TB_STRIDE = 356
TB_BYTES = 64*TB_STRIDE

def zero_lds(a, vlane_tid, vz, base, nbytes, vtmp):
    for k in range(4): a(f"v_mov_b32 {v(vz+k)}, 0")
    a(f"v_lshlrev_b32 {v(vtmp)}, 4, {v(vlane_tid)}")
    a(f"v_add_u32 {v(vtmp)}, {base}, {v(vtmp)}")
    n = -(-nbytes // 4096)
    for i in range(n):
        if (i+1)*4096 <= nbytes:
            a(f"ds_write_b128 {v(vtmp)}, {v(vz,4)} offset:{i*4096}")
        else:
            rem = nbytes - i*4096
            assert rem % 1024 == 0 or True
            a(f"v_cmp_gt_u32 vcc, {rem//16}, {v(vlane_tid)}\ns_and_saveexec_b64 s[96:97], vcc\nds_write_b128 {v(vtmp)}, {v(vz,4)} offset:{i*4096}\ns_mov_b64 exec, s[96:97]")

def taps_load(a, vtid, vt, vdst, srd, s_col, ld):
    a(f"v_and_b32 {v(vt)}, 63, {v(vtid)}")
    a(f"v_lshrrev_b32 {v(vt+1)}, 6, {v(vtid)}")
    a(f"v_mul_u32_u24 {v(vt+1)}, {ld}, {v(vt+1)}")
    a(f"v_lshl_add_u32 {v(vt)}, {v(vt)}, 1, {v(vt+1)}")
    a(f"v_add_u32 {v(vt)}, {s(s_col)}, {v(vt)}")
    for m in range(8):
        a(f"s_mov_b32 s99, {4*m*ld}\nbuffer_load_ushort {v(vdst+m)}, {v(vt)}, {s(srd,4)}, s99 offen")

def taps_write(a, vtid, vt, vsrc, tb_base):
    a(f"v_and_b32 {v(vt)}, 63, {v(vtid)}")
    a(f"v_lshrrev_b32 {v(vt+1)}, 6, {v(vtid)}")
    a(f"v_mul_u32_u24 {v(vt)}, {TB_STRIDE}, {v(vt)}")
    a(f"v_lshl_add_u32 {v(vt)}, {v(vt+1)}, 1, {v(vt)}")
    a(f"v_add_u32 {v(vt)}, {tb_base}, {v(vt)}")
    for m in range(8):
        w1 = f"ds_write_b16 {v(vt)}, {v(vsrc+m)} offset:{(4*m+16)*2}"
        w2 = f"ds_write_b16 {v(vt)}, {v(vsrc+m)} offset:{176 + (4*m+15)*2}"
        if m == 7:
            a(f"v_cmp_gt_u32 vcc, 3, {v(vt+1)}\ns_and_saveexec_b64 s[96:97], vcc\n{w1}\n{w2}\ns_mov_b64 exec, s[96:97]")
        else:
            a(w1); a(w2)

class Conv:
    def __init__(self, V, gt_base, gt_stride, tb_base, out_base, residual, nch=16, nsets=2):
        self.nch = nch
        self.gt_base = gt_base; self.gs = gt_stride; self.tb = tb_base; self.out = out_base; self.res = residual
        self.vA = V.alloc(); self.vX = [V.alloc(), V.alloc()]; self.vXa = [V.alloc(), V.alloc()]
        self.vO = [V.alloc(), V.alloc()]
        self.nsets = nsets
        self.fa = [V.alloc(8, 4) for _ in range(nsets)]; self.fb = [V.alloc(8, 4) for _ in range(nsets)]
        self.D = [V.alloc(16, 4) for _ in range(2)]
        self.pk = V.alloc(8, 2); self.vAc = V.alloc()
        if residual: self.vI = V.alloc(4, 4)
    def setup(self, a, vlane, sW, vt):
        t0, t1, t2 = vt, vt+1, vt+2
        a(f"v_and_b32 {v(t0)}, 15, {v(vlane)}")
        a(f"v_lshrrev_b32 {v(t1)}, 4, {v(vlane)}")
        a(f"v_lshlrev_b32 {v(t2)}, 3, {v(t1)}")
        a(f"v_sub_u32 {v(t2)}, {v(t2)}, {v(t0)}")
        a(f"v_add_u32 {v(t2)}, 15, {v(t2)}")
        a(f"v_and_b32 {v(self.vA)}, 1, {v(t2)}")
        a(f"v_mul_u32_u24 {v(self.vA)}, 176, {v(self.vA)}")
        a(f"v_lshrrev_b32 {v(t2)}, 1, {v(t2)}")
        a(f"v_lshl_add_u32 {v(self.vA)}, {v(t2)}, 2, {v(self.vA)}")
        a(f"s_mul_i32 s99, {s(sW)}, {self.nch*TB_STRIDE}\ns_add_u32 s99, s99, {self.tb}\nv_add_u32 {v(self.vA)}, s99, {v(self.vA)}")
        a(f"v_lshl_add_u32 {v(t2)}, {v(t0)}, 1, {v(t1)}")
        a(f"v_lshlrev_b32 {v(t2)}, 4, {v(t2)}")
        a(f"s_mul_i32 s99, {s(sW)}, {self.nch*self.gs}\ns_add_u32 s99, s99, {self.gt_base}\nv_add_u32 {v(self.vX[0])}, s99, {v(t2)}")
        a(f"v_add_u32 {v(self.vX[1])}, 64, {v(self.vX[0])}")
        if self.nch == 8:
            for k in range(2):
                a(f"s_and_b32 s99, {s(sW)}, 1\ns_lshl_b32 s99, s99, 6\nv_xor_b32 {v(self.vX[k])}, s99, {v(self.vX[k])}")
        a(f"v_lshlrev_b32 {v(t2)}, 2, {v(t1)}")
        a(f"v_lshl_add_u32 {v(t2)}, {v(t0)}, 4, {v(t2)}")
        a(f"v_lshlrev_b32 {v(t2)}, 7, {v(t2)}")
        a(f"v_add_u32 {v(t2)}, {self.out}, {v(t2)}")
        a(f"v_and_b32 {v(t0)}, 7, {v(t0)}")
        for hi in range(self.nch // 8):
            a(f"s_mul_i32 s99, {s(sW)}, {self.nch // 8}\ns_add_u32 s99, s99, {hi}\nv_xor_b32 {v(t1)}, s99, {v(t0)}")
            a(f"v_lshl_add_u32 {v(self.vO[hi])}, {v(t1)}, 4, {v(t2)}")
        if self.res:
            a(f"v_and_b32 {v(t0)}, 15, {v(vlane)}")
            a(f"v_lshrrev_b32 {v(t1)}, 4, {v(vlane)}")
            a(f"v_lshlrev_b32 {v(t1)}, 3, {v(t1)}")
            a(f"v_sub_u32 {v(t0)}, {v(t0)}, {v(t1)}")
            a(f"v_add_u32 {v(t0)}, 16, {v(t0)}")
            for d in range(4):
                a(f"v_mov_b32 {v(self.vI+d)}, 0")
                a(f"v_mov_b32 {v(t1)}, 0x3f80")
                a(f"v_mov_b32 {v(t2)}, 0x3f800000")
                a(f"v_cmp_eq_u32 vcc, {2*d}, {v(t0)}\ns_nop 1\nv_cndmask_b32 {v(self.vI+d)}, {v(self.vI+d)}, {v(t1)}, vcc")
                a(f"v_cmp_eq_u32 vcc, {2*d+1}, {v(t0)}\ns_nop 1\nv_cndmask_b32 {v(self.vI+d)}, {v(self.vI+d)}, {v(t2)}, vcc")
    def loads(self, j, st):
        o = []
        fa, fb = self.fa[st], self.fb[st]
        o.append(f"v_add_u32 {v(self.vAc)}, {j*TB_STRIDE}, {v(self.vA)}")
        for sidx in range(2):
            o.append(f"ds_read2_b32 {v(fa+4*sidx,2)}, {v(self.vAc)} offset0:{16*sidx} offset1:{16*sidx+1}")
            o.append(f"ds_read2_b32 {v(fa+4*sidx+2,2)}, {v(self.vAc)} offset0:{16*sidx+2} offset1:{16*sidx+3}")
        g = (j >> 1) & 7
        if j % 2 == 0:
            for sidx in range(2):
                o.append(f"v_xor_b32 {v(self.vXa[sidx])}, {g*16}, {v(self.vX[sidx])}")
        for sidx in range(2):
            o.append(f"ds_read_b128 {v(fb+4*sidx,4)}, {v(self.vXa[sidx])} offset:{j*self.gs}")
        return o
    def mfmas(self, j, st):
        d = self.D[(j >> 2) & 1] + 4*(j & 3)
        fa, fb = self.fa[st], self.fb[st]
        o = [f"v_mfma_f32_16x16x32_bf16 {v(d,4)}, {v(fa,4)}, {v(fb,4)}, 0",
             f"v_mfma_f32_16x16x32_bf16 {v(d,4)}, {v(fa+4,4)}, {v(fb+4,4)}, {v(d,4)}"]
        if self.res:
            o.append(f"v_mfma_f32_16x16x32_bf16 {v(d,4)}, {v(self.vI,4)}, {v(fb,4)}, {v(d,4)}")
        return o
    def flush(self, jg, exec_mask):
        D = self.D[jg & 1]
        o = []
        for r in range(4):
            o.append(f"v_cvt_pk_bf16_f32 {v(self.pk+2*r)}, {v(D+r)}, {v(D+4+r)}")
            o.append(f"v_cvt_pk_bf16_f32 {v(self.pk+2*r+1)}, {v(D+8+r)}, {v(D+12+r)}")
        if exec_mask is not None:
            o.append(f"s_mov_b32 exec_lo, {exec_mask & 0xffffffff}\ns_mov_b32 exec_hi, {exec_mask >> 32}")
        for r in range(4):
            o.append(f"ds_write_b64 {v(self.vO[jg >> 1])}, {v(self.pk+2*r,2)} offset:{r*128 + (jg & 1)*8}")
        if exec_mask is not None: o.append("s_mov_b64 exec, -1")
        return o
    def mask(self, nblk):
        if nblk >= 16: return None
        m = 0
        for l in range(64):
            if (l & 15) < nblk: m |= 1 << l
        return m
    def emit(self, a, nblk, j0=0, j1=None):
        j1 = self.nch if j1 is None else j1
        mask = self.mask(nblk)
        D = self.nsets - 1
        for j in range(j0, min(j1, j0 + D)):
            for l in self.loads(j, j % self.nsets): a(l)
        for j in range(j0, j1):
            if j + D < j1:
                for l in self.loads(j + D, (j + D) % self.nsets): a(l)
            younger = min(D, j1 - 1 - j)
            a(f"s_waitcnt lgkmcnt({min(15, 6*younger)})")
            for l in self.mfmas(j, j % self.nsets): a(l)
            if j % 4 == 1 and j >= 5 and j - 1 > j0:
                for l in self.flush(j//4 - 1, mask): a(l)
        a("s_nop 7")
        a("s_nop 1")
        for l in self.flush((j1-1)//4, mask): a(l)
```

```python
import struct
def f2u(f): return struct.unpack("<I", struct.pack("<f", f))[0]

class Asm:
    def __init__(self):
        self.lines = []
    def __call__(self, s=""):
        for l in s.split("\n"):
            l = l.strip()
            if not l: continue
            if l.endswith(":"): self.lines.append(l)
            else: self.lines.append("    " + l)
    def c(self, s): self.lines.append("    ; " + s)
    def text(self): return "\n".join(self.lines) + "\n"

class Regs:
    def __init__(self, start, limit, prefix):
        self.n = start; self.limit = limit; self.p = prefix; self.hi = start
    def alloc(self, cnt=1, align=1):
        self.n = (self.n + align - 1) // align * align
        r = self.n; self.n += cnt
        assert self.n <= self.limit, f"out of {self.p} regs: {self.n}"
        self.hi = max(self.hi, self.n)
        return r
    def mark(self): return self.n
    def release(self, m): self.n = m

def v(r, n=1): return f"v{r}" if n == 1 else f"v[{r}:{r+n-1}]"
def s(r, n=1): return f"s{r}" if n == 1 else f"s[{r}:{r+n-1}]"

X,WQKV,WO,WIN,DWC,WMO,DWM,WM,OUT,DBG,WS = range(11)
SIZES = {X:2*1000*512*2, WQKV:512*1536*2, WO:512*512*2, WIN:512*1024*2, DWC:31*512*2, WMO:512*512*2,
         DWM:31*1024*2, WM:1024*512*2, OUT:2*1000*512*2, WS:1<<28}

def interleave(main, fill, start=0):
    out = []
    n = len(main)
    k = 0
    for i, m in enumerate(main):
        out.append(m)
        if i < start: continue
        rem_slots = n - i
        take = -(-(len(fill) - k) // rem_slots)
        for _ in range(take):
            if k < len(fill): out.append(fill[k]); k += 1
    out += fill[k:]
    return out

def kernel_header(name):
    return f".globl {name}\n.p2align 8\n.type {name},@function\n{name}:\n"
def kernel_desc(name, vgpr, sgpr=96, accum=None):
    if accum is None: accum = (vgpr + 3) // 4 * 4
    return f""".amdhsa_kernel {name}
  .amdhsa_next_free_vgpr {vgpr}
  .amdhsa_next_free_sgpr {sgpr}
  .amdhsa_accum_offset {accum}
  .amdhsa_group_segment_fixed_size 0
  .amdhsa_kernarg_size 88
  .amdhsa_user_sgpr_count 2
  .amdhsa_user_sgpr_kernarg_segment_ptr 1
  .amdhsa_system_sgpr_workgroup_id_x 1
.end_amdhsa_kernel
"""
def make_file(launches, kernels, head=""):
    t = head
    for (n, g, b, l) in launches:
        t += f"; @launch kernel={n} grid=({g},1,1) block=({b},1,1) lds={l}\n"
    t += '.amdgcn_target "amdgcn-amd-amdhsa--gfx950"\n.text\n'
    for k in kernels:
        t += kernel_header(k[0]) + k[1]
    t += '.section .rodata,"a"\n'
    for k in kernels:
        t += ".p2align 6\n" + kernel_desc(k[0], k[2], k[3], k[4])
    return t

PROF = False
CODEPF = True
O_PROF = 0x3000000
def stamp(a, idx):
    if PROF:
        a(f"s_memtime s[{84+2*idx}:{85+2*idx}]")
        if idx == 0: a("s_memrealtime s[74:75]")
def prof_flush(a, ws_ptr, kidx, nst, vt, who=0):
    if not PROF: return
    a("s_waitcnt lgkmcnt(0)")
    a(f"s_memrealtime s[80:81]")
    a(f"s_add_u32 s76, s{ws_ptr}, {O_PROF + kidx*65536}")
    a(f"s_addc_u32 s77, s{ws_ptr+1}, 0")
    a("s_mov_b32 s78, 65536")
    a("s_mov_b32 s79, 0x20000")
    a("s_waitcnt lgkmcnt(0)")
    a(f"s_lshl_b32 s98, s2, 7")
    a(f"s_add_u32 s98, s98, {64 if who >= 4 else 0}")
    a(f"v_mov_b32 {v(vt)}, s98")
    a(f"v_cmp_eq_u32 vcc, {who*64}, v0")
    a("s_and_saveexec_b64 s[82:83], vcc")
    lab = ".Lprof_skip_%d_%d" % (kidx, len(a.lines))
    a("s_cbranch_execz " + lab)
    for i in range(nst):
        a(f"v_mov_b32 {v(vt+1)}, s{84+2*i}")
        a(f"buffer_store_dword {v(vt+1)}, {v(vt)}, s[76:79], 0 offen offset:{4*i}")
    a(f"v_mov_b32 {v(vt+1)}, s80")
    a(f"buffer_store_dword {v(vt+1)}, {v(vt)}, s[76:79], 0 offen offset:60")
    a(f"v_mov_b32 {v(vt+1)}, s74")
    a(f"buffer_store_dword {v(vt+1)}, {v(vt)}, s[76:79], 0 offen offset:56")
    a(lab + ":")
    a("s_mov_b64 exec, s[82:83]")

_pf_id = [0]
def code_prefetch(a, start_label, end_label, s_li, s_wave, vdst, vt, maxwg=16):
    _pf_id[0] += 1
    L = f".Lpf{_pf_id[0]}"
    a(f"s_cmp_lt_u32 {s(s_li)}, {maxwg}")
    a(f"s_cbranch_scc0 {L}_skip")
    a(f"s_cmp_eq_u32 {s(s_wave)}, 0")
    a(f"s_cbranch_scc0 {L}_skip")
    a(f"s_getpc_b64 s[96:97]")
    a(f"{L}_pc:")
    a(f"s_add_u32 s96, s96, ({start_label} - {L}_pc) & 0xffffffff")
    a(f"s_addc_u32 s97, s97, (({start_label} - {L}_pc) >> 32) & 0xffffffff")
    a(f"v_and_b32 {v(vt)}, 63, v0")
    a(f"s_lshl_b32 s98, {s(s_li)}, 6")
    a(f"v_add_u32 {v(vt)}, s98, {v(vt)}")
    a(f"v_lshlrev_b32 {v(vt)}, 7, {v(vt)}")
    a(f"v_min_u32 {v(vt)}, ({end_label} - {start_label} - 4), {v(vt)}")
    a(f"global_load_dword {v(vdst)}, {v(vt)}, s[96:97]")
    a(f"{L}_skip:")

class Overlay:
    def __init__(self, V, big0, big1, pool=(), minbig=8):
        self.V = V; self.n = big0; self.end = big1; self.pool = list(pool); self.minbig = minbig
    def alloc(self, cnt=1, align=1):
        if cnt >= self.minbig:
            self.n = (self.n + align - 1)//align*align; r = self.n; self.n += cnt
            assert self.n <= self.end, "overlay overflow"
            return r
        if cnt == 1 and self.pool: return self.pool.pop(0)
        return self.V.alloc(cnt, align)

TRACE = False
def trace(a, idx):
    if not TRACE: return
    a("s_memtime s[72:73]")
    a("s_waitcnt lgkmcnt(0)")
    a(f"v_writelane_b32 v253, s72, {idx}")
def trace_flush(a, ws_ptr, kidx, who, vt):
    if not TRACE: return
    a(f"s_add_u32 s76, s{ws_ptr}, {O_PROF + 0x100000 + kidx*65536}")
    a(f"s_addc_u32 s77, s{ws_ptr+1}, 0")
    a("s_mov_b32 s78, 65536"); a("s_mov_b32 s79, 0x20000")
    a(f"s_cmp_eq_u32 s20, {who}")
    lab = ".Ltr_skip_%d_%d" % (kidx, len(a.lines))
    a("s_cbranch_scc0 " + lab)
    a(f"v_and_b32 {v(vt)}, 63, v0"); a(f"v_lshlrev_b32 {v(vt)}, 2, {v(vt)}")
    a("s_lshl_b32 s98, s2, 8")
    a(f"buffer_store_dword v253, {v(vt)}, s[76:79], s98 offen")
    a(lab + ":")
```

```python
from gcore import *

class OpK:
    def __init__(self, rows, lds_off):
        self.rows = rows; self.lds_off = lds_off; self.bytes = rows * 128
        self.nper = rows // 32
        assert rows % 32 == 0
    def alloc(self, V, S, NS, nsets=1, role=None):
        self.NS = NS
        if role != "c": self.voff = [V.alloc() for _ in range(self.nper)]
        if role != "l": self.addr = [[[V.alloc() for _ in range(4)] for _ in range(NS)] for _ in range(nsets)]
        self.s_ldsw = S.alloc(); self.s_k = S.alloc()
    def setup_dma(self, a, vlane, swave, vtmp, ld, srowbase=None, rowfn=None):
        t0, t1, t2 = vtmp, vtmp+1, vtmp+2
        rpw = self.rows // 4
        assert rpw % 16 == 0 or self.nper == 1
        a(f"s_mul_i32 s99, {s(swave)}, {rpw}")
        a(f"s_mul_i32 {s(self.s_ldsw)}, {s(swave)}, {self.nper*1024}")
        if rowfn is None:
            if srowbase is not None: a(f"s_add_u32 s99, s99, {s(srowbase)}")
            a(f"v_lshrrev_b32 {v(t0)}, 3, {v(vlane)}")
            a(f"v_lshrrev_b32 {v(t1)}, 4, {v(vlane)}")
            if self.nper == 1 and rpw % 16:
                a(f"s_and_b32 s98, {s(swave)}, 1")
                a(f"s_lshl_b32 s98, s98, 2")
                a(f"v_add_u32 {v(t1)}, s98, {v(t1)}")
            a(f"v_and_b32 {v(t2)}, 7, {v(vlane)}")
            a(f"v_xor_b32 {v(t1)}, {v(t1)}, {v(t2)}")
            a(f"v_add_u32 {v(t0)}, s99, {v(t0)}")
            if ld & (ld-1) == 0: a(f"v_lshlrev_b32 {v(t0)}, {ld.bit_length()-1}, {v(t0)}")
            else: a(f"v_mul_i32_i24 {v(t0)}, {ld}, {v(t0)}")
            a(f"v_lshl_add_u32 {v(self.voff[0])}, {v(t1)}, 4, {v(t0)}")
            if self.nper > 1:
                a(f"v_xor_b32 {v(t1)}, 4, {v(t1)}")
                a(f"v_lshl_add_u32 {v(t2)}, {v(t1)}, 4, {v(t0)}")
            for j in range(1, self.nper):
                src = t2 if j & 1 else self.voff[0]
                a(f"v_add_u32 {v(self.voff[j])}, {8*j*ld - (j%4)*1024}, {v(src)}")
            return
        a(f"v_lshrrev_b32 {v(t2)}, 3, {v(vlane)}")
        a(f"v_add_u32 {v(t2)}, s99, {v(t2)}")
        for j in range(self.nper):
            o = self.voff[j]
            if j: a(f"v_add_u32 {v(t0)}, {8*j}, {v(t2)}")
            else: a(f"v_mov_b32 {v(t0)}, {v(t2)}")
            a(f"v_bfe_u32 {v(t1)}, {v(t0)}, 1, 3")
            a(f"v_and_b32 {v(o)}, 7, {v(vlane)}")
            a(f"v_xor_b32 {v(t1)}, {v(t1)}, {v(o)}")
            rowfn(a, t0)
            if ld & (ld-1) == 0: a(f"v_lshlrev_b32 {v(t0)}, {ld.bit_length()-1}, {v(t0)}")
            else: a(f"v_mul_u32_u24 {v(t0)}, {ld}, {v(t0)}")
            a(f"v_lshl_add_u32 {v(o)}, {v(t1)}, 4, {v(t0)}")
            if j % 4: a(f"v_subrev_u32 {v(o)}, {(j%4)*1024}, {v(o)}")
    def setup_read(self, a, vlane, vtmp, st, vrow0, slot_bytes):
        t0, t1 = vtmp, vtmp+1
        a(f"v_bfe_u32 {v(t0)}, {v(vrow0)}, 1, 3")
        a(f"v_lshrrev_b32 {v(t1)}, 5, {v(vlane)}")
        a(f"v_xor_b32 {v(t0)}, {v(t0)}, {v(t1)}")
        a(f"v_lshlrev_b32 {v(t0)}, 4, {v(t0)}")
        a(f"v_lshl_add_u32 {v(t0)}, {v(vrow0)}, 7, {v(t0)}")
        for ks in range(4):
            if ks: a(f"v_xor_b32 {v(t1)}, {ks*32}, {v(t0)}")
            src = t1 if ks else t0
            for sl in range(self.NS):
                a(f"v_add_u32 {v(self.addr[st][sl][ks])}, {self.lds_off + sl*slot_bytes}, {v(src)}")
    def dma(self, srd, slot_off, masks=None, flags=""):
        out = []
        for j in range(self.nper):
            at = []
            if j % 4 == 0:
                at.append(f"s_add_u32 m0, {s(self.s_ldsw)}, {slot_off + self.lds_off + (j//4)*4096}")
                at.append("s_nop 0")
            if masks and j in masks: at.append(f"s_mov_b64 exec, {s(masks[j],2)}")
            at.append(f"buffer_load_dwordx4 {v(self.voff[j])}, {s(srd,4)}, {s(self.s_k)} offen offset:{(j%4)*1024} lds {flags}")
            if masks and j in masks: at.append("s_mov_b64 exec, -1")
            out.append("\n".join(at))
        return out
    def read(self, dst, slot, ks, tile_rows=0, st=0):
        return [f"ds_read_b128 {v(dst,4)}, {v(self.addr[st][slot][ks])} offset:{tile_rows*128}"]

class OpT:
    def __init__(self, width_elems, lds_off):
        self.W = width_elems * 2; self.lds_off = lds_off; self.bytes = 64 * self.W
        assert self.W in (128, 256, 384, 512)
        self.cpr = self.W // 16
        self.nper = self.bytes // 1024 // 4
    def key_from_row(self, a, dst, row):
        if self.W in (256, 512): a(f"v_and_b32 {v(dst)}, 3, {v(row)}")
        else: a(f"v_bfe_u32 {v(dst)}, {v(row)}, 1, 1")
    def alloc(self, V, S, NS, ntiles, role=None):
        self.NS = NS
        if role != "c": self.voff = [V.alloc() for _ in range(self.nper)]
        if role != "l": self.addr = [[V.alloc() for _ in range(ntiles)] for _ in range(NS)]
        self.s_ldsw = S.alloc(); self.s_k = S.alloc()
    def setup_dma(self, a, vlane, swave, vtmp, ld, colbase_s=None):
        t0, t1, t2 = vtmp, vtmp+1, vtmp+2
        a(f"s_mul_i32 {s(self.s_ldsw)}, {s(swave)}, {self.nper*1024}")
        period = 3 if self.cpr == 24 else 1
        rows_per = period * 64 // self.cpr
        rows_wave = self.nper * 64 // self.cpr
        if self.W in (256, 512): assert rows_per % 4 == 0 or self.W == 512
        a(f"s_mul_i32 s99, {s(swave)}, {rows_wave*ld}")
        if colbase_s is not None: a(f"s_add_u32 s99, s99, {s(colbase_s)}")
        npat = period
        if self.W == 512: npat = 2
        for j in range(min(npat, self.nper)):
            o = self.voff[j]
            if self.cpr == 24:
                if j: a(f"v_add_u32 {v(t0)}, {64*j}, {v(vlane)}")
                src = t0 if j else vlane
                a(f"v_mul_u32_u24 {v(t1)}, 2731, {v(src)}")
                a(f"v_lshrrev_b32 {v(t1)}, 16, {v(t1)}")
                a(f"v_mul_u32_u24 {v(t2)}, 24, {v(t1)}")
                a(f"v_sub_u32 {v(t0)}, {v(src)}, {v(t2)}")
            else:
                sh = self.cpr.bit_length() - 1
                a(f"v_lshrrev_b32 {v(t1)}, {sh}, {v(vlane)}")
                if j: a(f"v_add_u32 {v(t1)}, {j*rows_per}, {v(t1)}")
                a(f"v_and_b32 {v(t0)}, {self.cpr-1}, {v(vlane)}")
            assert rows_wave % 4 == 0
            self.key_from_row(a, t2, t1)
            a(f"v_lshlrev_b32 {v(t2)}, 2, {v(t2)}")
            a(f"v_xor_b32 {v(t0)}, {v(t0)}, {v(t2)}")
            a(f"v_mul_u32_u24 {v(t1)}, {ld}, {v(t1)}")
            a(f"v_lshl_add_u32 {v(o)}, {v(t0)}, 4, {v(t1)}")
            a(f"v_add_u32 {v(o)}, s99, {v(o)}")
        for j in range(self.nper-1, -1, -1):
            b = j % npat
            step = (j - b) // npat * (rows_per * (npat if self.W == 512 else 1))
            c = step*ld - (j%4)*1024
            if j >= npat or c:
                a(f"v_add_u32 {v(self.voff[j])}, {c & 0xffffffff}, {v(self.voff[b])}")
    def setup_read(self, a, vlane, vtmp, s_seg0, slot_bytes):
        t0, t1, t2, t3 = vtmp, vtmp+1, vtmp+2, vtmp+3
        a(f"v_bfe_u32 {v(t0)}, {v(vlane)}, 2, 2")
        a(f"v_lshrrev_b32 {v(t1)}, 5, {v(vlane)}")
        a(f"v_lshl_add_u32 {v(t0)}, {v(t1)}, 3, {v(t0)}")
        self.key_from_row(a, t1, t0)
        a(f"v_mul_u32_u24 {v(t0)}, {self.W}, {v(t0)}")
        a(f"v_bfe_u32 {v(t2)}, {v(vlane)}, 4, 1")
        a(f"v_lshl_add_u32 {v(t0)}, {v(t2)}, 5, {v(t0)}")
        a(f"v_and_b32 {v(t2)}, 3, {v(vlane)}")
        a(f"v_lshl_add_u32 {v(t0)}, {v(t2)}, 3, {v(t0)}")
        for t in range(len(self.addr[0])):
            if isinstance(s_seg0, int) and s_seg0 < 0:
                a(f"v_xor_b32 {v(t3)}, {(-s_seg0-1)+t}, {v(t1)}")
            else:
                a(f"s_add_u32 s99, {s(s_seg0)}, {t}")
                a(f"v_xor_b32 {v(t3)}, s99, {v(t1)}")
            a(f"v_lshl_add_u32 {v(t3)}, {v(t3)}, 6, {v(t0)}")
            for sl in range(self.NS):
                a(f"v_add_u32 {v(self.addr[sl][t])}, {self.lds_off + sl*slot_bytes}, {v(t3)}")
    def dma(self, srd, slot_off, flags=""):
        out = []
        for j in range(self.nper):
            at = []
            if j % 4 == 0:
                at.append(f"s_add_u32 m0, {s(self.s_ldsw)}, {slot_off + self.lds_off + (j//4)*4096}")
                at.append("s_nop 0")
            at.append(f"buffer_load_dwordx4 {v(self.voff[j])}, {s(srd,4)}, {s(self.s_k)} offen offset:{(j%4)*1024} lds {flags}")
            out.append("\n".join(at))
        return out
    def read(self, dst, slot, t, ks):
        o = ks * 16 * self.W
        return [f"ds_read_b64_tr_b16 {v(dst,2)}, {v(self.addr[slot][t])} offset:{o}",
                f"ds_read_b64_tr_b16 {v(dst+2,2)}, {v(self.addr[slot][t])} offset:{o + 4*self.W}"]

def spread(main, fill):
    out = []; n = len(main); k = 0
    for i, m in enumerate(main):
        out.append(m)
        take = -(-(len(fill) - k) // (n - i))
        for _ in range(take):
            out.append(fill[k]); k += 1
    return out

def split(lst, parts):
    n = len(lst); r = []; k = 0
    for p in range(parts):
        take = -(-(n - k) // (parts - p)); r.append(lst[k:k+take]); k += take
    return r

def emit_main(a, n, NS, slot_bytes, dma_fn, ndma, kadv_fn, reads_fn, mfma_fn, extra=None, vm_extra=None, stage_head=None, npre=2):
    extra = extra or {}; vm_extra = vm_extra or {}
    d = []
    for st in range(npre, NS):
        d += dma_fn(st*slot_bytes) + kadv_fn()
    pend = split(d, 3) if d else []
    for i in range(n):
        slot = i % NS
        if stage_head: stage_head(a, i)
        for ks in range(4):
            cur = ks & 1
            m = mfma_fn(i, ks, cur)
            ex = extra.get((i, ks), [])
            if ks < 3:
                a("s_waitcnt lgkmcnt(0)")
                fill = reads_fn(slot, ks+1, cur ^ 1) + (pend.pop(0) if pend else []) + ex
                for l in spread(m, fill): a(l)
            else:
                a("s_waitcnt lgkmcnt(0)")
                if i == n-1:
                    for l in spread(m, ex): a(l)
                else:
                    newer = min(NS-2, n-2-i)
                    a(m[0])
                    a(f"s_waitcnt vmcnt({newer*ndma + vm_extra.get(i,0)})")
                    a("s_barrier")
                    if i + NS < n:
                        d = dma_fn(slot*slot_bytes)
                        parts = split(d, 4)
                        parts[3] = parts[3] + kadv_fn()
                        pend = parts
                    else:
                        pend = []
                    fill = reads_fn((i+1) % NS, 0, 0) + (pend.pop(0) if pend else []) + ex
                    for l in spread(m[1:], fill) if len(m) > 1 else fill: a(l)

def store_rows(a, V, vlane, sW, t, RB, RS, lds_base, rows_per_wave, ld, srd, s_base, buf, nbuf, sTmp, rowlimit=None, sf="", s_rowlimit=None, nw=4):
    cpr = RB // 16
    m = V.mark()
    nst = rows_per_wave * cpr // 64
    assert rows_per_wave * cpr % 64 == 0
    if cpr in (24, 12):
        period = 3; magic = 2731 if cpr == 24 else 5462
    else:
        period = 1
    rows_per = period * 64 // cpr
    npat = min(period, nst)
    vRd = [V.alloc() for _ in range(npat)]; vGo = [V.alloc() for _ in range(npat)]; vRow = [V.alloc() for _ in range(npat)]
    for j in range(npat):
        if period == 3:
            if j: a(f"v_add_u32 {v(t)}, {64*j}, {v(vlane)}")
            src = t if j else vlane
            a(f"v_mul_u32_u24 {v(t+1)}, {magic}, {v(src)}")
            a(f"v_lshrrev_b32 {v(t+1)}, 16, {v(t+1)}")
            a(f"v_mul_u32_u24 {v(t+2)}, {cpr}, {v(t+1)}")
            a(f"v_sub_u32 {v(t)}, {v(src)}, {v(t+2)}")
        else:
            sh = cpr.bit_length() - 1
            a(f"v_lshrrev_b32 {v(t+1)}, {sh}, {v(vlane)}")
            a(f"v_and_b32 {v(t)}, {cpr-1}, {v(vlane)}")
        a(f"s_mul_i32 s99, {s(sW)}, {rows_per_wave}")
        a(f"v_add_u32 {v(vRow[j])}, s99, {v(t+1)}")
        a(f"v_mul_u32_u24 {v(t+2)}, {RS}, {v(vRow[j])}")
        a(f"v_lshl_add_u32 {v(vRd[j])}, {v(t)}, 4, {v(t+2)}")
        if lds_base: a(f"v_add_u32 {v(vRd[j])}, {lds_base}, {v(vRd[j])}")
        a(f"v_mul_u32_u24 {v(t+2)}, {ld}, {v(vRow[j])}")
        a(f"v_lshl_add_u32 {v(t+2)}, {v(t)}, 4, {v(t+2)}")
        a(f"v_add_u32 {v(vGo[j])}, {s(s_base)}, {v(t+2)}")
    items = [(i // npat, i % npat) for i in range(nst)]
    for b0 in range(0, len(items), nbuf):
        grp = items[b0:b0+nbuf]
        for i2, (p, j) in enumerate(grp):
            a(f"ds_read_b128 {v(buf+4*i2,4)}, {v(vRd[j])} offset:{p*rows_per*RS}")
        for i2, (p, j) in enumerate(grp):
            masked = (rowlimit is not None and (p+1)*rows_per + (nw-1)*rows_per_wave > rowlimit) or s_rowlimit is not None
            if masked:
                a(f"v_add_u32 {v(t)}, {p*rows_per}, {v(vRow[j])}")
                a(f"v_cmp_gt_u32 vcc, {s(s_rowlimit) if s_rowlimit is not None else rowlimit}, {v(t)}")
                a(f"v_mov_b32 {v(t+1)}, 0x80000000")
                a(f"v_add_u32 {v(t+2)}, {p*rows_per*ld}, {v(vGo[j])}")
                a(f"v_cndmask_b32 {v(t+2)}, {v(t+1)}, {v(t+2)}, vcc")
                a(f"s_waitcnt lgkmcnt({len(grp)-1-i2})")
                a(f"buffer_store_dwordx4 {v(buf+4*i2,4)}, {v(t+2)}, {s(srd,4)}, 0 offen {sf}")
            else:
                a(f"s_mov_b32 {s(sTmp)}, {p*rows_per*ld}")
                a(f"s_waitcnt lgkmcnt({len(grp)-1-i2})")
                a(f"buffer_store_dwordx4 {v(buf+4*i2,4)}, {v(vGo[j])}, {s(srd,4)}, {s(sTmp)} offen {sf}")
        if b0 + nbuf < len(items): a("s_nop 1")
    V.release(m)


def distribute(extra, atoms, s0, s1, ks_list=(0,1,2,3)):
    slots = [(st, ks) for st in range(s0, s1) for ks in ks_list]
    parts = split(atoms, len(slots))
    for sl, p in zip(slots, parts):
        extra[sl] = extra.get(sl, []) + p

class Rec:
    def __init__(self): self.atoms = []
    def __call__(self, sx=""):
        ls = [l.strip() for l in sx.split("\n") if l.strip()]
        if ls: self.atoms.append("\n".join(ls))
    def c(self, x): pass
    def join_last(self, n):
        j = "\n".join(self.atoms[-n:]); del self.atoms[-n:]; self.atoms.append(j)
```

```python
from gcore import *
import gcore
from gemm2 import OpK, OpT, spread, split, distribute, Rec

class Vm:
    def __init__(self): self.ops = []
    def issue(self, tag, n=1): self.ops += [tag]*n
    def wait(self, tag):
        idx = [i for i, t in enumerate(self.ops) if t == tag]
        assert idx, tag
        n = len(self.ops) - 1 - idx[-1]
        assert n <= 63, n
        return n

def front(main, reads, ex, per=3):
    out = []; n = len(main); k = 0; e = 0
    for i, m in enumerate(main):
        out.append(m)
        take = min(per, len(reads) - k) if i < n-1 else len(reads) - k
        out += reads[k:k+take]; k += take
        te = -(-(len(ex) - e) // (n - i))
        out += ex[e:e+te]; e += te
    return out

FRONT = [3]
def emit_compute(a, n, NS, reads_fn, mfma_fn, extra=None, depth=1, pass_stage=False):
    extra = extra or {}
    nsets = depth + 1
    G = 4*n
    def rd(g): return reads_fn((g // 4) % NS, g % 4, g % nsets, g // 4) if pass_stage else reads_fn((g // 4) % NS, g % 4, g % nsets)
    nr = sum(1 for l in rd(0) if l.startswith("ds_"))
    a("s_barrier")
    for g in range(depth):
        for l in rd(g): a(l)
    for g in range(G):
        i, ks = divmod(g, 4)
        m = mfma_fn(i, ks, g % nsets)
        ex = extra.get((i, ks), [])
        ahead = min(depth-1, G-1-g)
        nxt = g + depth
        need_bar = nxt < G and nxt % 4 == 0
        prev_ex = any(x.startswith("ds_") or "\nds_" in x for gg in range(max(0, g-depth), g) for x in extra.get(divmod(gg, 4), []))
        cnt = 0 if prev_ex else min(15, ahead*nr)
        a(f"s_waitcnt lgkmcnt({cnt})")
        rds = rd(nxt) if nxt < G else []
        if need_bar:
            a(m[0]); a("s_barrier")
            for l in (front(["s_nop 0"] + m[1:], rds, ex, FRONT[0])[1:] if len(m) > 1 else rds + ex): a(l)
        else:
            for l in front(m, rds, ex, FRONT[0]): a(l)

def emit_loader(a, vm, n, NS, slot_bytes, dma_fn, ndma, kadv_fn, bg=None, npre=2, lag=0, mix=None, ahead=2):
    bg = bg or {}; mix = mix or {}
    def emit(at):
        for x in at:
            if callable(x): x(a)
            else: a(x)
    issued = 0
    def stage_atoms():
        nonlocal issued
        at = dma_fn((issued % NS)*slot_bytes)
        vm.issue(("st", issued), ndma)
        kv = kadv_fn()
        issued += 1
        return at[:-1] + [at[-1] + "\n" + "\n".join(kv)] if at else kv
    for st in range(min(npre, n)):
        for l in stage_atoms(): a(l)
    emit(bg.get(-1, []))
    for i in range(n):
        gcore.trace(a, 3*i)
        a(f"s_waitcnt vmcnt({vm.wait(('st', i))})")
        gcore.trace(a, 3*i+1)
        a("s_barrier")
        gcore.trace(a, 3*i+2)
        free_upto = max(NS, i - lag + NS)
        d = []
        while issued < min(n, free_upto, i + ahead + 1): d += stage_atoms()
        if i in mix:
            r = Rec(); mix[i](r)
            if d:
                for l in spread(d, r.atoms): a(l)
            else:
                for l in r.atoms: a(l)
        else:
            for l in d: a(l)
        emit(bg.get(i, []))
```

```python
from gcore import *
import gcore
from gemm2 import OpK, OpT, spread, split, distribute, Rec, store_rows
from gemm3 import *
from conv import *

O_Y   = 0;         Y_LD = 5120;  Y_BYTES = 2000*Y_LD
O_GS  = 0xA00000;  GS_BYTES = 8*2048*8
O_XS  = 0xA20000;  XS_BYTES = 16*128*8
O_P   = 0xB00000;  P_LD = 2048;  P_BYTES = 2*1024*P_LD
O_ML  = 0xF00000;  ML_BYTES = 2048*64
O_VT  = 0x1000000; VT_LD = 2048; VT_BYTES = 2*512*VT_LD
O_Z   = 0x1300000; Z_LD = 1024;  Z_BYTES = 2000*Z_LD
O_MC  = 0x1500000; MC_LD = 2048; MC_BYTES = 2000*MC_LD
CSC = 512**-0.5 * 1.4426950408889634
MFMA = "v_mfma_f32_32x32x16_bf16"
OPT = {}

def srd_from(a, dst, ptr, size, off=0):
    if off:
        a(f"s_add_u32 {s(dst)}, {s(ptr)}, {off}"); a(f"s_addc_u32 {s(dst+1)}, {s(ptr+1)}, 0")
    else:
        a(f"s_mov_b32 {s(dst)}, {s(ptr)}"); a(f"s_mov_b32 {s(dst+1)}, {s(ptr+1)}")
    a(f"s_mov_b32 {s(dst+2)}, {size}"); a(f"s_mov_b32 {s(dst+3)}, 0x20000")
def batch_srd(a, dst, sB, off, stride, nbytes):
    a(f"s_mul_i32 s38, {s(sB)}, {stride}")
    a(f"s_add_u32 s{dst}, s30, s38"); a(f"s_addc_u32 s{dst+1}, s31, 0")
    if off: a(f"s_add_u32 s{dst}, s{dst}, {off}"); a(f"s_addc_u32 s{dst+1}, s{dst+1}, 0")
    a(f"s_mov_b32 s{dst+2}, {nbytes}"); a(f"s_mov_b32 s{dst+3}, 0x20000")
def halfop(a, op, x, t):
    a(f"v_mov_b32 {v(t)}, {v(x)}"); a("s_nop 1")
    a(f"v_permlane32_swap_b32 {v(x)}, {v(t)}"); a("s_nop 1")
    a(f"{op} {v(x)}, {v(x)}, {v(t)}")
FUSED = [False]
O_BAR = 0x2F00000
NEXT = {0: "k2_begin", 1: "k3_begin", 2: "k4_begin"}
def finish(a, kidx, vt, who):
    if gcore.PROF:
        a("s_waitcnt vmcnt(0)"); stamp(a, 6)
        gcore.prof_flush(a, 30, kidx, 7, vt, who)
        if who >= 4: gcore.trace_flush(a, 30, kidx, who, vt)
    if FUSED[0] and kidx < 3:
        a("s_waitcnt vmcnt(0) lgkmcnt(0)")
        a("s_barrier")
        if who == 0:
            lab = f".Larr_{kidx}_{len(a.lines)}"
            a(f"s_cmp_eq_u32 s20, 0"); a(f"s_cbranch_scc0 {lab}")
            if kidx == 0:
                a("s_load_dwordx2 s[76:77], s[0:1], 72"); a("s_and_b32 s98, s2, 1"); a("s_lshl_b32 s98, s98, 6")
                a("s_waitcnt lgkmcnt(0)"); a("s_mov_b32 s78, 256")
            else:
                a(f"s_add_u32 s76, s30, {O_BAR + (kidx-1)*1024}"); a("s_addc_u32 s77, s31, 0")
                a("s_and_b32 s98, s2, 7"); a("s_lshl_b32 s98, s98, 7"); a("s_mov_b32 s78, 1024")
            a("s_mov_b32 s79, 0x20000")
            a(f"v_mov_b32 {v(vt)}, s98"); a(f"v_mov_b32 {v(vt+1)}, 1")
            a("s_mov_b64 exec, 1")
            a(f"buffer_atomic_add {v(vt+1)}, {v(vt)}, s[76:79], 0 offen sc1")
            a("s_mov_b64 exec, -1")
            a(f"{lab}:")
        a(f"s_branch {NEXT[kidx]}")
    else:
        a("s_endpgm")

def gate(a, kidx, loader, vt):
    if not FUSED[0]: return
    if loader:
        lab = f".Lgate_{kidx}_{len(a.lines)}"
        a(f"s_cmp_eq_u32 s20, 4"); a(f"s_cbranch_scc0 {lab}_d")
        a("s_load_dwordx2 s[72:73], s[0:1], 72")
        a("s_mov_b32 s79, 0x20000")
        a("s_waitcnt lgkmcnt(0)")
        a("s_cmp_lt_u32 s2, 8"); a(f"s_cbranch_scc0 {lab}_m")
        if kidx == 1:
            a("s_mov_b32 s76, s72"); a("s_mov_b32 s77, s73"); a("s_mov_b32 s78, 256")
            nsh, sh, tgt = 2, 6, 128
        else:
            a(f"s_add_u32 s76, s30, {O_BAR + (kidx-2)*1024}"); a("s_addc_u32 s77, s31, 0"); a("s_mov_b32 s78, 1024")
            nsh, sh, tgt = 8, 7, 32
        a(f"v_and_b32 {v(vt)}, 63, v0"); a(f"v_lshlrev_b32 {v(vt)}, {sh}, {v(vt)}")
        a(f"s_mov_b64 exec, {(1 << nsh) - 1}")
        a("s_mov_b32 s98, 0")
        a(f"{lab}_p:")
        a(f"buffer_load_dword {v(vt+1)}, {v(vt)}, s[76:79], 0 offen sc1")
        a("s_waitcnt vmcnt(0)")
        a(f"v_cmp_eq_u32 vcc, {tgt}, {v(vt+1)}")
        a("s_add_u32 s98, s98, 1"); a("s_nop 3")
        a("s_cmp_eq_u64 vcc, exec"); a(f"s_cbranch_scc1 {lab}_o")
        a(f"s_sleep {OPT.get('slp', 2)}")
        a("s_cmp_lt_u32 s98, 0x20000"); a(f"s_cbranch_scc1 {lab}_p")
        a(f"{lab}_o:")
        rel_srd(a, kidx)
        a("s_mov_b64 exec, 1")
        a(f"v_mov_b32 {v(vt)}, s98" if False else f"s_and_b32 s98, s2, 7"); rel_off(a, kidx)
        a(f"v_mov_b32 {v(vt)}, s98"); a(f"v_mov_b32 {v(vt+1)}, 1")
        a(f"buffer_store_dword {v(vt+1)}, {v(vt)}, s[76:79], 0 offen sc1")
        a("s_mov_b64 exec, -1")
        a(f"s_branch {lab}_d")
        a(f"{lab}_m:")
        rel_srd(a, kidx)
        a("s_mov_b64 exec, 1")
        a("s_and_b32 s98, s2, 7"); rel_off(a, kidx)
        a(f"v_mov_b32 {v(vt)}, s98")
        a("s_mov_b32 s98, 0")
        a(f"{lab}_q:")
        a(f"buffer_load_dword {v(vt+1)}, {v(vt)}, s[76:79], 0 offen sc1")
        a("s_waitcnt vmcnt(0)")
        a(f"v_readfirstlane_b32 s99, {v(vt+1)}")
        a("s_add_u32 s98, s98, 1"); a("s_nop 3")
        a("s_cmp_eq_u32 s99, 1"); a(f"s_cbranch_scc1 {lab}_r")
        a(f"s_sleep {OPT.get('slp2', 4)}")
        a("s_cmp_lt_u32 s98, 0x20000"); a(f"s_cbranch_scc1 {lab}_q")
        a(f"{lab}_r:")
        a("s_mov_b64 exec, -1")
        a(f"{lab}_d:")
    a("s_barrier")
def rel_srd(a, kidx):
    if kidx == 1:
        a("s_mov_b32 s76, s72"); a("s_mov_b32 s77, s73"); a("s_mov_b32 s78, 256")
    else:
        a(f"s_add_u32 s76, s30, {O_BAR + 2048 + (kidx-2)*1024}"); a("s_addc_u32 s77, s31, 0"); a("s_mov_b32 s78, 1024")
def rel_off(a, kidx):
    if kidx == 1: a("s_lshl_b32 s98, s98, 4"); a("s_add_u32 s98, s98, 128")
    else: a("s_lshl_b32 s98, s98, 7")

SW = 20
SL = 25

class OutPass:
    def __init__(self, V, nrows):
        self.nrows = nrows; self.n = -(-nrows // 64)
        self.vRd = [V.alloc() for _ in range(self.n)]; self.vZo = [V.alloc() for _ in range(self.n)]
    def setup(self, a, t, OUT, sT0, sCol, ld_shift):
        a(f"v_lshrrev_b32 {v(t)}, 3, v0")
        a(f"v_and_b32 {v(t+1)}, 7, v0")
        a(f"v_lshrrev_b32 {v(t+2)}, 4, {v(t)}")
        a(f"v_add_u32 {v(t+3)}, {s(sT0)}, {v(t)}")
        a(f"v_lshlrev_b32 {v(t+3)}, {ld_shift}, {v(t+3)}")
        a(f"v_lshl_add_u32 {v(t+3)}, {v(t+1)}, 4, {v(t+3)}")
        a(f"v_add_u32 {v(self.vZo[0])}, {s(sCol)}, {v(t+3)}")
        for i in range(1, self.n):
            a(f"v_add_u32 {v(self.vZo[i])}, {(64*i) << ld_shift}, {v(self.vZo[0])}")
            if 64*(i+1) > self.nrows:
                a(f"v_mov_b32 {v(t+3)}, 0x80000000")
                a(f"v_cmp_gt_u32 vcc, {self.nrows - 64*i}, {v(t)}\ns_nop 1\nv_cndmask_b32 {v(self.vZo[i])}, {v(t+3)}, {v(self.vZo[i])}, vcc")
        for i in range(self.n):
            a(f"v_add_u32 {v(t+3)}, {4*i}, {v(t+2)}")
            a(f"v_and_b32 {v(t+3)}, 7, {v(t+3)}")
            a(f"v_xor_b32 {v(t+3)}, {v(t+3)}, {v(t+1)}")
            a(f"v_lshlrev_b32 {v(t+3)}, 4, {v(t+3)}")
            a(f"v_lshl_add_u32 {v(t+3)}, {v(t)}, 7, {v(t+3)}")
            a(f"v_add_u32 {v(self.vRd[i])}, {OUT + i*64*128}, {v(t+3)}")
    def reads(self, a, vD):
        for i in range(self.n): a(f"ds_read_b128 {v(vD+4*i,4)}, {v(self.vRd[i])}")
    def emit(self, a, vD, srd, sf):
        self.reads(a, vD)
        for i in range(self.n):
            a(f"s_waitcnt lgkmcnt({self.n-1-i})")
            a(f"buffer_store_dwordx4 {v(vD+4*i,4)}, {v(self.vZo[i])}, {s(srd,4)}, 0 offen {sf}")

def l2_prefetch(a, vm, t, items, once=False):
    if OPT.get("nowpf"): return
    a(f"s_lshl_b32 s98, {'s2' if once else 's33'}, 2"); a(f"s_add_u32 s98, s98, {s(SL)}"); a("s_lshl_b32 s98, s98, 13")
    a(f"v_and_b32 {v(t)}, 63, v0"); a(f"v_lshlrev_b32 {v(t)}, 7, {v(t)}"); a(f"v_add_u32 {v(t)}, s98, {v(t)}")
    for off, nb in items:
        a(f"s_load_dwordx2 s[76:77], s[0:1], {off}")
        a(f"s_mov_b32 s78, {nb}"); a("s_mov_b32 s79, 0x20000")
        a("s_waitcnt lgkmcnt(0)")
        a(f"buffer_load_dword v252, {v(t)}, s[76:79], 0 offen")
        vm.issue("pf")

def role_split(a, name):
    a(f"s_and_b32 {s(SL)}, {s(SW)}, 3")
    a(f"s_cmp_ge_u32 {s(SW)}, 4")
    if OPT.get("swap"): a(f"s_cbranch_scc0 {name}_loader"); a(f"s_mov_b32 {s(SW)}, {s(SL)}")
    else: a(f"s_cbranch_scc1 {name}_loader")
def loader_start(a):
    if OPT.get("prio"): a(f"s_setprio {OPT['prio']}")

def k4(sf=""):
    a = Asm(); stamp(a, 0)
    a("""
    s_cmp_ge_u32 s2, 256
    s_cbranch_scc1 k4_exit
    """)
    a("k4_begin:")
    if FUSED[0]: stamp(a, 0)
    a("""
    s_load_dwordx2 s[30:31], s[0:1], 80       ; ws
    s_load_dwordx4 s[40:43], s[0:1], 56
    s_load_dwordx2 s[4:5], s[0:1], 0          ; x
    v_lshrrev_b32 v1, 6, v0
    s_and_b32 s32, s2, 7
    s_lshr_b32 s33, s2, 3
    v_readfirstlane_b32 s20, v1
    s_lshr_b32 s34, s33, 3
    s_lshl_b32 s21, s32, 2
    s_add_u32 s21, s21, s34
    s_and_b32 s22, s33, 7                     ; te
    s_lshl_b32 s24, s22, 1
    s_add_u32 s24, s24, s34
    s_and_b32 s24, s24, 15                    ; c0
    s_lshl_b32 s26, s21, 6
    s_lshl_b32 s27, s22, 7
    """)
    if OPT.get("rot4"): a("s_lshl_b32 s24, s22, 1\ns_lshl_b32 s35, s34, 2\ns_add_u32 s24, s24, s35\ns_and_b32 s24, s24, 15")
    if OPT.get("norot"): a("s_mov_b32 s24, 0")
    NS = OPT.get("ns", 5); n = 16
    sR, sCol, sC0 = 26, 27, 24
    srdM, srdW, srdX, srdO = 8, 12, 16, 44
    RS = 144
    def mkops(V, S, role):
        opW = OpT(64, 0); opM = OpK(64, opW.bytes)
        opW.alloc(V, S, NS, 1, role=role); opM.alloc(V, S, NS, role=role)
        return opW, opM
    def tail(a, V, S, vlane, t, buf):
        sT = S.alloc(); sBase = S.alloc()
        a("s_barrier")
        a(f"s_lshl_b32 {s(sBase)}, {s(sR)}, 10")
        a(f"s_add_u32 {s(sBase)}, {s(sBase)}, {s(sCol)}")
        store_rows(a, V, vlane, SW, t, 128, RS, 0, 8, 1024, srdO, sBase, buf, 8, sT, sf=sf)
    role_split(a, "k4")
    V = Regs(1, 252, "v"); S = Regs(52, 72, "s")
    vlane = V.alloc(); t = V.alloc(8, 4)
    opW, opM = mkops(V, S, 'c'); slot = opW.bytes + opM.bytes
    sWm = S.alloc(); sWn = S.alloc()
    acc = V.alloc(16, 4); frb = V.alloc(32, 4); fr = [frb+8*k for k in range(4)]; vXr = V.alloc(8, 2)
    a(f"v_and_b32 {v(vlane)}, 63, v0")
    a(f"s_and_b32 {s(sWm)}, {s(SW)}, 1")
    a(f"s_lshr_b32 {s(sWn)}, {s(SW)}, 1")
    vrow = V.alloc(); vXo = V.alloc(); vStg = V.alloc()
    a(f"v_and_b32 {v(t)}, 31, {v(vlane)}")
    a(f"s_lshl_b32 s99, {s(sWn)}, 5")
    a(f"v_add_u32 {v(vrow)}, s99, {v(t)}")
    opM.setup_read(a, vlane, t, 0, vrow, slot)
    opW.setup_read(a, vlane, t, sWm, slot)
    a(f"v_add_u32 {v(t)}, {s(sR)}, {v(vrow)}")
    a(f"v_lshlrev_b32 {v(t)}, 10, {v(t)}")
    a(f"v_lshrrev_b32 {v(t+1)}, 5, {v(vlane)}")
    a(f"v_lshl_add_u32 {v(t)}, {v(t+1)}, 3, {v(t)}")
    a(f"s_lshl_b32 s99, {s(sWm)}, 6"); a(f"s_add_u32 s99, s99, {s(sCol)}")
    a(f"v_add_u32 {v(vXo)}, s99, {v(t)}")
    a(f"v_mul_u32_u24 {v(vStg)}, {RS}, {v(vrow)}")
    a(f"v_lshl_add_u32 {v(vStg)}, {v(t+1)}, 3, {v(vStg)}")
    a(f"s_lshl_b32 s99, {s(sWm)}, 6"); a(f"v_add_u32 {v(vStg)}, s99, {v(vStg)}")
    a("s_waitcnt lgkmcnt(0)")
    srd_from(a, srdX, 4, SIZES[X]); srd_from(a, srdO, 42, SIZES[OUT])
    for q in range(4): a(f"buffer_load_dwordx2 {v(vXr+2*q,2)}, {v(vXo)}, {s(srdX,4)}, 0 offen offset:{16*q}")
    stamp(a, 1)
    gate(a, 3, False, t)
    def reads(sl, ks, st): return opW.read(fr[st], sl, 0, ks) + opM.read(fr[st]+4, sl, ks)
    def mfma(i, ks, st):
        if OPT.get("nomfma"): return ["s_nop 0"]
        return [f"{MFMA} {v(acc,16)}, {v(fr[st],4)}, {v(fr[st]+4,4)}, " + ("0" if (i == 0 and ks == 0) else v(acc,16))]
    DEP = OPT.get('depth', 3)
    emit_compute(a, n, NS, reads, mfma, depth=DEP)
    stamp(a, 3)
    vP = V.alloc(8, 2); vU = V.alloc(4, 2)
    a("s_waitcnt vmcnt(0)"); a("s_nop 7")
    a("s_barrier")
    for q in range(4):
        for d in range(2):
            x_ = vXr + 2*q + d; r0 = acc + 4*q + 2*d
            a(f"v_lshlrev_b32 {v(vU)}, 16, {v(x_)}")
            a(f"v_and_b32 {v(vU+1)}, 0xffff0000, {v(x_)}")
            a(f"v_pk_add_f32 {v(r0,2)}, {v(r0,2)}, {v(vU,2)}")
            a(f"v_cvt_pk_bf16_f32 {v(vP+2*q+d)}, {v(r0)}, {v(r0+1)}")
        a(f"ds_write_b64 {v(vStg)}, {v(vP+2*q,2)} offset:{q*16}")
    a("s_waitcnt lgkmcnt(0)")
    stamp(a, 4)
    tail(a, V, S, vlane, t, frb)
    stamp(a, 5); finish(a, 3, t, 0)
    a("k4_loader:"); loader_start(a)
    V = Regs(1, 252, "v"); S = Regs(52, 72, "s")
    vlane = V.alloc(); t = V.alloc(8, 4)
    opW, opM = mkops(V, S, 'l'); sKc = S.alloc()
    a(f"v_and_b32 {v(vlane)}, 63, v0")
    opM.setup_dma(a, vlane, SL, t, MC_LD, srowbase=sR)
    opW.setup_dma(a, vlane, SL, t, 1024, colbase_s=sCol)
    def ksets(): return [f"s_lshl_b32 {s(opM.s_k)}, {s(sKc)}, 7", f"s_lshl_b32 {s(opW.s_k)}, {s(sKc)}, 16"]
    def kadv(): return [f"s_add_u32 {s(sKc)}, {s(sKc)}, 1\ns_and_b32 {s(sKc)}, {s(sKc)}, 15\n" + "\n".join(ksets())]
    a(f"s_mov_b32 {s(sKc)}, {s(sC0)}")
    for l in ksets(): a(l)
    a("s_waitcnt lgkmcnt(0)")
    srd_from(a, srdM, 30, MC_BYTES, O_MC); srd_from(a, srdW, 40, SIZES[WM]); srd_from(a, srdO, 42, SIZES[OUT])
    stamp(a, 1)
    gate(a, 3, True, t); stamp(a, 2)
    if OPT.get("lat"):
        a(f"buffer_load_dword v250, {v(opM.voff[0])}, {s(srdM,4)}, {s(opM.s_k)} offen"); a("s_waitcnt vmcnt(0)"); stamp(a, 2)
        a(f"buffer_load_dword v250, {v(opW.voff[0])}, {s(srdW,4)}, {s(opW.s_k)} offen"); a("s_waitcnt vmcnt(0)"); stamp(a, 4)
        a(f"buffer_load_dword v250, {v(opM.voff[1])}, {s(srdM,4)}, {s(opM.s_k)} offen"); a("s_waitcnt vmcnt(0)"); stamp(a, 5)
    vm = Vm()
    def dma(so): return opM.dma(srdM, so) + opW.dma(srdW, so)
    bg = {}
    if gcore.CODEPF: bg[0] = [lambda a: code_prefetch(a, "k4_kernel", "k4_exit", 33, SL, 255, 254)]
    emit_loader(a, vm, n, NS, slot, dma, opM.nper + opW.nper, kadv, bg=bg, lag=(1 if OPT.get('depth', 3) > 1 else 0), npre=OPT.get('k4pre', 3), ahead=OPT.get('k4ahead', 3))
    stamp(a, 3)
    buf = V.alloc(32, 4)
    a("s_barrier")
    tail(a, V, S, vlane, t, buf)
    finish(a, 3, t, 4)
    a("k4_exit:"); a("s_endpgm")
    return ("k4_kernel", a.text(), 256, 100, None), NS*slot

def k3_PV(a, sf):
    name = "k3P"
    DEP = OPT.get("k3pd", 3)
    NS = OPT.get("k3pns", 4); n = 16
    sB, sTt, sTc, sT0, sCol = 21, 22, 23, 26, 27
    srdP, srdVT, srdML, srdDW, srdMC = 8, 12, 16, 44, 48
    slot = 64*128 + 128*128
    FT = NS*slot
    TB = FT + 4096
    GT = TB + TB_BYTES
    OUT = 0
    lds_total = GT + 64*384
    a(f"s_mul_i32 {s(sT0)}, {s(sTt)}, 96")
    a(f"s_lshl_b32 {s(sCol)}, {s(sTc)}, 7")
    role_split(a, name)
    def mkops(V, S, role):
        opV = OpK(64, 0); opP = OpK(128, opV.bytes)
        opV.alloc(V, S, NS, role=role); opP.alloc(V, S, NS, role=role)
        return opV, opP
    def tail(a, V, OV, vlane, t, vD):
        cv = Conv(OV, GT, 384, TB, OUT, residual=True, nch=8)
        op = OutPass(OV, 96)
        return cv, op
    V = Regs(1, 252, "v"); S = Regs(52, 72, "s")
    vlane = V.alloc(); t = V.alloc(8, 4)
    opV, opP = mkops(V, S, 'c')
    sWm = S.alloc(); sWn = S.alloc()
    a(f"v_and_b32 {v(vlane)}, 63, v0")
    a(f"s_and_b32 {s(sWm)}, {s(SW)}, 1"); a(f"s_lshr_b32 {s(sWn)}, {s(SW)}, 1")
    vrowV = V.alloc(); vrowP = V.alloc()
    a(f"v_and_b32 {v(t)}, 31, {v(vlane)}")
    a(f"s_lshl_b32 s99, {s(sWm)}, 5"); a(f"v_add_u32 {v(vrowV)}, s99, {v(t)}")
    a(f"s_lshl_b32 s99, {s(sWn)}, 6"); a(f"v_add_u32 {v(vrowP)}, s99, {v(t)}")
    opV.setup_read(a, vlane, t, 0, vrowV, slot); opP.setup_read(a, vlane, t, 0, vrowP, slot)
    cur = [V.alloc(32, 4), V.alloc(32, 4)]; tot = V.alloc(32, 4); frb = V.alloc(max(24, 12*(DEP+1)), 4); fr = [frb+12*k for k in range(DEP+1)]
    vF = V.alloc(16); vFa = V.alloc()
    a(f"v_lshlrev_b32 {v(vFa)}, 2, {v(vrowP)}"); a(f"v_add_u32 {v(vFa)}, {FT}, {v(vFa)}")
    vML = cur[1]; shr = V.alloc(12, 4); vz = shr; vTap = shr+4; vValid = V.alloc(); vMo = cur[1]+28; bt = V.alloc(4)
    a(f"v_and_b32 {v(t)}, 127, v0")
    a(f"s_sub_u32 s99, {s(sT0)}, 16"); a(f"v_add_u32 {v(t)}, s99, {v(t)}")
    a(f"v_cmp_gt_u32 vcc, 1000, {v(t)}")
    a(f"v_mov_b32 {v(t+2)}, 0"); a(f"v_mov_b32 {v(t+3)}, 1.0")
    a(f"v_cndmask_b32 {v(vValid)}, {v(t+2)}, {v(t+3)}, vcc")
    a(f"v_max_i32 {v(t+1)}, 0, {v(t)}"); a(f"v_min_i32 {v(t+1)}, 999, {v(t+1)}")
    a(f"s_lshl_b32 s99, {s(sB)}, 10"); a(f"v_add_u32 {v(t+1)}, s99, {v(t+1)}")
    a(f"v_lshlrev_b32 {v(vMo)}, 6, {v(t+1)}")
    a("s_waitcnt lgkmcnt(0)")
    gate(a, 2, False, t)
    srd_from(a, srdML, 30, ML_BYTES, O_ML)
    for k in range(4): a(f"buffer_load_dwordx4 {v(vML+4*k,4)}, {v(vMo)}, {s(srdML,4)}, 0 offen offset:{16*k}")
    srd_from(a, srdDW, 6, SIZES[DWM])
    taps_load(a, 0, t, vTap, srdDW, sCol, 2048)
    batch_srd(a, srdMC, sB, O_MC, 1000*MC_LD, 1000*MC_LD)
    stamp(a, 1)
    bgx = {}
    r = Rec(); F = vML; M = bt
    r("s_waitcnt vmcnt(8)")
    r(f"v_max3_f32 {v(M)}, {v(F)}, {v(F+2)}, {v(F+4)}"); r(f"v_max3_f32 {v(M)}, {v(M)}, {v(F+6)}, {v(F+8)}")
    r(f"v_max3_f32 {v(M)}, {v(M)}, {v(F+10)}, {v(F+12)}"); r(f"v_max_f32 {v(M)}, {v(M)}, {v(F+14)}")
    for k in range(8): r(f"v_sub_f32 {v(F+2*k)}, {v(F+2*k)}, {v(M)}")
    for k in range(8): r(f"v_exp_f32 {v(F+2*k)}, {v(F+2*k)}")
    r(f"s_nop 0\nv_mul_f32 {v(bt+1)}, {v(F)}, {v(F+1)}")
    for k in range(1, 8): r(f"v_fmac_f32 {v(bt+1)}, {v(F+2*k)}, {v(F+2*k+1)}")
    r(f"v_rcp_f32 {v(bt+1)}, {v(bt+1)}\ns_nop 0\nv_mul_f32 {v(bt+1)}, {v(bt+1)}, {v(vValid)}")
    r(f"v_and_b32 {v(bt+2)}, 127, v0"); r(f"v_lshlrev_b32 {v(bt+2)}, 2, {v(bt+2)}"); r(f"v_add_u32 {v(bt+2)}, {FT}, {v(bt+2)}")
    for k in range(8): r(f"v_mul_f32 {v(F+2*k)}, {v(F+2*k)}, {v(bt+1)}")
    for k in range(8): r(f"ds_write_b32 {v(bt+2)}, {v(F+2*k)} offset:{k*512}")
    distribute(bgx, r.atoms, 0, 1, ks_list=(0, 1, 2, 3))
    r = Rec(); zero_lds(r, 0, vz, TB, TB_BYTES + 64*384, bt); distribute(bgx, r.atoms, 3, 5)
    r = Rec(); r("s_waitcnt vmcnt(0)"); taps_write(r, 0, bt, vTap, TB); distribute(bgx, r.atoms, 6, 8)
    r = Rec()
    vAd = [[shr + 4*x + y for y in range(4)] for x in range(2)]
    for nt in range(2):
        r(f"v_add_u32 {v(bt)}, {32*nt}, {v(vrowP)}")
        r(f"v_lshrrev_b32 {v(bt+1)}, 3, {v(bt)}")
        r(f"v_lshrrev_b32 {v(bt+2)}, 5, {v(vlane)}")
        r(f"v_lshlrev_b32 {v(bt+3)}, 1, {v(bt+2)}")
        r(f"v_xor_b32 {v(bt+1)}, {v(bt+1)}, {v(bt+3)}")
        r(f"v_and_b32 {v(bt)}, 7, {v(bt)}")
        r(f"v_lshlrev_b32 {v(bt)}, 1, {v(bt)}")
        r(f"v_mul_u32_u24 {v(bt+2)}, {4*384}, {v(bt+2)}")
        r(f"v_add_u32 {v(bt)}, {v(bt)}, {v(bt+2)}")
        r(f"s_mul_i32 s99, {s(sWm)}, {32*384}\ns_add_u32 s99, s99, {GT}\nv_add_u32 {v(bt)}, s99, {v(bt)}")
        for var in range(4):
            st_ = ((var >> 1) << 2) | (var & 1)
            r(f"v_xor_b32 {v(bt+2)}, {st_}, {v(bt+1)}")
            r(f"v_lshl_add_u32 {v(vAd[nt][var])}, {v(bt+2)}, 4, {v(bt)}")
    OV = Overlay(V, cur[0], frb + max(24, 12*(DEP+1)))
    cv = Conv(OV, GT, 384, TB, OUT, residual=True, nch=8, nsets=4); cv.setup(r, vlane, SW, bt)
    op = OutPass(Overlay(V, 0, 0, pool=[shr+8, shr+9, shr+10, shr+11], minbig=99), 96); op.setup(r, bt, OUT, sT0, sCol, 11)
    distribute(bgx, r.atoms, 9, 15)
    def reads(sl, ks, st):
        o = opV.read(fr[st], sl, ks)
        for i in range(2): o += opP.read(fr[st]+4+4*i, sl, ks, tile_rows=32*i)
        return o
    def mfma(i, ks, st):
        c = cur[(i >> 1) & 1]
        return [f"{MFMA} {v(c+16*nt,16)}, {v(fr[st],4)}, {v(fr[st]+4+4*nt,4)}, " + ("0" if (ks == 0 and i % 2 == 0) else v(c+16*nt,16))
                for nt in range(2)]
    def fmas(c_):
        c = cur[c_ & 1]
        op_ = "v_mul_f32" if c_ == 0 else "v_fmac_f32"
        return [f"{op_} {v(tot+16*nt+r)}, {v(c+16*nt+r)}, {v(vF+2*c_+nt)}" for nt in range(2) for r in range(16)]
    extra = dict(bgx)
    extra[(2, 0)] = extra.get((2, 0), []) + [f"ds_read_b32 {v(vF+2*c_+nt)}, {v(vFa)} offset:{c_*512 + nt*128}" for c_ in range(8) for nt in range(2)]
    for c_ in range(7):
        slots = [(2*c_+2, 1), (2*c_+2, 2), (2*c_+2, 3), (2*c_+3, 0), (2*c_+3, 1), (2*c_+3, 2)]
        for sl, p in zip(slots, split(fmas(c_), len(slots))): extra[sl] = extra.get(sl, []) + p
    emit_compute(a, n, NS, reads, mfma, extra=extra, depth=DEP)
    stamp(a, 3)
    a("s_nop 7"); a("s_nop 7")
    for l in fmas(7): a(l)
    vP = frb
    for nt in range(2):
        for q in range(4):
            for rp in range(2):
                r0 = tot + 16*nt + 4*q + 2*rp
                a(f"v_cvt_pk_bf16_f32 {v(vP+8*nt+2*q+rp)}, {v(r0)}, {v(r0+1)}")
        for q in range(4):
            for rp in range(2):
                ad = vAd[nt][((q & 1) << 1) + rp]
                a(f"ds_write_b16 {v(ad)}, {v(vP+8*nt+2*q+rp)} offset:{(8*q + 2*rp)*384}")
                a(f"ds_write_b16_d16_hi {v(ad)}, {v(vP+8*nt+2*q+rp)} offset:{(8*q + 2*rp + 1)*384}")
    a("s_waitcnt lgkmcnt(0)")
    a("s_barrier")
    stamp(a, 4)
    cv.emit(a, 6)
    a("s_waitcnt lgkmcnt(0)")
    a("s_barrier")
    op.emit(a, cur[0], srdMC, sf)
    stamp(a, 5); finish(a, 2, t, 0)
    a(f"{name}_loader:"); loader_start(a)
    V = Regs(1, 252, "v"); S = Regs(52, 72, "s")
    vlane = V.alloc(); t = V.alloc(8, 4); vl = V.alloc()
    opV, opP = mkops(V, S, 'l'); sKc = S.alloc(); sR = S.alloc()
    a(f"v_and_b32 {v(vlane)}, 63, v0"); a(f"v_and_b32 {v(vl)}, 255, v0")
    a(f"s_sub_u32 {s(sR)}, {s(sT0)}, 16")
    opP.setup_dma(a, vlane, SL, t, P_LD, srowbase=sR)
    a(f"s_lshl_b32 {s(sR)}, {s(sTc)}, 6"); a(f"s_lshl_b32 s98, {s(sB)}, 9"); a(f"s_add_u32 {s(sR)}, {s(sR)}, s98")
    opV.setup_dma(a, vlane, SL, t, VT_LD, srowbase=sR)
    def ksets(): return [f"s_lshl_b32 {s(opV.s_k)}, {s(sKc)}, 7", f"s_mov_b32 {s(opP.s_k)}, {s(opV.s_k)}"]
    def kadv(): return [f"s_add_u32 {s(sKc)}, {s(sKc)}, 1\n" + "\n".join(ksets())]
    a(f"s_mov_b32 {s(sKc)}, 0")
    for l in ksets(): a(l)
    a("s_waitcnt lgkmcnt(0)")
    batch_srd(a, srdP, sB, O_P, 1024*P_LD, 1000*P_LD)
    srd_from(a, srdVT, 30, VT_BYTES, O_VT)
    stamp(a, 1)
    gate(a, 2, True, t); stamp(a, 2)
    vm = Vm()
    def dma(so): return opP.dma(srdP, so) + opV.dma(srdVT, so)
    fa_blk = V.alloc(104, 4)
    cvL = Conv(Overlay(V, fa_blk, fa_blk+104), GT, 384, TB, OUT, residual=True, nch=8, nsets=4); opL = OutPass(V, 96)
    def setups(a):
        batch_srd(a, srdMC, sB, O_MC, 1000*MC_LD, 1000*MC_LD)
        cvL.setup(a, vlane, SW, t); opL.setup(a, t, OUT, sT0, sCol, 11)
    bg = {n-2: [setups]}
    if gcore.CODEPF: bg[5] = [lambda a: code_prefetch(a, "k3_kernel", "k4_exit", 33, SL, 255, 254)]
    bg[n-1] = [lambda a: l2_prefetch(a, vm, t, [(56, SIZES[WM])])]
    emit_loader(a, vm, n, NS, slot, dma, 6, kadv, bg=bg, lag=(1 if DEP > 1 else 0), npre=OPT.get("pvpre", 2), ahead=OPT.get("pvahead", 2))
    stamp(a, 3)
    a("s_barrier")
    cvL.emit(a, 6)
    a("s_waitcnt lgkmcnt(0)")
    a("s_barrier")
    vD = V.alloc(8, 4)
    opL.emit(a, vD, srdMC, sf)
    finish(a, 2, t, 4)
    return lds_total

def k3_L(a, sf):
    name = "k3L"
    DEP = OPT.get("k3ld", 1)
    NS = 3; n = 8
    sB, sTt, sTe, sC0, sT0, sCol, sCol2 = 21, 22, 23, 24, 26, 27, 28
    srdZ, srdW, srdDW, srdMC = 8, 12, 44, 48
    slot = 256*128 + 64*128
    GS_ = 640
    TB = NS*slot; GT = 0; OUT = 64*GS_
    lds_total = TB + TB_BYTES
    a(f"s_mul_i32 {s(sT0)}, {s(sTt)}, 224")
    a(f"s_lshl_b32 {s(sCol)}, {s(sTe)}, 7")
    a(f"s_add_u32 {s(sCol2)}, {s(sCol)}, 1024")
    role_split(a, name)
    def mkops(V, S, role):
        opZ = OpK(256, 0); opW = OpT(64, opZ.bytes)
        opZ.alloc(V, S, NS, role=role); opW.alloc(V, S, NS, 2, role=role)
        return opZ, opW
    V = Regs(1, 252, "v"); S = Regs(52, 72, "s")
    vlane = V.alloc(); t = V.alloc(8, 4)
    opZ, opW = mkops(V, S, 'c'); sZero = S.alloc()
    acc = V.alloc(64, 4); frb = V.alloc(max(32, 16*(DEP+1)), 4); fr = [frb+16*k for k in range(DEP+1)]
    A_ = lambda mt, nt: acc + (mt*2+nt)*16
    vrowZ = V.alloc()
    a(f"v_and_b32 {v(vlane)}, 63, v0")
    a(f"v_and_b32 {v(t)}, 31, {v(vlane)}")
    a(f"s_lshl_b32 s99, {s(SW)}, 6"); a(f"v_add_u32 {v(vrowZ)}, s99, {v(t)}")
    opZ.setup_read(a, vlane, t, 0, vrowZ, slot)
    a(f"s_mov_b32 {s(sZero)}, 0"); opW.setup_read(a, vlane, t, sZero, slot)
    vAd = V.alloc(8); vPz = V.alloc(); vz = V.alloc(4, 4); vTap = V.alloc(8); bt = V.alloc(5)
    a("s_waitcnt lgkmcnt(0)")
    srd_from(a, srdDW, 6, SIZES[DWM])
    taps_load(a, 0, t, vTap, srdDW, sCol2, 2048)
    batch_srd(a, srdMC, sB, O_MC, 1000*MC_LD, 1000*MC_LD)
    extra = {}
    r = Rec(); zero_lds(r, 0, vz, TB, TB_BYTES, bt); distribute(extra, r.atoms, 0, 1)
    r = Rec(); r("s_waitcnt vmcnt(0)"); taps_write(r, 0, bt, vTap, TB); distribute(extra, r.atoms, 2, 4)
    r = Rec()
    r(f"v_and_b32 {v(bt)}, 31, {v(vlane)}")
    r(f"v_bfe_u32 {v(bt+1)}, {v(vlane)}, 1, 3")
    r(f"v_mul_u32_u24 {v(bt)}, {GS_}, {v(bt)}")
    r(f"v_lshrrev_b32 {v(bt+2)}, 5, {v(vlane)}")
    r(f"v_lshl_add_u32 {v(bt)}, {v(bt+2)}, 3, {v(bt)}")
    r(f"s_lshl_b32 s99, {s(SW)}, 7\ns_add_u32 s99, s99, {GT}\nv_add_u32 {v(bt)}, s99, {v(bt)}")
    for k in range(8):
        r(f"v_xor_b32 {v(bt+2)}, {k}, {v(bt+1)}")
        r(f"v_lshl_add_u32 {v(vAd+k)}, {v(bt+2)}, 4, {v(bt)}")
    r(f"v_lshrrev_b32 {v(bt+3)}, 2, v0"); r(f"v_mul_u32_u24 {v(bt+3)}, {GS_}, {v(bt+3)}")
    r(f"v_and_b32 {v(bt+4)}, 3, v0"); r(f"v_lshl_add_u32 {v(vPz)}, {v(bt+4)}, 5, {v(bt+3)}")
    cv = Conv(Overlay(V, acc, frb+max(32, 16*(DEP+1))), GT, GS_, TB, OUT, residual=True, nch=8, nsets=3); cv.setup(r, vlane, SW, bt)
    op = OutPass(V, 224); op.setup(r, bt, OUT, sT0, sCol2, 11)
    distribute(extra, r.atoms, 4, 8, ks_list=(0, 1, 2))
    stamp(a, 1)
    gate(a, 2, False, t)
    def reads(sl, ks, st):
        o = []
        for i in range(2): o += opZ.read(fr[st]+4*i, sl, ks, tile_rows=32*i)
        for i in range(2): o += opW.read(fr[st]+8+4*i, sl, i, ks)
        return o
    def mfma(i, ks, st):
        return [f"{MFMA} {v(A_(mt,nt),16)}, {v(fr[st]+4*mt,4)}, {v(fr[st]+8+4*nt,4)}, " + ("0" if (i == 0 and ks == 0) else v(A_(mt,nt),16))
                for mt in range(2) for nt in range(2)]
    emit_compute(a, n, NS, reads, mfma, extra=extra, depth=DEP)
    stamp(a, 3)
    vP = V.alloc(8, 2)
    a("s_nop 7")
    a("s_barrier")
    a(f"ds_write_b128 {v(vPz)}, {v(vz,4)} offset:{GT + 512}")
    a(f"ds_write_b128 {v(vPz)}, {v(vz,4)} offset:{GT + 528}")
    for nt in range(2):
        for mt in range(2):
            ac = A_(mt, nt)
            for q in range(4):
                a(f"v_cvt_pk_bf16_f32 {v(vP+2*q)}, {v(ac+4*q)}, {v(ac+4*q+1)}")
                a(f"v_cvt_pk_bf16_f32 {v(vP+2*q+1)}, {v(ac+4*q+2)}, {v(ac+4*q+3)}")
            for q in range(4):
                a(f"ds_write_b64 {v(vAd+4*mt+q)}, {v(vP+2*q,2)} offset:{nt*32*GS_}")
    a("s_waitcnt lgkmcnt(0)")
    a("s_barrier")
    stamp(a, 4)
    cv.emit(a, 14)
    a("s_waitcnt lgkmcnt(0)")
    a("s_barrier")
    vD = V.alloc(16, 4)
    op.emit(a, vD, srdMC, sf)
    stamp(a, 5); finish(a, 2, t, 0)
    a(f"{name}_loader:"); loader_start(a)
    V = Regs(1, 252, "v"); S = Regs(52, 72, "s")
    vlane = V.alloc(); t = V.alloc(8, 4); vl = V.alloc()
    opZ, opW = mkops(V, S, 'l'); sKc = S.alloc(); sR = S.alloc()
    a(f"v_and_b32 {v(vlane)}, 63, v0"); a(f"v_and_b32 {v(vl)}, 255, v0")
    a(f"s_sub_u32 {s(sR)}, {s(sT0)}, 16")
    opZ.setup_dma(a, vlane, SL, t, Z_LD, srowbase=sR)
    opW.setup_dma(a, vlane, SL, t, 1024, colbase_s=sCol)
    def ksets(): return [f"s_lshl_b32 {s(opZ.s_k)}, {s(sKc)}, 7", f"s_lshl_b32 {s(opW.s_k)}, {s(sKc)}, 16"]
    def kadv(): return [f"s_add_u32 {s(sKc)}, {s(sKc)}, 1\ns_and_b32 {s(sKc)}, {s(sKc)}, 7\n" + "\n".join(ksets())]
    a(f"s_mov_b32 {s(sKc)}, {s(sC0)}")
    for l in ksets(): a(l)
    a("s_waitcnt lgkmcnt(0)")
    batch_srd(a, srdZ, sB, O_Z, 1000*Z_LD, 1000*Z_LD)
    srd_from(a, srdW, 4, SIZES[WMO])
    stamp(a, 1)
    gate(a, 2, True, t); stamp(a, 2)
    vm = Vm()
    def dma(so): return opZ.dma(srdZ, so) + opW.dma(srdW, so)
    fa_blk = V.alloc(104, 4)
    cvL = Conv(Overlay(V, fa_blk, fa_blk+104), GT, GS_, TB, OUT, residual=True, nch=8, nsets=4); opL = OutPass(V, 224)
    def setups(a):
        batch_srd(a, srdMC, sB, O_MC, 1000*MC_LD, 1000*MC_LD)
        cvL.setup(a, vlane, SW, t); opL.setup(a, t, OUT, sT0, sCol2, 11)
    bg = {n-2: [setups]}
    if gcore.CODEPF: bg[4] = [lambda a: code_prefetch(a, "k3_kernel", "k4_exit", 33, SL, 255, 254)]
    bg[n-1] = [lambda a: l2_prefetch(a, vm, t, [(56, SIZES[WM])])]
    emit_loader(a, vm, n, NS, slot, dma, 10, kadv, bg=bg, npre=2, lag=(1 if DEP > 1 else 0))
    stamp(a, 3)
    a("s_barrier")
    a("s_barrier")
    cvL.emit(a, 14)
    a("s_waitcnt lgkmcnt(0)")
    a("s_barrier")
    vD = V.alloc(16, 4)
    opL.emit(a, vD, srdMC, sf)
    finish(a, 2, t, 4)
    return lds_total

def k3(sf=""):
    a = Asm(); stamp(a, 0)
    a("""
    s_cmp_ge_u32 s2, 256
    s_cbranch_scc1 k3_exit
    """)
    a("k3_begin:")
    if FUSED[0]: stamp(a, 0)
    a("""
    s_load_dwordx2 s[30:31], s[0:1], 80       ; ws
    s_load_dwordx2 s[4:5], s[0:1], 40         ; w_mlp_out
    s_load_dwordx2 s[6:7], s[0:1], 48         ; dw_merge
    v_lshrrev_b32 v1, 6, v0
    s_and_b32 s32, s2, 7                      ; xcd
    s_lshr_b32 s33, s2, 3                     ; li
    v_readfirstlane_b32 s20, v1               ; wave
    s_cmp_ge_u32 s33, 22
    s_cbranch_scc1 k3_typeL
    s_lshr_b32 s21, s32, 2                    ; b
    s_and_b32 s34, s32, 3
    s_mul_i32 s34, s34, 22
    s_add_u32 s34, s34, s33                   ; n = 22q + li
    s_lshr_b32 s22, s34, 3                    ; tt
    s_and_b32 s23, s34, 7                     ; tc
    """)
    la = k3_PV(a, sf)
    a("""k3_typeL:
    s_mul_i32 s34, s32, 10
    s_add_u32 s34, s34, s33
    s_sub_u32 s34, s34, 22                    ; n = 10x + li - 22
    s_lshr_b32 s35, s34, 3                    ; bt 0..9
    s_and_b32 s23, s34, 7                     ; te
    s_cmp_ge_u32 s35, 5
    s_cselect_b32 s21, 1, 0                   ; b
    s_mul_i32 s36, s21, 5
    s_sub_u32 s22, s35, s36                   ; tt
    s_add_u32 s24, s23, s22
    s_and_b32 s24, s24, 7                     ; c0
    """)
    lb = k3_L(a, sf)
    a("k3_exit:"); a("s_endpgm")
    return ("k3_kernel", a.text(), 256, 100, None), max(la, lb)

def y_srd(a): batch_srd(a, 8, 21, O_Y, 1000*Y_LD, 1000*Y_LD)

def k2_S(a, sf):
    name = "k2S"
    DEP = OPT.get("k2sd", 2)
    NS = OPT.get("k2sns", 4); n = 8
    sB, sTq, sTs, sC0, sBase = 21, 22, 23, 24, 26
    srdY, srdP, srdML = 8, 12, 16
    slot = 2*128*128
    RS = 272
    MX = NS*slot
    lds_total = MX + 2048
    a(f"s_lshl_b32 s99, {s(sB)}, 10"); a(f"s_lshl_b32 s98, {s(sTq)}, 7"); a(f"s_add_u32 s99, s99, s98")
    a(f"s_mul_i32 {s(sBase)}, s99, {P_LD}"); a(f"s_lshl_b32 s98, {s(sTs)}, 8"); a(f"s_add_u32 {s(sBase)}, {s(sBase)}, s98")
    role_split(a, name)
    def mkops(V, S, role):
        opK = OpK(128, 0); opQ = OpK(128, opK.bytes)
        opK.alloc(V, S, NS, role=role); opQ.alloc(V, S, NS, role=role)
        return opK, opQ
    V = Regs(1, 252, "v"); S = Regs(52, 72, "s")
    vlane = V.alloc(); t = V.alloc(8, 4)
    opK, opQ = mkops(V, S, 'c')
    acc = V.alloc(64, 4); frb = V.alloc(max(32, 16*(DEP+1)), 4); fr = [frb+16*k for k in range(DEP+1)]
    A_ = lambda mt, nt: acc + (mt*2+nt)*16
    sWm = S.alloc(); sWn = S.alloc(); sT = S.alloc()
    a(f"v_and_b32 {v(vlane)}, 63, v0")
    a(f"s_and_b32 {s(sWm)}, {s(SW)}, 1"); a(f"s_lshr_b32 {s(sWn)}, {s(SW)}, 1")
    vrowK = V.alloc(); vrowQ = V.alloc()
    a(f"v_and_b32 {v(t)}, 31, {v(vlane)}")
    a(f"s_lshl_b32 s99, {s(sWm)}, 6"); a(f"v_add_u32 {v(vrowK)}, s99, {v(t)}")
    a(f"s_lshl_b32 s99, {s(sWn)}, 6"); a(f"v_add_u32 {v(vrowQ)}, s99, {v(t)}")
    opK.setup_read(a, vlane, t, 0, vrowK, slot); opQ.setup_read(a, vlane, t, 0, vrowQ, slot)
    vStg = V.alloc(); vMo = V.alloc(); vMxW = V.alloc(); vMxR = V.alloc()
    a(f"v_mul_u32_u24 {v(vStg)}, {RS}, {v(vrowQ)}")
    a(f"v_lshrrev_b32 {v(t)}, 5, {v(vlane)}")
    a(f"v_lshl_add_u32 {v(vStg)}, {v(t)}, 3, {v(vStg)}")
    a(f"s_lshl_b32 s99, {s(sWm)}, 7"); a(f"v_add_u32 {v(vStg)}, s99, {v(vStg)}")
    a(f"s_lshl_b32 s99, {s(sB)}, 10"); a(f"s_lshl_b32 s98, {s(sTq)}, 7"); a(f"s_add_u32 s99, s99, s98")
    a(f"v_add_u32 {v(vMo)}, s99, {v(vrowQ)}"); a(f"v_lshlrev_b32 {v(vMo)}, 6, {v(vMo)}")
    a(f"s_lshl_b32 s99, {s(sTs)}, 3"); a(f"v_add_u32 {v(vMo)}, s99, {v(vMo)}")
    a(f"v_lshlrev_b32 {v(t)}, 2, {v(vrowQ)}")
    a(f"s_lshl_b32 s99, {s(sWm)}, 9"); a(f"s_add_u32 s99, s99, {MX}"); a(f"v_add_u32 {v(vMxW)}, s99, {v(t)}")
    a(f"s_xor_b32 s99, {s(sWm)}, 1"); a(f"s_lshl_b32 s99, s99, 9"); a(f"s_add_u32 s99, s99, {MX}"); a(f"v_add_u32 {v(vMxR)}, s99, {v(t)}")
    sC = S.alloc(2, 2)
    a(f"s_mov_b32 {s(sC)}, {f2u(CSC)}"); a(f"s_mov_b32 {s(sC+1)}, {f2u(CSC)}")
    a("s_waitcnt lgkmcnt(0)")
    srd_from(a, srdP, 30, P_BYTES, O_P); srd_from(a, srdML, 30, ML_BYTES, O_ML)
    stamp(a, 1)
    gate(a, 1, False, t)
    def reads(sl, ks, st):
        o = []
        for i in range(2): o += opK.read(fr[st]+4*i, sl, ks, tile_rows=32*i)
        for i in range(2): o += opQ.read(fr[st]+8+4*i, sl, ks, tile_rows=32*i)
        return o
    def mfma(i, ks, st):
        return [f"{MFMA} {v(A_(mt,nt),16)}, {v(fr[st]+4*mt,4)}, {v(fr[st]+8+4*nt,4)}, " + ("0" if (i == 0 and ks == 0) else v(A_(mt,nt),16))
                for mt in range(2) for nt in range(2)]
    emit_compute(a, n, NS, reads, mfma, depth=DEP)
    stamp(a, 3)
    a("s_nop 7"); a("s_nop 3")
    a(f"s_cmp_eq_u32 {s(sTs)}, 7"); a(f"s_cbranch_scc0 {name}_nomask")
    a(f"s_cmp_eq_u32 {s(sWm)}, 1"); a(f"s_cbranch_scc0 {name}_nomask")
    for nt in range(2):
        for r in range(4, 16): a(f"v_mov_b32 {v(A_(1,nt)+r)}, 0xff800000")
    a(f"{name}_nomask:")
    vM = V.alloc(4, 2); vL = V.alloc(4, 2); vP = V.alloc(8, 2); vO = V.alloc(2)
    for nt in range(2):
        regs = [A_(mt, nt) + r for mt in range(2) for r in range(16)]
        m = vM + 2*nt
        a(f"v_max3_f32 {v(m)}, {v(regs[0])}, {v(regs[1])}, {v(regs[2])}")
        a(f"v_max3_f32 {v(m+1)}, {v(regs[3])}, {v(regs[4])}, {v(regs[5])}")
        k = 6; tog = 0
        while k < 32:
            a(f"v_max3_f32 {v(m+tog)}, {v(m+tog)}, {v(regs[k])}, {v(regs[k+1])}"); k += 2; tog ^= 1
        a(f"v_max_f32 {v(m)}, {v(m)}, {v(m+1)}")
        halfop(a, "v_max_f32", m, t)
        a(f"ds_write_b32 {v(vMxW)}, {v(m)} offset:{nt*128}")
    a("s_waitcnt lgkmcnt(0)")
    a("s_barrier")
    for nt in range(2): a(f"ds_read_b32 {v(vO+nt)}, {v(vMxR)} offset:{nt*128}")
    a("s_waitcnt lgkmcnt(0)")
    for nt in range(2):
        m = vM + 2*nt
        a(f"v_max_f32 {v(m)}, {v(m)}, {v(vO+nt)}")
        a(f"v_mul_f32 {v(m)}, {f2u(CSC)}, {v(m)}")
        a(f"v_sub_f32 {v(m+1)}, 0, {v(m)}")
        l = vL + 2*nt
        a(f"v_mov_b32 {v(l)}, 0"); a(f"v_mov_b32 {v(l+1)}, 0")
        for mt in range(2):
            ac = A_(mt, nt)
            for pr in range(8):
                a(f"v_pk_fma_f32 {v(ac+2*pr,2)}, {v(ac+2*pr,2)}, {s(sC,2)}, {v(m,2)} op_sel:[0,0,1] op_sel_hi:[1,1,1]")
            for r in range(16): a(f"v_exp_f32 {v(ac+r)}, {v(ac+r)}")
            for pr in range(8): a(f"v_pk_add_f32 {v(l,2)}, {v(l,2)}, {v(ac+2*pr,2)}")
            for q in range(4):
                a(f"v_cvt_pk_bf16_f32 {v(vP+2*q)}, {v(ac+4*q)}, {v(ac+4*q+1)}")
                a(f"v_cvt_pk_bf16_f32 {v(vP+2*q+1)}, {v(ac+4*q+2)}, {v(ac+4*q+3)}")
            for q in range(4):
                a(f"ds_write_b64 {v(vStg)}, {v(vP+2*q,2)} offset:{nt*32*RS + mt*64 + q*16}")
        a(f"v_add_f32 {v(l)}, {v(l)}, {v(l+1)}")
        halfop(a, "v_add_f32", l, t)
        a(f"ds_write_b32 {v(vMxW)}, {v(l)} offset:{1024 + nt*128}")
    a("s_waitcnt lgkmcnt(0)")
    stamp(a, 4)
    a("s_barrier")
    a(f"s_cmp_eq_u32 {s(sWm)}, 0"); a(f"s_cbranch_scc0 {name}_noml")
    for nt in range(2): a(f"ds_read_b32 {v(vO+nt)}, {v(vMxR)} offset:{1024 + nt*128}")
    a("s_waitcnt lgkmcnt(0)")
    for nt in range(2): a(f"v_add_f32 {v(vM+2*nt+1)}, {v(vL+2*nt)}, {v(vO+nt)}")
    a(f"v_add_u32 {v(t)}, {32*64}, {v(vMo)}")
    a("s_mov_b32 exec_hi, 0")
    a(f"buffer_store_dwordx2 {v(vM,2)}, {v(vMo)}, {s(srdML,4)}, 0 offen {sf}")
    a(f"buffer_store_dwordx2 {v(vM+2,2)}, {v(t)}, {s(srdML,4)}, 0 offen {sf}")
    a("s_mov_b32 exec_hi, -1")
    a(f"{name}_noml:")
    store_rows(a, V, vlane, SW, t, 256, RS, 0, 16, P_LD, srdP, sBase, frb, 8, sT, sf=sf)
    stamp(a, 5); finish(a, 1, t, 0)
    a(f"{name}_loader:"); loader_start(a)
    V = Regs(1, 252, "v"); S = Regs(52, 72, "s")
    vlane = V.alloc(); t = V.alloc(8, 4)
    opK, opQ = mkops(V, S, 'l'); sKc = S.alloc(); sR = S.alloc(); sT = S.alloc()
    a(f"v_and_b32 {v(vlane)}, 63, v0")
    a(f"s_lshl_b32 {s(sR)}, {s(sTs)}, 7"); opK.setup_dma(a, vlane, SL, t, Y_LD, srowbase=sR)
    a(f"s_lshl_b32 {s(sR)}, {s(sTq)}, 7"); opQ.setup_dma(a, vlane, SL, t, Y_LD, srowbase=sR)
    def ksets(): return [f"s_lshl_b32 {s(opQ.s_k)}, {s(sKc)}, 7", f"s_add_u32 {s(opK.s_k)}, {s(opQ.s_k)}, 1024"]
    def kadv(): return [f"s_add_u32 {s(sKc)}, {s(sKc)}, 1\ns_and_b32 {s(sKc)}, {s(sKc)}, 7\n" + "\n".join(ksets())]
    a(f"s_mov_b32 {s(sKc)}, {s(sC0)}")
    for l in ksets(): a(l)
    a("s_waitcnt lgkmcnt(0)")
    y_srd(a)
    stamp(a, 1)
    gate(a, 1, True, t); stamp(a, 2)
    vm = Vm()
    def dma(so): return opK.dma(srdY, so) + opQ.dma(srdY, so)
    bg = {0: [lambda a: srd_from(a, srdP, 30, P_BYTES, O_P)]}
    if gcore.CODEPF: bg[1] = [lambda a: code_prefetch(a, "k2_kernel", "k3_exit", 33, SL, 255, 254)]
    bg[n-1] = [lambda a: l2_prefetch(a, vm, t, [(40, SIZES[WMO]), (48, SIZES[DWM])])]
    emit_loader(a, vm, n, NS, slot, dma, 8, kadv, bg=bg, npre=2, lag=(1 if DEP > 1 else 0))
    stamp(a, 3)
    buf = V.alloc(32, 4)
    a("s_barrier")
    a("s_barrier")
    store_rows(a, V, vlane, SW, t, 256, RS, 0, 16, P_LD, srdP, sBase, buf, 8, sT, sf=sf)
    finish(a, 1, t, 4)
    return lds_total

def k2_V(a, sf):
    name = "k2V"
    DEP = OPT.get("k2vd", 2)
    NS = OPT.get("k2vns", 4); n = 8
    RS = 272
    slot = 128*128 + 64*128
    GT = NS*slot; TB = GT + 64*384; OUT = TB + TB_BYTES; ST = OUT; STG = 0
    lds_total = OUT + 128*128
    sB, sTc, sTs, sC0, sT0, sT, sBase = 21, 22, 23, 24, 26, 27, 28
    srdY, srdWo, srdVT, srdGS, srdDW, srdZ = 8, 44, 48, 52, 56, 60
    a(f"s_lshl_b32 {s(sT0)}, {s(sTs)}, 7")
    a(f"s_lshl_b32 {s(sT)}, {s(sTc)}, 7")
    a(f"s_lshl_b32 s99, {s(sB)}, 9"); a(f"s_lshl_b32 s98, {s(sTc)}, 6"); a(f"s_add_u32 s99, s99, s98")
    a(f"s_mul_i32 {s(sBase)}, s99, {VT_LD}"); a(f"s_lshl_b32 s98, {s(sTs)}, 8"); a(f"s_add_u32 {s(sBase)}, {s(sBase)}, s98")
    role_split(a, name)
    def mkops(V, S, role):
        opV = OpK(128, 0); opW = OpT(64, opV.bytes)
        opV.alloc(V, S, NS, role=role); opW.alloc(V, S, NS, 1, role=role)
        return opV, opW
    def zpass(a, V, t, op, vU, vGc):
        vA = t+4; vB = t+6
        op.reads(a, vGc)
        a("s_waitcnt lgkmcnt(0)")
        for i in range(2):
            for d in range(4):
                g_, u_ = vGc+4*i+d, vU+4*i+d
                a(f"v_lshlrev_b32 {v(vA)}, 16, {v(g_)}")
                a(f"v_and_b32 {v(vA+1)}, 0xffff0000, {v(g_)}")
                a(f"v_lshlrev_b32 {v(vB)}, 16, {v(u_)}")
                a(f"v_and_b32 {v(vB+1)}, 0xffff0000, {v(u_)}")
                a(f"v_pk_mul_f32 {v(vA,2)}, {v(vA,2)}, {v(vB,2)}")
                a(f"v_cvt_pk_bf16_f32 {v(g_)}, {v(vA)}, {v(vA+1)}")
            a(f"buffer_store_dwordx4 {v(vGc+4*i,4)}, {v(op.vZo[i])}, {s(srdZ,4)}, 0 offen {sf}")
    def uload(a, V, t):
        vU = V.alloc(8, 4)
        a(f"v_lshrrev_b32 {v(t)}, 3, v0")
        a(f"v_add_u32 {v(t)}, {s(sT0)}, {v(t)}")
        a(f"v_mul_u32_u24 {v(t)}, {Y_LD}, {v(t)}")
        a(f"v_and_b32 {v(t+1)}, 7, v0")
        a(f"v_lshl_add_u32 {v(t)}, {v(t+1)}, 4, {v(t)}")
        a(f"s_add_u32 s99, {s(sT)}, 3072")
        a(f"v_add_u32 {v(t)}, s99, {v(t)}")
        for i in range(2):
            a(f"s_mov_b32 s99, {64*i*Y_LD}")
            a(f"buffer_load_dwordx4 {v(vU+4*i,4)}, {v(t)}, {s(srdY,4)}, s99 offen")
        return vU
    def z_srd(a): batch_srd(a, srdZ, sB, O_Z, 1000*Z_LD, 1000*Z_LD)
    V = Regs(1, 252, "v"); S = Regs(64, 72, "s")
    vlane = V.alloc(); t = V.alloc(8, 4)
    opV, opW = mkops(V, S, 'c')
    acc = V.alloc(32, 4); frb = V.alloc(max(32, 12*(DEP+1)), 4); fr = [frb+12*k for k in range(DEP+1)]
    A_ = lambda mt: acc + mt*16
    sWm = S.alloc(); sWn = S.alloc(); sTmp = S.alloc()
    a(f"v_and_b32 {v(vlane)}, 63, v0")
    a(f"s_and_b32 {s(sWm)}, {s(SW)}, 1"); a(f"s_lshr_b32 {s(sWn)}, {s(SW)}, 1")
    vrowV = V.alloc(); vStg = V.alloc()
    a(f"v_and_b32 {v(t)}, 31, {v(vlane)}")
    a(f"s_lshl_b32 s99, {s(sWm)}, 6"); a(f"v_add_u32 {v(vrowV)}, s99, {v(t)}")
    opV.setup_read(a, vlane, t, 0, vrowV, slot); opW.setup_read(a, vlane, t, sWn, slot)
    a(f"v_and_b32 {v(t)}, 31, {v(vlane)}")
    a(f"s_lshl_b32 s99, {s(sWn)}, 5"); a(f"v_add_u32 {v(t)}, s99, {v(t)}")
    a(f"v_mul_u32_u24 {v(vStg)}, {RS}, {v(t)}")
    a(f"v_lshrrev_b32 {v(t)}, 5, {v(vlane)}")
    a(f"v_lshl_add_u32 {v(vStg)}, {v(t)}, 3, {v(vStg)}")
    a(f"s_lshl_b32 s99, {s(sWm)}, 7"); a(f"s_add_u32 s99, s99, {STG}"); a(f"v_add_u32 {v(vStg)}, s99, {v(vStg)}")
    op = OutPass(V, 128)
    blk = V.alloc(104, 4)
    vGSd = blk; vTap = blk+16; vG = blk+24; vAB = blk+44; vX = blk+84; vPk = blk+92; vz = blk+96
    vGo = V.alloc(); vValid = V.alloc(); vW = [V.alloc(), V.alloc()]; vSt = V.alloc(); bt = V.alloc(6, 2)
    cvC = Conv(Overlay(V, blk, blk+104), GT, 384, TB, OUT, residual=False, nch=8, nsets=4)
    vGSo = V.alloc()
    a(f"s_sub_u32 s99, {s(sT0)}, 16"); a(f"v_add_u32 {v(t)}, s99, v0")
    a(f"v_max_i32 {v(t+1)}, 0, {v(t)}"); a(f"v_min_i32 {v(t+1)}, 999, {v(t+1)}")
    a(f"s_mul_i32 s99, {s(sB)}, 1000"); a(f"v_add_u32 {v(t+1)}, s99, {v(t+1)}")
    a(f"v_lshlrev_b32 {v(vGSo)}, 3, {v(t+1)}")
    a(f"v_cmp_gt_u32 vcc, 1000, {v(t)}")
    a(f"v_mov_b32 {v(t+2)}, 0"); a(f"v_mov_b32 {v(t+3)}, 1.0")
    a(f"v_cndmask_b32 {v(vValid)}, {v(t+2)}, {v(t+3)}, vcc")
    a(f"v_lshrrev_b32 {v(t)}, 5, {v(vlane)}"); a(f"v_lshlrev_b32 {v(t)}, 2, {v(t)}")
    a(f"s_lshl_b32 s99, {s(SW)}, 3"); a(f"s_add_u32 s99, s99, {s(sT0)}"); a(f"s_sub_u32 s99, s99, 16")
    a(f"v_add_u32 {v(t)}, s99, {v(t)}")
    a(f"v_mul_i32_i24 {v(t)}, {Y_LD}, {v(t)}")
    a(f"v_and_b32 {v(t+1)}, 31, {v(vlane)}"); a(f"v_lshl_add_u32 {v(t)}, {v(t+1)}, 2, {v(t)}")
    a(f"s_add_u32 s99, {s(sT)}, 4096"); a(f"v_add_u32 {v(vGo)}, s99, {v(t)}")
    a(f"v_lshrrev_b32 {v(t)}, 5, {v(vlane)}")
    a(f"s_lshl_b32 s99, {s(SW)}, 6"); a(f"v_lshl_add_u32 {v(vSt)}, {v(t)}, 5, s99"); a(f"v_add_u32 {v(vSt)}, {ST}, {v(vSt)}")
    a(f"v_and_b32 {v(t+1)}, 31, {v(vlane)}"); a(f"v_and_b32 {v(t+2)}, 7, {v(t+1)}")
    a(f"v_xor_b32 {v(t+2)}, {s(SW)}, {v(t+2)}")
    a(f"v_mul_u32_u24 {v(t+1)}, 768, {v(t+1)}"); a(f"v_lshl_add_u32 {v(t+1)}, {v(t)}, 3, {v(t+1)}")
    a(f"v_add_u32 {v(t+1)}, {GT}, {v(t+1)}")
    a(f"v_lshl_add_u32 {v(vW[0])}, {v(t+2)}, 4, {v(t+1)}")
    a(f"v_xor_b32 {v(t+2)}, 4, {v(t+2)}"); a(f"v_lshl_add_u32 {v(vW[1])}, {v(t+2)}, 4, {v(t+1)}")
    a("s_waitcnt lgkmcnt(0)")
    y_srd(a); srd_from(a, srdGS, 30, GS_BYTES, O_GS); srd_from(a, srdDW, 6, SIZES[DWC])
    gate(a, 1, False, t)
    for k in range(8):
        a(f"s_mov_b32 s99, {k*16384}")
        a(f"buffer_load_dwordx2 {v(vGSd+2*k,2)}, {v(vGSo)}, {s(srdGS,4)}, s99 offen")
    srd_from(a, srdVT, 30, VT_BYTES, O_VT); z_srd(a)
    stamp(a, 1)
    extra = {}
    r = Rec()
    taps_load(r, 0, bt, vTap, srdDW, sT, 1024)
    for gi in range(5):
        for r_ in range(4):
            r(f"v_add_u32 {v(bt)}, {(32*gi + r_)*Y_LD}, {v(vGo)}\nbuffer_load_dword {v(vG+4*gi+r_)}, {v(bt)}, {s(srdY,4)}, 0 offen")
    vU = V.alloc(8, 4)
    r(f"v_lshrrev_b32 {v(bt)}, 3, v0"); r(f"v_add_u32 {v(bt)}, {s(sT0)}, {v(bt)}"); r(f"v_mul_u32_u24 {v(bt)}, {Y_LD}, {v(bt)}")
    r(f"v_and_b32 {v(bt+1)}, 7, v0"); r(f"v_lshl_add_u32 {v(bt)}, {v(bt+1)}, 4, {v(bt)}")
    r(f"s_add_u32 s99, {s(sT)}, 3072\nv_add_u32 {v(bt)}, s99, {v(bt)}")
    for i_ in range(2):
        r(f"s_mov_b32 s99, {64*i_*Y_LD}\nbuffer_load_dwordx4 {v(vU+4*i_,4)}, {v(bt)}, {s(srdY,4)}, s99 offen")
    zero_lds(r, 0, vz, GT, 64*384 + TB_BYTES, bt)
    distribute(extra, r.atoms, 0, 1)
    r = Rec()
    r("s_waitcnt vmcnt(30)")
    r(f"v_add_f32 {v(bt)}, {v(vGSd)}, {v(vGSd+2)}"); r(f"v_add_f32 {v(bt+1)}, {v(vGSd+1)}, {v(vGSd+3)}")
    for k in range(2, 8):
        r(f"v_add_f32 {v(bt)}, {v(bt)}, {v(vGSd+2*k)}"); r(f"v_add_f32 {v(bt+1)}, {v(bt+1)}, {v(vGSd+2*k+1)}")
    r(f"v_mul_f32 {v(bt)}, {f2u(1/512)}, {v(bt)}"); r(f"v_mul_f32 {v(bt+1)}, {f2u(1/512)}, {v(bt+1)}")
    r(f"v_fma_f32 {v(bt+1)}, -{v(bt)}, {v(bt)}, {v(bt+1)}")
    r(f"v_max_f32 {v(bt+1)}, 0, {v(bt+1)}"); r(f"v_add_f32 {v(bt+1)}, {f2u(1e-5)}, {v(bt+1)}")
    r(f"v_rsq_f32 {v(bt+2)}, {v(bt+1)}\ns_nop 0\nv_mul_f32 {v(bt+2)}, {v(bt+2)}, {v(vValid)}")
    r(f"v_mul_f32 {v(bt+3)}, -{v(bt)}, {v(bt+2)}")
    r(f"v_lshlrev_b32 {v(bt+4)}, 3, v0"); r(f"v_add_u32 {v(bt+4)}, {ST}, {v(bt+4)}")
    r(f"ds_write_b64 {v(bt+4)}, {v(bt+2,2)}")
    distribute(extra, r.atoms, 1, 2)
    r = Rec(); r("s_waitcnt vmcnt(22)"); taps_write(r, 0, bt, vTap, TB); distribute(extra, r.atoms, 2, 3)
    r = Rec()
    for gi in range(5):
        r(f"ds_read_b128 {v(vAB+8*gi,4)}, {v(vSt)} offset:{gi*256}"); r(f"ds_read_b128 {v(vAB+8*gi+4,4)}, {v(vSt)} offset:{gi*256+16}")
    distribute(extra, r.atoms, 3, 4, ks_list=(0, 1, 2))
    r = Rec()
    for gi in range(5):
        AB = vAB + 8*gi
        for r_ in range(4):
            r(f"v_lshlrev_b32 {v(vX+2*r_)}, 16, {v(vG+4*gi+r_)}"); r(f"v_and_b32 {v(vX+2*r_+1)}, 0xffff0000, {v(vG+4*gi+r_)}")
        for r_ in range(4):
            r(f"v_fma_f32 {v(vX+2*r_)}, {v(vX+2*r_)}, {v(AB+2*r_)}, {v(AB+2*r_+1)}")
            r(f"v_fma_f32 {v(vX+2*r_+1)}, {v(vX+2*r_+1)}, {v(AB+2*r_)}, {v(AB+2*r_+1)}")
        r(f"v_cvt_pk_bf16_f32 {v(vPk)}, {v(vX)}, {v(vX+2)}"); r(f"v_cvt_pk_bf16_f32 {v(vPk+1)}, {v(vX+4)}, {v(vX+6)}")
        r(f"v_cvt_pk_bf16_f32 {v(vPk+2)}, {v(vX+1)}, {v(vX+3)}"); r(f"v_cvt_pk_bf16_f32 {v(vPk+3)}, {v(vX+5)}, {v(vX+7)}")
        r(f"ds_write_b64 {v(vW[gi&1])}, {v(vPk,2)} offset:{(gi>>1)*128}")
        r(f"ds_write_b64 {v(vW[gi&1])}, {v(vPk+2,2)} offset:{(gi>>1)*128 + 384}")
    r.atoms.insert(0, "s_waitcnt vmcnt(2)")
    distribute(extra, r.atoms, 4, 7)
    r = Rec(); cvC.setup(r, vlane, SW, bt); op.setup(r, bt, OUT, sT0, sT, 10); distribute(extra, r.atoms, 7, 8)
    def reads(sl, ks, st):
        o = []
        for i in range(2): o += opV.read(fr[st]+4*i, sl, ks, tile_rows=32*i)
        o += opW.read(fr[st]+8, sl, 0, ks)
        return o
    def mfma(i, ks, st):
        return [f"{MFMA} {v(A_(mt),16)}, {v(fr[st]+4*mt,4)}, {v(fr[st]+8,4)}, " + ("0" if (i == 0 and ks == 0) else v(A_(mt),16))
                for mt in range(2)]
    emit_compute(a, n, NS, reads, mfma, extra=extra, depth=DEP)
    stamp(a, 3)
    vP = frb + 16
    a("s_nop 7"); a("s_nop 1")
    a("s_barrier")
    for mt in range(2):
        ac = A_(mt)
        for q in range(4):
            a(f"v_cvt_pk_bf16_f32 {v(vP+2*q)}, {v(ac+4*q)}, {v(ac+4*q+1)}")
            a(f"v_cvt_pk_bf16_f32 {v(vP+2*q+1)}, {v(ac+4*q+2)}, {v(ac+4*q+3)}")
        for q in range(4):
            a(f"ds_write_b64 {v(vStg)}, {v(vP+2*q,2)} offset:{mt*64 + q*16}")
    a("s_waitcnt vmcnt(0) lgkmcnt(0)")
    stamp(a, 4)
    a("s_barrier")
    store_rows(a, V, vlane, SW, t, 256, RS, STG, 8, VT_LD, srdVT, sBase, frb, 8, sTmp, sf=sf)
    cvC.emit(a, 8)
    a("s_waitcnt lgkmcnt(0)")
    a("s_barrier")
    zpass(a, V, t, op, vU, acc)
    stamp(a, 5); finish(a, 1, t, 0)
    a(f"{name}_loader:"); loader_start(a)
    V = Regs(1, 252, "v"); S = Regs(64, 72, "s")
    vlane = V.alloc(); t = V.alloc(8, 4); vl = V.alloc()
    opV, opW = mkops(V, S, 'l'); sKc = S.alloc(); sTmp = S.alloc()
    a(f"v_and_b32 {v(vlane)}, 63, v0"); a(f"v_and_b32 {v(vl)}, 255, v0")
    opV.setup_dma(a, vlane, SL, t, Y_LD, srowbase=sT0)
    opW.setup_dma(a, vlane, SL, t, 1024, colbase_s=sT)
    def ksets(): return [f"s_lshl_b32 {s(opV.s_k)}, {s(sKc)}, 7\ns_add_u32 {s(opV.s_k)}, {s(opV.s_k)}, 2048", f"s_lshl_b32 {s(opW.s_k)}, {s(sKc)}, 16"]
    def kadv(): return [f"s_add_u32 {s(sKc)}, {s(sKc)}, 1\ns_and_b32 {s(sKc)}, {s(sKc)}, 7\n" + "\n".join(ksets())]
    a(f"s_mov_b32 {s(sKc)}, {s(sC0)}")
    for l in ksets(): a(l)
    a("s_waitcnt lgkmcnt(0)")
    y_srd(a); srd_from(a, srdWo, 4, SIZES[WO])
    stamp(a, 1)
    gate(a, 1, True, t); stamp(a, 2)
    vm = Vm()
    def dma(so): return opV.dma(srdY, so) + opW.dma(srdWo, so)
    fa_blk = V.alloc(104, 4)
    cv = Conv(Overlay(V, fa_blk, fa_blk+104), GT, 384, TB, OUT, residual=False, nch=8, nsets=4)
    op = OutPass(V, 128)
    uref = {}
    def setups(a):
        cv.setup(a, vlane, SW, t); op.setup(a, t, OUT, sT0, sT, 10)
        srd_from(a, srdVT, 30, VT_BYTES, O_VT); z_srd(a)
        uref['u'] = uload(a, V, t); vm.issue("u", 2)
    bg = {n-2: [setups]}
    if gcore.CODEPF: bg[4] = [lambda a: code_prefetch(a, "k2_kernel", "k3_exit", 33, SL, 255, 254)]
    bg[n-1] = [lambda a: l2_prefetch(a, vm, t, [(40, SIZES[WMO]), (48, SIZES[DWM])])]
    emit_loader(a, vm, n, NS, slot, dma, 6, kadv, bg=bg, lag=(1 if DEP > 1 else 0))
    stamp(a, 3)
    a(f"s_waitcnt vmcnt({vm.wait('u')})")
    a("s_barrier")
    a("s_barrier")
    buf = V.alloc(16, 4)
    store_rows(a, V, vlane, SW, t, 256, RS, STG, 8, VT_LD, srdVT, sBase, buf, 4, sTmp, sf=sf)
    cv.emit(a, 8)
    a("s_waitcnt lgkmcnt(0)")
    a("s_barrier")
    zpass(a, V, t, op, uref['u'], buf+8)
    finish(a, 1, t, 4)
    return lds_total

def k2(sf=""):
    a = Asm(); stamp(a, 0)
    a("""
    s_cmp_ge_u32 s2, 256
    s_cbranch_scc1 k2_exit
    """)
    a("k2_begin:")
    if FUSED[0]: stamp(a, 0)
    a("""
    s_load_dwordx2 s[30:31], s[0:1], 80       ; ws
    s_load_dwordx2 s[4:5], s[0:1], 16         ; w_att_out
    s_load_dwordx2 s[6:7], s[0:1], 32         ; dw_csgu
    v_lshrrev_b32 v1, 6, v0
    s_and_b32 s32, s2, 7                      ; xcd
    s_lshr_b32 s33, s2, 3                     ; li
    v_readfirstlane_b32 s20, v1               ; wave
    s_lshr_b32 s21, s32, 2                    ; b
    s_and_b32 s34, s32, 3                     ; quadrant
    s_and_b32 s35, s33, 3                     ; li&3
    s_bfe_u32 s36, s33, 0x20002               ; (li>>2)&3
    s_and_b32 s37, s34, 1
    s_lshl_b32 s37, s37, 2
    s_add_u32 s23, s37, s35
    s_lshr_b32 s37, s34, 1
    s_lshl_b32 s37, s37, 2
    s_add_u32 s22, s37, s36
    s_lshl_b32 s24, s35, 1
    s_add_u32 s24, s24, s36
    s_and_b32 s24, s24, 7                     ; c0
    s_cmp_ge_u32 s33, 16
    s_cbranch_scc1 k2_typeV
    """)
    la = k2_S(a, sf)
    a("k2_typeV:")
    lb = k2_V(a, sf)
    a("k2_exit:"); a("s_endpgm")
    return ("k2_kernel", a.text(), 256, 100, None), max(la, lb)

def k1_type(a, typ, sf):
    name = f"k1{typ}"
    NE = 192 if typ == 'A' else 128
    MT = NE // 64
    DEP = OPT.get("k1d"+typ, 1 if typ == 'A' else 2)
    NS = OPT.get("k1ns"+typ, 3 if typ == 'A' else 4); n = 8
    WB = 64*NE*2
    slot = WB + 128*128
    CS = NS*slot; STAT = CS + 768
    lds_total = STAT + 1024
    RS = NE*2 + 16
    sTi, sTj, sC0, sG, sNidx, sRow0, sBase = 21, 22, 23, 36, 35, 26, 27
    srdX, srdW, srdY, srdG, srdXS, srdF = 8, 12, 16, 52, 44, 48
    ldW = 3072 if typ == 'A' else 2048
    colbase = 0 if typ == 'A' else 1536
    a(f"s_mul_i32 {s(sRow0)}, {s(sTi)}, 125")
    a(f"s_mul_i32 {s(sBase)}, {s(sRow0)}, {Y_LD}"); a(f"s_mul_i32 s99, {s(sTj)}, {NE*2}")
    a(f"s_add_u32 {s(sBase)}, {s(sBase)}, s99"); a(f"s_add_u32 {s(sBase)}, {s(sBase)}, {colbase*2}")
    role_split(a, name)
    def mkops(V, S, role):
        opW = OpT(NE, 0); opX = OpK(128, opW.bytes)
        opW.alloc(V, S, NS, MT, role=role); opX.alloc(V, S, NS, 1, role=role)
        return opW, opX
    rows_pw = 16
    V = Regs(1, 252, "v"); S = Regs(56, 72, "s")
    vlane = V.alloc(); t = V.alloc(8, 4)
    opW, opX = mkops(V, S, 'c')
    acc = V.alloc(MT*2*16, 4); frb = V.alloc(max(4*(DEP+1)*(MT+2), 16*MT, 32), 4); fr = [frb + 4*(MT+2)*k for k in range(DEP+1)]
    fW = lambda st, mt: fr[st] + 4*mt
    fX = lambda st, nt: fr[st] + 4*MT + 4*nt
    A_ = lambda mt, nt: acc + (mt*2 + nt)*16
    sWm = S.alloc(); sWn = S.alloc(); sSeg = S.alloc(); sT = S.alloc(); sCol = S.alloc()
    a(f"v_and_b32 {v(vlane)}, 63, v0")
    a(f"s_and_b32 {s(sWm)}, {s(SW)}, 1"); a(f"s_lshr_b32 {s(sWn)}, {s(SW)}, 1")
    a(f"s_mul_i32 {s(sSeg)}, {s(sWm)}, {MT}")
    opW.setup_read(a, vlane, t, sSeg, slot)
    vrow = V.alloc()
    a(f"v_and_b32 {v(t)}, 31, {v(vlane)}")
    a(f"s_lshl_b32 s99, {s(sWn)}, 6"); a(f"v_add_u32 {v(vrow)}, s99, {v(t)}")
    opX.setup_read(a, vlane, t, 0, vrow, slot)
    vCsA = V.alloc(); vStA = V.alloc(); vStg = V.alloc()
    a(f"v_lshrrev_b32 {v(t)}, 5, {v(vlane)}")
    a(f"v_lshlrev_b32 {v(vCsA)}, 4, {v(t)}")
    a(f"s_mul_i32 s99, {s(sWm)}, {NE*2}"); a(f"s_add_u32 s99, s99, {CS}"); a(f"v_add_u32 {v(vCsA)}, s99, {v(vCsA)}")
    a(f"v_lshlrev_b32 {v(vStA)}, 3, {v(vrow)}"); a(f"v_add_u32 {v(vStA)}, {STAT}, {v(vStA)}")
    a(f"v_mul_u32_u24 {v(vStg)}, {RS}, {v(vrow)}")
    a(f"v_lshl_add_u32 {v(vStg)}, {v(t)}, 3, {v(vStg)}")
    a(f"s_mul_i32 s99, {s(sWm)}, {NE}"); a(f"v_add_u32 {v(vStg)}, s99, {v(vStg)}")
    if typ == 'B':
        sC = S.alloc(2, 2); vC = V.alloc(4, 2)
        k1c = 2*0.7978845608028654*1.4426950408889634
        a(f"s_mov_b32 {s(sC)}, {f2u(1.0)}"); a(f"s_mov_b32 {s(sC+1)}, {f2u(1.0)}")
        a(f"v_mov_b32 {v(vC)}, {f2u(-k1c*0.044715)}"); a(f"v_mov_b32 {v(vC+1)}, {f2u(-k1c*0.044715)}")
        a(f"v_mov_b32 {v(vC+2)}, {f2u(-k1c)}"); a(f"v_mov_b32 {v(vC+3)}, {f2u(-k1c)}")
        vG = [[V.alloc(2,2), V.alloc(2,2)] for _ in range(2)]
        for nt in range(2):
            for r in vG[nt]: a(f"v_mov_b32 {v(r)}, 0"); a(f"v_mov_b32 {v(r+1)}, 0")
    a("s_waitcnt lgkmcnt(0)")
    a("s_mov_b32 s30, s42"); a("s_mov_b32 s31, s43")
    srd_from(a, srdY, 30, Y_BYTES, O_Y)
    if typ == 'B': srd_from(a, srdG, 30, GS_BYTES, O_GS)
    if FUSED[0] and typ == 'A':
        a("s_cmp_eq_u32 s2, 0"); a(f"s_cbranch_scc0 {name}_nz")
        a(f"s_cmp_eq_u32 {s(SW)}, 0"); a(f"s_cbranch_scc0 {name}_nz")
        a(f"s_add_u32 s76, s30, {O_BAR}"); a("s_addc_u32 s77, s31, 0"); a("s_mov_b32 s78, 4096"); a("s_mov_b32 s79, 0x20000")
        a(f"v_lshlrev_b32 {v(t)}, 7, {v(vlane)}"); a(f"v_mov_b32 {v(t+1)}, 0")
        a("s_mov_b32 exec_hi, 0")
        a(f"buffer_store_dword {v(t+1)}, {v(t)}, s[76:79], 0 offen sc1")
        a("s_mov_b64 exec, -1")
        a(f"{name}_nz:")
    stamp(a, 1)
    def reads(sl, ks, st):
        o = []
        for nt in range(2): o += opX.read(fX(st, nt), sl, ks, tile_rows=32*nt)
        for mt in range(MT): o += opW.read(fW(st, mt), sl, mt, ks)
        return o
    def mfma(i, ks, st):
        if OPT.get("nomfma"): return ["s_nop 0"]*(2*MT)
        return [f"{MFMA} {v(A_(mt,nt),16)}, {v(fW(st,mt),4)}, {v(fX(st,nt),4)}, " + ("0" if (i == 0 and ks == 0) else v(A_(mt,nt),16))
                for mt in range(MT) for nt in range(2)]
    if OPT.get("noreads"):
        reads0 = reads
        reads = lambda sl, ks, st: ["ds_read_b32 v1, v1"]
    emit_compute(a, n, NS, reads, mfma, depth=DEP)
    stamp(a, 3)
    a("s_nop 7"); a("s_nop 3")
    a(f"s_cmp_eq_u32 {s(sWn)}, 1"); a(f"s_cbranch_scc0 {name}_nocs")
    a(f"s_mov_b32 exec_lo, {1<<29}"); a(f"s_mov_b32 exec_hi, {1<<29}")
    for mt in range(MT):
        for q in range(4): a(f"ds_write_b128 {v(vCsA)}, {v(A_(mt,1)+4*q,4)} offset:{mt*128+q*32}")
    a("s_mov_b64 exec, -1")
    a(f"{name}_nocs:")
    a("s_waitcnt lgkmcnt(0)")
    a("s_barrier")
    vCS = frb; vXS = [V.alloc(2, 2), V.alloc(2, 2)]
    for nt in range(2): a(f"ds_read_b64 {v(vXS[nt],2)}, {v(vStA)} offset:{nt*256}")
    for mt in range(MT):
        for q in range(4): a(f"ds_read_b128 {v(vCS+16*mt+4*q,4)}, {v(vCsA)} offset:{mt*128+q*32}")
    vT = V.alloc(16, 2); vP = V.alloc(8, 2)
    a("s_waitcnt lgkmcnt(0)")
    for mt in range(MT):
        for nt in range(2):
            ac = A_(mt, nt)
            P_ = range(8); R_ = lambda pr: ac + 2*pr; T_ = lambda pr: vT + 2*pr
            for pr in P_: a(f"v_pk_mul_f32 {v(T_(pr),2)}, {v(vCS+16*mt+2*pr,2)}, {v(vXS[nt],2)} op_sel:[0,1] op_sel_hi:[1,1]")
            for pr in P_: a(f"v_pk_fma_f32 {v(R_(pr),2)}, {v(R_(pr),2)}, {v(vXS[nt],2)}, {v(T_(pr),2)} op_sel_hi:[1,0,1] neg_lo:[0,0,1] neg_hi:[0,0,1]")
            if typ == 'B':
                for pr in P_: a(f"v_pk_mul_f32 {v(T_(pr),2)}, {v(R_(pr),2)}, {v(R_(pr),2)}")
                for pr in P_: a(f"v_pk_fma_f32 {v(T_(pr),2)}, {v(T_(pr),2)}, {v(vC,2)}, {v(vC+2,2)}")
                for pr in P_: a(f"v_pk_mul_f32 {v(T_(pr),2)}, {v(T_(pr),2)}, {v(R_(pr),2)}")
                for pr in P_: a(f"v_exp_f32 {v(T_(pr))}, {v(T_(pr))}"); a(f"v_exp_f32 {v(T_(pr)+1)}, {v(T_(pr)+1)}")
                for pr in P_: a(f"v_pk_add_f32 {v(T_(pr),2)}, {v(T_(pr),2)}, {s(sC,2)}")
                for pr in P_: a(f"v_rcp_f32 {v(T_(pr))}, {v(T_(pr))}"); a(f"v_rcp_f32 {v(T_(pr)+1)}, {v(T_(pr)+1)}")
                for pr in P_: a(f"v_pk_mul_f32 {v(R_(pr),2)}, {v(R_(pr),2)}, {v(T_(pr),2)}")
                for pr in P_:
                    a(f"v_pk_add_f32 {v(vG[nt][0],2)}, {v(vG[nt][0],2)}, {v(R_(pr),2)}")
                    a(f"v_pk_fma_f32 {v(vG[nt][1],2)}, {v(R_(pr),2)}, {v(R_(pr),2)}, {v(vG[nt][1],2)}")
            for q in range(4):
                a(f"v_cvt_pk_bf16_f32 {v(vP+2*q)}, {v(ac+4*q)}, {v(ac+4*q+1)}")
                a(f"v_cvt_pk_bf16_f32 {v(vP+2*q+1)}, {v(ac+4*q+2)}, {v(ac+4*q+3)}")
            for q in range(4):
                a(f"ds_write_b64 {v(vStg)}, {v(vP+2*q,2)} offset:{nt*32*RS + mt*64 + q*16}")
    a("s_waitcnt lgkmcnt(0)")
    stamp(a, 4)
    a("s_barrier")
    store_rows(a, V, vlane, SW, t, NE*2, RS, 0, rows_pw, Y_LD, srdY, sBase, frb, 8, sT, rowlimit=125, sf=sf, nw=8)
    if typ == 'B':
        a(f"s_cmp_ge_u32 {s(sTj)}, 4"); a(f"s_cbranch_scc0 {name}_end")
        a(f"s_sub_u32 s99, {s(sTj)}, 4"); a(f"s_lshl_b32 s99, s99, 1"); a(f"s_add_u32 s99, s99, {s(sWm)}")
        a(f"s_lshl_b32 {s(sCol)}, s99, 14")
        for nt in range(2):
            a(f"v_add_f32 {v(t)}, {v(vG[nt][0])}, {v(vG[nt][0]+1)}")
            a(f"v_add_f32 {v(t+1)}, {v(vG[nt][1])}, {v(vG[nt][1]+1)}")
            halfop(a, "v_add_f32", t, t+2); halfop(a, "v_add_f32", t+1, t+3)
            a(f"v_add_u32 {v(t+5)}, {32*nt}, {v(vrow)}")
            a(f"v_add_u32 {v(t+4)}, {s(sRow0)}, {v(t+5)}")
            a(f"v_lshlrev_b32 {v(t+4)}, 3, {v(t+4)}")
            a(f"v_cmp_gt_u32 vcc, 125, {v(t+5)}")
            a(f"v_mov_b32 {v(t+6)}, 0x80000000"); a("s_nop 0")
            a(f"v_cndmask_b32 {v(t+4)}, {v(t+6)}, {v(t+4)}, vcc")
            a("s_mov_b32 exec_hi, 0")
            a(f"buffer_store_dwordx2 {v(t,2)}, {v(t+4)}, {s(srdG,4)}, {s(sCol)} offen {sf}")
            a("s_mov_b32 exec_hi, -1"); a("s_nop 1")
    a(f"{name}_end:")
    stamp(a, 5); finish(a, 0, t, 0)
    a(f"{name}_loader:"); loader_start(a)
    V = Regs(1, 252, "v"); S = Regs(56, 72, "s")
    vlane = V.alloc(); t = V.alloc(8, 4)
    opW, opX = mkops(V, S, 'l')
    sMask = S.alloc(2, 2); sKc = S.alloc(); sCol = S.alloc(); sT = S.alloc(); sFo = S.alloc()
    a(f"v_and_b32 {v(vlane)}, 63, v0")
    opX.setup_dma(a, vlane, SL, t, 1024, srowbase=sRow0)
    a(f"s_mul_i32 {s(sCol)}, {s(sTj)}, {NE*2}")
    opW.setup_dma(a, vlane, SL, t, ldW, colbase_s=sCol)
    a(f"s_cmp_eq_u32 {s(SL)}, 3")
    a(f"s_cselect_b32 {s(sMask)}, 0xffffffff, 0xffffffff"); a(f"s_cselect_b32 {s(sMask+1)}, 0xff, 0xffffffff")
    def ksets(): return [f"s_mul_i32 {s(opW.s_k)}, {s(sKc)}, {64*ldW}", f"s_lshl_b32 {s(opX.s_k)}, {s(sKc)}, 7"]
    def kadv(): return [f"s_add_u32 {s(sKc)}, {s(sKc)}, 1\ns_and_b32 {s(sKc)}, {s(sKc)}, 7\n" + "\n".join(ksets())]
    a(f"s_mov_b32 {s(sKc)}, {s(sC0)}")
    for l in ksets(): a(l)
    a(f"v_mov_b32 {v(t+4)}, 0x3f803f80")
    for k in range(1, 4): a(f"v_mov_b32 {v(t+4+k)}, 0x3f803f80")
    a(f"v_lshlrev_b32 {v(t)}, 4, {v(vlane)}")
    a("s_mov_b64 exec, 0xffffff")
    for sl in range(NS):
        a(f"v_add_u32 {v(t+1)}, {sl*slot + WB + 125*128}, {v(t)}")
        a(f"ds_write_b128 {v(t+1)}, {v(t+4,4)}")
    a("s_mov_b64 exec, -1")
    a("s_waitcnt lgkmcnt(0)")
    a("s_mov_b32 s30, s42"); a("s_mov_b32 s31, s43")
    srd_from(a, srdX, 4, SIZES[X])
    if typ == 'A': srd_from(a, srdW, 6, SIZES[WQKV])
    else: srd_from(a, srdW, 28, SIZES[WIN])
    stamp(a, 1)
    vm = Vm()
    def dma(so): return opX.dma(srdX, so, masks={3: sMask}) + opW.dma(srdW, so)
    ndma = opW.nper + opX.nper
    buf = V.alloc(32, 4)
    bg = {}
    vSa = [V.alloc() for _ in range(4)]; vSum = V.alloc(2); vSq = V.alloc(2); vD = V.alloc(16, 4); vU = V.alloc(8)
    def pre(a):
        srd_from(a, srdY, 30, Y_BYTES, O_Y)
        a(f"v_and_b32 {v(t)}, 255, v0")
        a(f"v_lshrrev_b32 {v(t+1)}, 1, {v(t)}")
        a(f"v_and_b32 {v(t+2)}, 1, {v(t)}")
        a(f"v_bfe_u32 {v(t+3)}, {v(t+1)}, 1, 2")
        a(f"v_lshlrev_b32 {v(t+1)}, 7, {v(t+1)}")
        a(f"v_lshl_add_u32 {v(t+1)}, {v(t+2)}, 6, {v(t+1)}")
        a(f"v_lshl_add_u32 {v(t+1)}, {v(t+3)}, 4, {v(t+1)}")
        for k in range(4):
            a(f"v_xor_b32 {v(vSa[k])}, {16*k}, {v(t+1)}")
            a(f"v_add_u32 {v(vSa[k])}, {WB}, {v(vSa[k])}")
        for r in (vSum, vSum+1, vSq, vSq+1): a(f"v_mov_b32 {v(r)}, 0")
    def stats(i):
        def f(a):
            so = (i % NS)*slot
            for k in range(4):
                if so < 32768: a(f"ds_read_b128 {v(vD+4*k,4)}, {v(vSa[k])} offset:{so}")
                else:
                    a(f"v_add_u32 {v(t)}, {so}, {v(vSa[k])}"); a(f"ds_read_b128 {v(vD+4*k,4)}, {v(t)}")
            for k in range(4):
                a(f"s_waitcnt lgkmcnt({3-k})")
                for d in range(4):
                    r = vD + 4*k + d; lo = vU + 2*d
                    a(f"v_lshlrev_b32 {v(lo)}, 16, {v(r)}"); a(f"v_and_b32 {v(lo+1)}, 0xffff0000, {v(r)}")
                for d in range(4):
                    lo = vU + 2*d
                    a(f"v_add_f32 {v(vSum)}, {v(vSum)}, {v(lo)}"); a(f"v_add_f32 {v(vSum+1)}, {v(vSum+1)}, {v(lo+1)}")
                    a(f"v_fmac_f32 {v(vSq)}, {v(lo)}, {v(lo)}"); a(f"v_fmac_f32 {v(vSq+1)}, {v(lo+1)}, {v(lo+1)}")
            if i == n-1:
                a(f"v_add_f32 {v(t)}, {v(vSum)}, {v(vSum+1)}"); a(f"v_add_f32 {v(t+1)}, {v(vSq)}, {v(vSq+1)}")
                a("s_nop 1")
                a(f"v_add_f32_dpp {v(t)}, {v(t)}, {v(t)} quad_perm:[1,0,3,2] row_mask:0xf bank_mask:0xf")
                a(f"v_add_f32_dpp {v(t+1)}, {v(t+1)}, {v(t+1)} quad_perm:[1,0,3,2] row_mask:0xf bank_mask:0xf")
                a(f"v_mul_f32 {v(t)}, {f2u(1/512)}, {v(t)}"); a(f"v_mul_f32 {v(t+1)}, {f2u(1/512)}, {v(t+1)}")
                a(f"v_fma_f32 {v(t+1)}, -{v(t)}, {v(t)}, {v(t+1)}")
                a(f"v_max_f32 {v(t+1)}, 0, {v(t+1)}"); a(f"v_add_f32 {v(t+1)}, {f2u(1e-5)}, {v(t+1)}")
                a(f"v_rsq_f32 {v(t+2)}, {v(t+1)}"); a("s_nop 0")
                a(f"v_mul_f32 {v(t+3)}, {v(t)}, {v(t+2)}")
                a(f"v_and_b32 {v(t+4)}, 255, v0"); a(f"v_lshrrev_b32 {v(t+4)}, 1, {v(t+4)}")
                a(f"v_lshlrev_b32 {v(t+4)}, 3, {v(t+4)}"); a(f"v_add_u32 {v(t+4)}, {STAT}, {v(t+4)}")
                a(f"ds_write_b64 {v(t+4)}, {v(t+2,2)}")
                a("s_waitcnt lgkmcnt(0)")
        return f
    bg[-1] = [pre]
    mix = {i: stats(i) for i in range(n)}
    if OPT.get('nostats'): mix = {n-1: stats(n-1)}
    if gcore.CODEPF: bg[3] = [lambda a: code_prefetch(a, "k1_kernel", "k4_exit", 33, SL, 255, 254)]
    bg[n-3] = [lambda a: l2_prefetch(a, vm, t, [(40, SIZES[WMO]), (56, SIZES[WM]), (48, SIZES[DWM])], once=True)]
    bg[n-2] = [lambda a: l2_prefetch(a, vm, t, [(16, SIZES[WO]), (32, SIZES[DWC])], once=bool(OPT.get("k1once")))]
    emit_loader(a, vm, n, NS, slot, (lambda so: [] ) if OPT.get('nodma') else dma, ndma, kadv, bg=bg, mix=mix, npre=OPT.get('npre', 2), lag=(1 if DEP > 1 else 0))
    stamp(a, 3)
    a("s_barrier")
    a("s_barrier")
    store_rows(a, V, vlane, SW, t, NE*2, RS, 0, rows_pw, Y_LD, srdY, sBase, buf, 8, sT, rowlimit=125, sf=sf, nw=8)
    finish(a, 0, t, 4)
    return lds_total

def k1(sf=""):
    a = Asm(); stamp(a, 0)
    a("""
    s_cmp_ge_u32 s2, 256
    s_cbranch_scc1 k1_exit
    s_load_dwordx4 s[4:7], s[0:1], 0          ; x, wqkv
    s_load_dwordx2 s[28:29], s[0:1], 24       ; win
    s_load_dwordx4 s[40:43], s[0:1], 72
    v_lshrrev_b32 v1, 6, v0
    s_and_b32 s32, s2, 7                      ; xcd
    s_lshr_b32 s33, s2, 3                     ; li
    v_readfirstlane_b32 s20, v1               ; wave
    s_and_b32 s34, s33, 7
    s_and_b32 s21, s32, 1
    s_lshl_b32 s21, s21, 3
    s_add_u32 s21, s21, s34                   ; ti
    s_lshr_b32 s35, s33, 3                    ; nidx 0..3
    s_lshl_b32 s23, s35, 1
    s_add_u32 s23, s23, s34
    s_and_b32 s23, s23, 7                     ; c0
    s_lshr_b32 s36, s32, 1                    ; g
    s_lshl_b32 s22, s36, 1
    s_and_b32 s37, s35, 1
    s_add_u32 s22, s22, s37
    s_cmp_ge_u32 s35, 2
    s_cbranch_scc1 k1_typeB
    """)
    la = k1_type(a, 'A', sf)
    a("k1_typeB:")
    lb = k1_type(a, 'B', sf)
    a("k1_exit:"); a("s_endpgm")
    return ("k1_kernel", a.text(), 256, 100, None), max(la, lb)

KNAME = "standalone__conformer_family_e_branchformer__speech_kernel"
def build_fused(prof=False, sf="", sf_last="", as_list=True):
    gcore.PROF = prof; FUSED[0] = True
    A, la = k1(sf); B, lb = k2(sf); C, lc = k3(sf); D, ld = k4(sf_last)
    FUSED[0] = False
    lds = max(la, lb, lc, ld)
    body = A[1].replace("k1_kernel", KNAME) + B[1].replace("k1_kernel", KNAME) + C[1] + D[1]
    body = body.replace('"k2_kernel"', "k2_begin")
    for nm in ("k2_kernel", "k3_kernel", "k4_kernel"): body = body.replace(nm, nm[:2] + "_begin")
    if as_list:
        return make_file([(KNAME, 256, 512, lds)], [(KNAME, body, 256, 100, None)])
    t = make_file([(KNAME, 256, 512, lds)], [(KNAME, body, 256, 100, None)])
    return t.replace(f"; @launch kernel={KNAME} grid", "; @launch grid")

def build_all(prof=False, sf="", sf_last=""):
    if OPT.get("fused"): return build_fused(prof, sf, sf_last)
    gcore.PROF = prof
    A, la = k1(sf); B, lb = k2(sf); C, lc = k3(sf); D, ld = k4(sf_last)
    print("lds", la, lb, lc, ld)
    return make_file([("k1_kernel",256,512,la),("k2_kernel",256,512,lb),("k3_kernel",256,512,lc),("k4_kernel",256,512,ld)], [A,B,C,D])
if __name__ == "__main__":
    import build, sys
    gcore.CODEPF = "nocodepf" not in sys.argv
    if "fused" in sys.argv: OPT["fused"] = 1
    sf = " ".join(x for x in sys.argv[1:] if x in ("sc1","sc0","nt"))
    open("all.s","w").write(build_all("prof" in sys.argv, sf, sf))
    build.build("all.s","all.co")
```

```python
import struct
def f2u(f): return struct.unpack("<I", struct.pack("<f", f))[0]

class Asm:
    def __init__(self):
        self.lines = []
    def __call__(self, s=""):
        for l in s.split("\n"):
            l = l.strip()
            if not l: continue
            if l.endswith(":"): self.lines.append(l)
            else: self.lines.append("    " + l)
    def c(self, s): self.lines.append("    ; " + s)
    def text(self): return "\n".join(self.lines) + "\n"

class Regs:
    def __init__(self, start, limit, prefix):
        self.n = start; self.limit = limit; self.p = prefix; self.hi = start
    def alloc(self, cnt=1, align=1):
        self.n = (self.n + align - 1) // align * align
        r = self.n; self.n += cnt
        assert self.n <= self.limit, f"out of {self.p} regs: {self.n}"
        self.hi = max(self.hi, self.n)
        return r
    def mark(self): return self.n
    def release(self, m): self.n = m

def v(r, n=1): return f"v{r}" if n == 1 else f"v[{r}:{r+n-1}]"
def s(r, n=1): return f"s{r}" if n == 1 else f"s[{r}:{r+n-1}]"

X,WQKV,WO,WIN,DWC,WMO,DWM,WM,OUT,DBG,WS = range(11)
SIZES = {X:2*1000*512*2, WQKV:512*1536*2, WO:512*512*2, WIN:512*1024*2, DWC:31*512*2, WMO:512*512*2,
         DWM:31*1024*2, WM:1024*512*2, OUT:2*1000*512*2, WS:1<<28}

def interleave(main, fill, start=0):
    out = []
    n = len(main)
    k = 0
    for i, m in enumerate(main):
        out.append(m)
        if i < start: continue
        rem_slots = n - i
        take = -(-(len(fill) - k) // rem_slots)
        for _ in range(take):
            if k < len(fill): out.append(fill[k]); k += 1
    out += fill[k:]
    return out

def kernel_header(name):
    return f".globl {name}\n.p2align 8\n.type {name},@function\n{name}:\n"
def kernel_desc(name, vgpr, sgpr=96, accum=None):
    if accum is None: accum = (vgpr + 3) // 4 * 4
    return f""".amdhsa_kernel {name}
  .amdhsa_next_free_vgpr {vgpr}
  .amdhsa_next_free_sgpr {sgpr}
  .amdhsa_accum_offset {accum}
  .amdhsa_group_segment_fixed_size 0
  .amdhsa_kernarg_size 88
  .amdhsa_user_sgpr_count 2
  .amdhsa_user_sgpr_kernarg_segment_ptr 1
  .amdhsa_system_sgpr_workgroup_id_x 1
.end_amdhsa_kernel
"""
def make_file(launches, kernels, head=""):
    t = head
    for (n, g, b, l) in launches:
        t += f"; @launch kernel={n} grid=({g},1,1) block=({b},1,1) lds={l}\n"
    t += '.amdgcn_target "amdgcn-amd-amdhsa--gfx950"\n.text\n'
    for k in kernels:
        t += kernel_header(k[0]) + k[1]
    t += '.section .rodata,"a"\n'
    for k in kernels:
        t += ".p2align 6\n" + kernel_desc(k[0], k[2], k[3], k[4])
    return t

PROF = False
CODEPF = True
O_PROF = 0x3000000
def stamp(a, idx):
    if PROF: a(f"s_memtime s[{84+2*idx}:{85+2*idx}]")
def prof_flush(a, ws_ptr, kidx, nst, vt):
    if not PROF: return
    a("s_waitcnt lgkmcnt(0)")
    a(f"s_memrealtime s[80:81]")
    a(f"s_add_u32 s76, s{ws_ptr}, {O_PROF + kidx*65536}")
    a(f"s_addc_u32 s77, s{ws_ptr+1}, 0")
    a("s_mov_b32 s78, 65536")
    a("s_mov_b32 s79, 0x20000")
    a("s_waitcnt lgkmcnt(0)")
    a(f"s_lshl_b32 s98, s2, 6")
    a(f"v_mov_b32 {v(vt)}, s98")
    a(f"v_cmp_eq_u32 vcc, 0, v0")
    a("s_and_saveexec_b64 s[82:83], vcc")
    a("s_cbranch_execz .Lprof_skip_%d_%d" % (kidx, len(a.lines)))
    lab = ".Lprof_skip_%d_%d" % (kidx, len(a.lines)-1)
    for i in range(nst):
        a(f"v_mov_b32 {v(vt+1)}, s{84+2*i}")
        a(f"buffer_store_dword {v(vt+1)}, {v(vt)}, s[76:79], 0 offen offset:{4*i}")
    a(f"v_mov_b32 {v(vt+1)}, s80")
    a(f"buffer_store_dword {v(vt+1)}, {v(vt)}, s[76:79], 0 offen offset:60")
    a(lab + ":")
    a("s_mov_b64 exec, s[82:83]")

_pf_id = [0]
def code_prefetch(a, start_label, end_label, s_li, s_wave, vdst, vt, maxwg=16):
    _pf_id[0] += 1
    L = f".Lpf{_pf_id[0]}"
    a(f"s_cmp_lt_u32 {s(s_li)}, {maxwg}")
    a(f"s_cbranch_scc0 {L}_skip")
    a(f"s_cmp_eq_u32 {s(s_wave)}, 0")
    a(f"s_cbranch_scc0 {L}_skip")
    a(f"s_getpc_b64 s[96:97]")
    a(f"{L}_pc:")
    a(f"s_add_u32 s96, s96, ({start_label} - {L}_pc) & 0xffffffff")
    a(f"s_addc_u32 s97, s97, (({start_label} - {L}_pc) >> 32) & 0xffffffff")
    a(f"v_and_b32 {v(vt)}, 63, v0")
    a(f"s_lshl_b32 s98, {s(s_li)}, 6")
    a(f"v_add_u32 {v(vt)}, s98, {v(vt)}")
    a(f"v_lshlrev_b32 {v(vt)}, 7, {v(vt)}")
    a(f"v_min_u32 {v(vt)}, ({end_label} - {start_label} - 4), {v(vt)}")
    a(f"global_load_dword {v(vdst)}, {v(vt)}, s[96:97]")
    a(f"{L}_skip:")

class Overlay:
    def __init__(self, V, big0, big1, pool=(), minbig=8):
        self.V = V; self.n = big0; self.end = big1; self.pool = list(pool); self.minbig = minbig
    def alloc(self, cnt=1, align=1):
        if cnt >= self.minbig:
            self.n = (self.n + align - 1)//align*align; r = self.n; self.n += cnt
            assert self.n <= self.end, "overlay overflow"
            return r
        if cnt == 1 and self.pool: return self.pool.pop(0)
        return self.V.alloc(cnt, align)
```

```python
from gcore import *

class OpK:
    def __init__(self, rows, lds_off):
        self.rows = rows; self.lds_off = lds_off; self.bytes = rows * 128
        self.nper = rows // 32
        assert rows % 32 == 0
    def alloc(self, V, S, NS, nsets=1):
        self.NS = NS
        self.voff = [V.alloc() for _ in range(self.nper)]
        self.addr = [[[V.alloc() for _ in range(4)] for _ in range(NS)] for _ in range(nsets)]
        self.s_ldsw = S.alloc(); self.s_k = S.alloc()
    def setup_dma(self, a, vlane, swave, vtmp, ld, srowbase=None, rowfn=None):
        t0, t1, t2 = vtmp, vtmp+1, vtmp+2
        rpw = self.rows // 4
        assert rpw % 16 == 0 or self.nper == 1
        a(f"s_mul_i32 s99, {s(swave)}, {rpw}")
        a(f"s_mul_i32 {s(self.s_ldsw)}, {s(swave)}, {self.nper*1024}")
        if rowfn is None:
            if srowbase is not None: a(f"s_add_u32 s99, s99, {s(srowbase)}")
            a(f"v_lshrrev_b32 {v(t0)}, 3, {v(vlane)}")
            a(f"v_lshrrev_b32 {v(t1)}, 4, {v(vlane)}")
            if self.nper == 1 and rpw % 16:
                a(f"s_and_b32 s98, {s(swave)}, 1")
                a(f"s_lshl_b32 s98, s98, 2")
                a(f"v_add_u32 {v(t1)}, s98, {v(t1)}")
            a(f"v_and_b32 {v(t2)}, 7, {v(vlane)}")
            a(f"v_xor_b32 {v(t1)}, {v(t1)}, {v(t2)}")
            a(f"v_add_u32 {v(t0)}, s99, {v(t0)}")
            if ld & (ld-1) == 0: a(f"v_lshlrev_b32 {v(t0)}, {ld.bit_length()-1}, {v(t0)}")
            else: a(f"v_mul_i32_i24 {v(t0)}, {ld}, {v(t0)}")
            a(f"v_lshl_add_u32 {v(self.voff[0])}, {v(t1)}, 4, {v(t0)}")
            if self.nper > 1:
                a(f"v_xor_b32 {v(t1)}, 4, {v(t1)}")
                a(f"v_lshl_add_u32 {v(t2)}, {v(t1)}, 4, {v(t0)}")
            for j in range(1, self.nper):
                src = t2 if j & 1 else self.voff[0]
                a(f"v_add_u32 {v(self.voff[j])}, {8*j*ld - (j%4)*1024}, {v(src)}")
            return
        a(f"v_lshrrev_b32 {v(t2)}, 3, {v(vlane)}")
        a(f"v_add_u32 {v(t2)}, s99, {v(t2)}")
        for j in range(self.nper):
            o = self.voff[j]
            if j: a(f"v_add_u32 {v(t0)}, {8*j}, {v(t2)}")
            else: a(f"v_mov_b32 {v(t0)}, {v(t2)}")
            a(f"v_bfe_u32 {v(t1)}, {v(t0)}, 1, 3")
            a(f"v_and_b32 {v(o)}, 7, {v(vlane)}")
            a(f"v_xor_b32 {v(t1)}, {v(t1)}, {v(o)}")
            rowfn(a, t0)
            if ld & (ld-1) == 0: a(f"v_lshlrev_b32 {v(t0)}, {ld.bit_length()-1}, {v(t0)}")
            else: a(f"v_mul_u32_u24 {v(t0)}, {ld}, {v(t0)}")
            a(f"v_lshl_add_u32 {v(o)}, {v(t1)}, 4, {v(t0)}")
            if j % 4: a(f"v_subrev_u32 {v(o)}, {(j%4)*1024}, {v(o)}")
    def setup_read(self, a, vlane, vtmp, st, vrow0, slot_bytes):
        t0, t1 = vtmp, vtmp+1
        a(f"v_bfe_u32 {v(t0)}, {v(vrow0)}, 1, 3")
        a(f"v_lshrrev_b32 {v(t1)}, 5, {v(vlane)}")
        a(f"v_xor_b32 {v(t0)}, {v(t0)}, {v(t1)}")
        a(f"v_lshlrev_b32 {v(t0)}, 4, {v(t0)}")
        a(f"v_lshl_add_u32 {v(t0)}, {v(vrow0)}, 7, {v(t0)}")
        for ks in range(4):
            if ks: a(f"v_xor_b32 {v(t1)}, {ks*32}, {v(t0)}")
            src = t1 if ks else t0
            for sl in range(self.NS):
                a(f"v_add_u32 {v(self.addr[st][sl][ks])}, {self.lds_off + sl*slot_bytes}, {v(src)}")
    def dma(self, srd, slot_off, masks=None, flags=""):
        out = []
        for j in range(self.nper):
            at = []
            if j % 4 == 0:
                at.append(f"s_add_u32 m0, {s(self.s_ldsw)}, {slot_off + self.lds_off + (j//4)*4096}")
                at.append("s_nop 0")
            if masks and j in masks: at.append(f"s_mov_b64 exec, {s(masks[j],2)}")
            at.append(f"buffer_load_dwordx4 {v(self.voff[j])}, {s(srd,4)}, {s(self.s_k)} offen offset:{(j%4)*1024} lds {flags}")
            if masks and j in masks: at.append("s_mov_b64 exec, -1")
            out.append("\n".join(at))
        return out
    def read(self, dst, slot, ks, tile_rows=0, st=0):
        return [f"ds_read_b128 {v(dst,4)}, {v(self.addr[st][slot][ks])} offset:{tile_rows*128}"]

class OpT:
    def __init__(self, width_elems, lds_off):
        self.W = width_elems * 2; self.lds_off = lds_off; self.bytes = 64 * self.W
        assert self.W in (128, 256, 384, 512)
        self.cpr = self.W // 16
        self.nper = self.bytes // 1024 // 4
    def key_from_row(self, a, dst, row):
        if self.W in (256, 512): a(f"v_and_b32 {v(dst)}, 3, {v(row)}")
        else: a(f"v_bfe_u32 {v(dst)}, {v(row)}, 1, 1")
    def alloc(self, V, S, NS, ntiles):
        self.NS = NS
        self.voff = [V.alloc() for _ in range(self.nper)]
        self.addr = [[V.alloc() for _ in range(ntiles)] for _ in range(NS)]
        self.s_ldsw = S.alloc(); self.s_k = S.alloc()
    def setup_dma(self, a, vlane, swave, vtmp, ld, colbase_s=None):
        t0, t1, t2 = vtmp, vtmp+1, vtmp+2
        a(f"s_mul_i32 {s(self.s_ldsw)}, {s(swave)}, {self.nper*1024}")
        period = 3 if self.cpr == 24 else 1
        rows_per = period * 64 // self.cpr
        rows_wave = self.nper * 64 // self.cpr
        if self.W in (256, 512): assert rows_per % 4 == 0 or self.W == 512
        a(f"s_mul_i32 s99, {s(swave)}, {rows_wave*ld}")
        if colbase_s is not None: a(f"s_add_u32 s99, s99, {s(colbase_s)}")
        npat = period
        if self.W == 512: npat = 2
        for j in range(min(npat, self.nper)):
            o = self.voff[j]
            if self.cpr == 24:
                if j: a(f"v_add_u32 {v(t0)}, {64*j}, {v(vlane)}")
                src = t0 if j else vlane
                a(f"v_mul_u32_u24 {v(t1)}, 2731, {v(src)}")
                a(f"v_lshrrev_b32 {v(t1)}, 16, {v(t1)}")
                a(f"v_mul_u32_u24 {v(t2)}, 24, {v(t1)}")
                a(f"v_sub_u32 {v(t0)}, {v(src)}, {v(t2)}")
            else:
                sh = self.cpr.bit_length() - 1
                a(f"v_lshrrev_b32 {v(t1)}, {sh}, {v(vlane)}")
                if j: a(f"v_add_u32 {v(t1)}, {j*rows_per}, {v(t1)}")
                a(f"v_and_b32 {v(t0)}, {self.cpr-1}, {v(vlane)}")
            assert rows_wave % 4 == 0
            self.key_from_row(a, t2, t1)
            a(f"v_lshlrev_b32 {v(t2)}, 2, {v(t2)}")
            a(f"v_xor_b32 {v(t0)}, {v(t0)}, {v(t2)}")
            a(f"v_mul_u32_u24 {v(t1)}, {ld}, {v(t1)}")
            a(f"v_lshl_add_u32 {v(o)}, {v(t0)}, 4, {v(t1)}")
            a(f"v_add_u32 {v(o)}, s99, {v(o)}")
        for j in range(self.nper-1, -1, -1):
            b = j % npat
            step = (j - b) // npat * (rows_per * (npat if self.W == 512 else 1))
            c = step*ld - (j%4)*1024
            if j >= npat or c:
                a(f"v_add_u32 {v(self.voff[j])}, {c & 0xffffffff}, {v(self.voff[b])}")
    def setup_read(self, a, vlane, vtmp, s_seg0, slot_bytes):
        t0, t1, t2, t3 = vtmp, vtmp+1, vtmp+2, vtmp+3
        a(f"v_bfe_u32 {v(t0)}, {v(vlane)}, 2, 2")
        a(f"v_lshrrev_b32 {v(t1)}, 5, {v(vlane)}")
        a(f"v_lshl_add_u32 {v(t0)}, {v(t1)}, 3, {v(t0)}")
        self.key_from_row(a, t1, t0)
        a(f"v_mul_u32_u24 {v(t0)}, {self.W}, {v(t0)}")
        a(f"v_bfe_u32 {v(t2)}, {v(vlane)}, 4, 1")
        a(f"v_lshl_add_u32 {v(t0)}, {v(t2)}, 5, {v(t0)}")
        a(f"v_and_b32 {v(t2)}, 3, {v(vlane)}")
        a(f"v_lshl_add_u32 {v(t0)}, {v(t2)}, 3, {v(t0)}")
        for t in range(len(self.addr[0])):
            if isinstance(s_seg0, int) and s_seg0 < 0:
                a(f"v_xor_b32 {v(t3)}, {(-s_seg0-1)+t}, {v(t1)}")
            else:
                a(f"s_add_u32 s99, {s(s_seg0)}, {t}")
                a(f"v_xor_b32 {v(t3)}, s99, {v(t1)}")
            a(f"v_lshl_add_u32 {v(t3)}, {v(t3)}, 6, {v(t0)}")
            for sl in range(self.NS):
                a(f"v_add_u32 {v(self.addr[sl][t])}, {self.lds_off + sl*slot_bytes}, {v(t3)}")
    def dma(self, srd, slot_off, flags=""):
        out = []
        for j in range(self.nper):
            at = []
            if j % 4 == 0:
                at.append(f"s_add_u32 m0, {s(self.s_ldsw)}, {slot_off + self.lds_off + (j//4)*4096}")
                at.append("s_nop 0")
            at.append(f"buffer_load_dwordx4 {v(self.voff[j])}, {s(srd,4)}, {s(self.s_k)} offen offset:{(j%4)*1024} lds {flags}")
            out.append("\n".join(at))
        return out
    def read(self, dst, slot, t, ks):
        o = ks * 16 * self.W
        return [f"ds_read_b64_tr_b16 {v(dst,2)}, {v(self.addr[slot][t])} offset:{o}",
                f"ds_read_b64_tr_b16 {v(dst+2,2)}, {v(self.addr[slot][t])} offset:{o + 4*self.W}"]

def spread(main, fill):
    out = []; n = len(main); k = 0
    for i, m in enumerate(main):
        out.append(m)
        take = -(-(len(fill) - k) // (n - i))
        for _ in range(take):
            out.append(fill[k]); k += 1
    return out

def split(lst, parts):
    n = len(lst); r = []; k = 0
    for p in range(parts):
        take = -(-(n - k) // (parts - p)); r.append(lst[k:k+take]); k += take
    return r

def emit_main(a, n, NS, slot_bytes, dma_fn, ndma, kadv_fn, reads_fn, mfma_fn, extra=None, vm_extra=None, stage_head=None, npre=2):
    extra = extra or {}; vm_extra = vm_extra or {}
    d = []
    for st in range(npre, NS):
        d += dma_fn(st*slot_bytes) + kadv_fn()
    pend = split(d, 3) if d else []
    for i in range(n):
        slot = i % NS
        if stage_head: stage_head(a, i)
        for ks in range(4):
            cur = ks & 1
            m = mfma_fn(i, ks, cur)
            ex = extra.get((i, ks), [])
            if ks < 3:
                a("s_waitcnt lgkmcnt(0)")
                fill = reads_fn(slot, ks+1, cur ^ 1) + (pend.pop(0) if pend else []) + ex
                for l in spread(m, fill): a(l)
            else:
                a("s_waitcnt lgkmcnt(0)")
                if i == n-1:
                    for l in spread(m, ex): a(l)
                else:
                    newer = min(NS-2, n-2-i)
                    a(m[0])
                    a(f"s_waitcnt vmcnt({newer*ndma + vm_extra.get(i,0)})")
                    a("s_barrier")
                    if i + NS < n:
                        d = dma_fn(slot*slot_bytes)
                        parts = split(d, 4)
                        parts[3] = parts[3] + kadv_fn()
                        pend = parts
                    else:
                        pend = []
                    fill = reads_fn((i+1) % NS, 0, 0) + (pend.pop(0) if pend else []) + ex
                    for l in spread(m[1:], fill) if len(m) > 1 else fill: a(l)

def store_rows(a, V, vlane, sW, t, RB, RS, lds_base, rows_per_wave, ld, srd, s_base, buf, nbuf, sTmp, rowlimit=None, sf="", s_rowlimit=None):
    cpr = RB // 16
    m = V.mark()
    nst = rows_per_wave * cpr // 64
    assert rows_per_wave * cpr % 64 == 0
    if cpr in (24, 12):
        period = 3; magic = 2731 if cpr == 24 else 5462
    else:
        period = 1
    rows_per = period * 64 // cpr
    npat = min(period, nst)
    vRd = [V.alloc() for _ in range(npat)]; vGo = [V.alloc() for _ in range(npat)]; vRow = [V.alloc() for _ in range(npat)]
    for j in range(npat):
        if period == 3:
            if j: a(f"v_add_u32 {v(t)}, {64*j}, {v(vlane)}")
            src = t if j else vlane
            a(f"v_mul_u32_u24 {v(t+1)}, {magic}, {v(src)}")
            a(f"v_lshrrev_b32 {v(t+1)}, 16, {v(t+1)}")
            a(f"v_mul_u32_u24 {v(t+2)}, {cpr}, {v(t+1)}")
            a(f"v_sub_u32 {v(t)}, {v(src)}, {v(t+2)}")
        else:
            sh = cpr.bit_length() - 1
            a(f"v_lshrrev_b32 {v(t+1)}, {sh}, {v(vlane)}")
            a(f"v_and_b32 {v(t)}, {cpr-1}, {v(vlane)}")
        a(f"s_mul_i32 s99, {s(sW)}, {rows_per_wave}")
        a(f"v_add_u32 {v(vRow[j])}, s99, {v(t+1)}")
        a(f"v_mul_u32_u24 {v(t+2)}, {RS}, {v(vRow[j])}")
        a(f"v_lshl_add_u32 {v(vRd[j])}, {v(t)}, 4, {v(t+2)}")
        if lds_base: a(f"v_add_u32 {v(vRd[j])}, {lds_base}, {v(vRd[j])}")
        a(f"v_mul_u32_u24 {v(t+2)}, {ld}, {v(vRow[j])}")
        a(f"v_lshl_add_u32 {v(t+2)}, {v(t)}, 4, {v(t+2)}")
        a(f"v_add_u32 {v(vGo[j])}, {s(s_base)}, {v(t+2)}")
    items = [(i // npat, i % npat) for i in range(nst)]
    for b0 in range(0, len(items), nbuf):
        grp = items[b0:b0+nbuf]
        for i2, (p, j) in enumerate(grp):
            a(f"ds_read_b128 {v(buf+4*i2,4)}, {v(vRd[j])} offset:{p*rows_per*RS}")
        for i2, (p, j) in enumerate(grp):
            masked = (rowlimit is not None and (p+1)*rows_per + 3*rows_per_wave > rowlimit) or s_rowlimit is not None
            if masked:
                a(f"v_add_u32 {v(t)}, {p*rows_per}, {v(vRow[j])}")
                a(f"v_cmp_gt_u32 vcc, {s(s_rowlimit) if s_rowlimit is not None else rowlimit}, {v(t)}")
                a(f"v_mov_b32 {v(t+1)}, 0x80000000")
                a(f"v_add_u32 {v(t+2)}, {p*rows_per*ld}, {v(vGo[j])}")
                a(f"v_cndmask_b32 {v(t+2)}, {v(t+1)}, {v(t+2)}, vcc")
                a(f"s_waitcnt lgkmcnt({len(grp)-1-i2})")
                a(f"buffer_store_dwordx4 {v(buf+4*i2,4)}, {v(t+2)}, {s(srd,4)}, 0 offen {sf}")
            else:
                a(f"s_mov_b32 {s(sTmp)}, {p*rows_per*ld}")
                a(f"s_waitcnt lgkmcnt({len(grp)-1-i2})")
                a(f"buffer_store_dwordx4 {v(buf+4*i2,4)}, {v(vGo[j])}, {s(srd,4)}, {s(sTmp)} offen {sf}")
        if b0 + nbuf < len(items): a("s_nop 1")
    V.release(m)


def distribute(extra, atoms, s0, s1, ks_list=(0,1,2,3)):
    slots = [(st, ks) for st in range(s0, s1) for ks in ks_list]
    parts = split(atoms, len(slots))
    for sl, p in zip(slots, parts):
        extra[sl] = extra.get(sl, []) + p

class Rec:
    def __init__(self): self.atoms = []
    def __call__(self, sx=""):
        ls = [l.strip() for l in sx.split("\n") if l.strip()]
        if ls: self.atoms.append("\n".join(ls))
    def c(self, x): pass
    def join_last(self, n):
        j = "\n".join(self.atoms[-n:]); del self.atoms[-n:]; self.atoms.append(j)
```

```python
import sys, kv3, gcore
ref = open("standalone__conformer_family_e_branchformer__speech.s.ref").read()
head = ref.split("; Override")[0]
opt = {}
dst = "standalone__conformer_family_e_branchformer__speech.s"
for x in sys.argv[1:]:
    if x.endswith(".s"): dst = x
    elif "=" in x:
        k, v = x.split("="); opt[k] = int(v)
kv3.OPT.update(opt)
import gemm3; gemm3.FRONT[0] = opt.get('front', 3)
sf = "" if opt.get("plain") else "sc1"
body = kv3.build_all(False, sf, "" if opt.get("plainlast") else sf)
open(dst,"w").write(head + body)
print("wrote", dst, len(head+body))
```

```python
from gcore import *

class OpK:
    def __init__(self, rows, lds_off):
        self.rows = rows; self.lds_off = lds_off; self.bytes = rows * 128
        self.nper = rows // 32
        assert rows % 32 == 0
    def alloc(self, V, S, NS, nsets=1, role=None):
        self.NS = NS
        if role != "c": self.voff = [V.alloc() for _ in range(self.nper)]
        if role != "l": self.addr = [[[V.alloc() for _ in range(4)] for _ in range(NS)] for _ in range(nsets)]
        self.s_ldsw = S.alloc(); self.s_k = S.alloc()
    def setup_dma(self, a, vlane, swave, vtmp, ld, srowbase=None, rowfn=None):
        t0, t1, t2 = vtmp, vtmp+1, vtmp+2
        rpw = self.rows // 4
        assert rpw % 16 == 0 or self.nper == 1
        a(f"s_mul_i32 s99, {s(swave)}, {rpw}")
        a(f"s_mul_i32 {s(self.s_ldsw)}, {s(swave)}, {self.nper*1024}")
        if rowfn is None:
            if srowbase is not None: a(f"s_add_u32 s99, s99, {s(srowbase)}")
            a(f"v_lshrrev_b32 {v(t0)}, 3, {v(vlane)}")
            a(f"v_lshrrev_b32 {v(t1)}, 4, {v(vlane)}")
            if self.nper == 1 and rpw % 16:
                a(f"s_and_b32 s98, {s(swave)}, 1")
                a(f"s_lshl_b32 s98, s98, 2")
                a(f"v_add_u32 {v(t1)}, s98, {v(t1)}")
            a(f"v_and_b32 {v(t2)}, 7, {v(vlane)}")
            a(f"v_xor_b32 {v(t1)}, {v(t1)}, {v(t2)}")
            a(f"v_add_u32 {v(t0)}, s99, {v(t0)}")
            if ld & (ld-1) == 0: a(f"v_lshlrev_b32 {v(t0)}, {ld.bit_length()-1}, {v(t0)}")
            else: a(f"v_mul_i32_i24 {v(t0)}, {ld}, {v(t0)}")
            a(f"v_lshl_add_u32 {v(self.voff[0])}, {v(t1)}, 4, {v(t0)}")
            if self.nper > 1:
                a(f"v_xor_b32 {v(t1)}, 4, {v(t1)}")
                a(f"v_lshl_add_u32 {v(t2)}, {v(t1)}, 4, {v(t0)}")
            for j in range(1, self.nper):
                src = t2 if j & 1 else self.voff[0]
                a(f"v_add_u32 {v(self.voff[j])}, {8*j*ld - (j%4)*1024}, {v(src)}")
            return
        a(f"v_lshrrev_b32 {v(t2)}, 3, {v(vlane)}")
        a(f"v_add_u32 {v(t2)}, s99, {v(t2)}")
        for j in range(self.nper):
            o = self.voff[j]
            if j: a(f"v_add_u32 {v(t0)}, {8*j}, {v(t2)}")
            else: a(f"v_mov_b32 {v(t0)}, {v(t2)}")
            a(f"v_bfe_u32 {v(t1)}, {v(t0)}, 1, 3")
            a(f"v_and_b32 {v(o)}, 7, {v(vlane)}")
            a(f"v_xor_b32 {v(t1)}, {v(t1)}, {v(o)}")
            rowfn(a, t0)
            if ld & (ld-1) == 0: a(f"v_lshlrev_b32 {v(t0)}, {ld.bit_length()-1}, {v(t0)}")
            else: a(f"v_mul_u32_u24 {v(t0)}, {ld}, {v(t0)}")
            a(f"v_lshl_add_u32 {v(o)}, {v(t1)}, 4, {v(t0)}")
            if j % 4: a(f"v_subrev_u32 {v(o)}, {(j%4)*1024}, {v(o)}")
    def setup_read(self, a, vlane, vtmp, st, vrow0, slot_bytes):
        t0, t1 = vtmp, vtmp+1
        a(f"v_bfe_u32 {v(t0)}, {v(vrow0)}, 1, 3")
        a(f"v_lshrrev_b32 {v(t1)}, 5, {v(vlane)}")
        a(f"v_xor_b32 {v(t0)}, {v(t0)}, {v(t1)}")
        a(f"v_lshlrev_b32 {v(t0)}, 4, {v(t0)}")
        a(f"v_lshl_add_u32 {v(t0)}, {v(vrow0)}, 7, {v(t0)}")
        for ks in range(4):
            if ks: a(f"v_xor_b32 {v(t1)}, {ks*32}, {v(t0)}")
            src = t1 if ks else t0
            for sl in range(self.NS):
                a(f"v_add_u32 {v(self.addr[st][sl][ks])}, {self.lds_off + sl*slot_bytes}, {v(src)}")
    def dma(self, srd, slot_off, masks=None, flags=""):
        out = []
        for j in range(self.nper):
            at = []
            if j % 4 == 0:
                at.append(f"s_add_u32 m0, {s(self.s_ldsw)}, {slot_off + self.lds_off + (j//4)*4096}")
                at.append("s_nop 0")
            if masks and j in masks: at.append(f"s_mov_b64 exec, {s(masks[j],2)}")
            at.append(f"buffer_load_dwordx4 {v(self.voff[j])}, {s(srd,4)}, {s(self.s_k)} offen offset:{(j%4)*1024} {flags} lds")
            if masks and j in masks: at.append("s_mov_b64 exec, -1")
            out.append("\n".join(at))
        return out
    def read(self, dst, slot, ks, tile_rows=0, st=0):
        return [f"ds_read_b128 {v(dst,4)}, {v(self.addr[st][slot][ks])} offset:{tile_rows*128}"]

class OpT:
    def __init__(self, width_elems, lds_off):
        self.W = width_elems * 2; self.lds_off = lds_off; self.bytes = 64 * self.W
        assert self.W in (128, 256, 384, 512)
        self.cpr = self.W // 16
        self.nper = self.bytes // 1024 // 4
    def key_from_row(self, a, dst, row):
        if self.W in (256, 512): a(f"v_and_b32 {v(dst)}, 3, {v(row)}")
        else: a(f"v_bfe_u32 {v(dst)}, {v(row)}, 1, 1")
    def alloc(self, V, S, NS, ntiles, role=None):
        self.NS = NS
        if role != "c": self.voff = [V.alloc() for _ in range(self.nper)]
        if role != "l": self.addr = [[V.alloc() for _ in range(ntiles)] for _ in range(NS)]
        self.s_ldsw = S.alloc(); self.s_k = S.alloc()
    def setup_dma(self, a, vlane, swave, vtmp, ld, colbase_s=None):
        t0, t1, t2 = vtmp, vtmp+1, vtmp+2
        a(f"s_mul_i32 {s(self.s_ldsw)}, {s(swave)}, {self.nper*1024}")
        period = 3 if self.cpr == 24 else 1
        rows_per = period * 64 // self.cpr
        rows_wave = self.nper * 64 // self.cpr
        if self.W in (256, 512): assert rows_per % 4 == 0 or self.W == 512
        a(f"s_mul_i32 s99, {s(swave)}, {rows_wave*ld}")
        if colbase_s is not None: a(f"s_add_u32 s99, s99, {s(colbase_s)}")
        npat = period
        if self.W == 512: npat = 2
        for j in range(min(npat, self.nper)):
            o = self.voff[j]
            if self.cpr == 24:
                if j: a(f"v_add_u32 {v(t0)}, {64*j}, {v(vlane)}")
                src = t0 if j else vlane
                a(f"v_mul_u32_u24 {v(t1)}, 2731, {v(src)}")
                a(f"v_lshrrev_b32 {v(t1)}, 16, {v(t1)}")
                a(f"v_mul_u32_u24 {v(t2)}, 24, {v(t1)}")
                a(f"v_sub_u32 {v(t0)}, {v(src)}, {v(t2)}")
            else:
                sh = self.cpr.bit_length() - 1
                a(f"v_lshrrev_b32 {v(t1)}, {sh}, {v(vlane)}")
                if j: a(f"v_add_u32 {v(t1)}, {j*rows_per}, {v(t1)}")
                a(f"v_and_b32 {v(t0)}, {self.cpr-1}, {v(vlane)}")
            assert rows_wave % 4 == 0
            self.key_from_row(a, t2, t1)
            a(f"v_lshlrev_b32 {v(t2)}, 2, {v(t2)}")
            a(f"v_xor_b32 {v(t0)}, {v(t0)}, {v(t2)}")
            a(f"v_mul_u32_u24 {v(t1)}, {ld}, {v(t1)}")
            a(f"v_lshl_add_u32 {v(o)}, {v(t0)}, 4, {v(t1)}")
            a(f"v_add_u32 {v(o)}, s99, {v(o)}")
        for j in range(self.nper-1, -1, -1):
            b = j % npat
            step = (j - b) // npat * (rows_per * (npat if self.W == 512 else 1))
            c = step*ld - (j%4)*1024
            if j >= npat or c:
                a(f"v_add_u32 {v(self.voff[j])}, {c & 0xffffffff}, {v(self.voff[b])}")
    def setup_read(self, a, vlane, vtmp, s_seg0, slot_bytes):
        t0, t1, t2, t3 = vtmp, vtmp+1, vtmp+2, vtmp+3
        a(f"v_bfe_u32 {v(t0)}, {v(vlane)}, 2, 2")
        a(f"v_lshrrev_b32 {v(t1)}, 5, {v(vlane)}")
        a(f"v_lshl_add_u32 {v(t0)}, {v(t1)}, 3, {v(t0)}")
        self.key_from_row(a, t1, t0)
        a(f"v_mul_u32_u24 {v(t0)}, {self.W}, {v(t0)}")
        a(f"v_bfe_u32 {v(t2)}, {v(vlane)}, 4, 1")
        a(f"v_lshl_add_u32 {v(t0)}, {v(t2)}, 5, {v(t0)}")
        a(f"v_and_b32 {v(t2)}, 3, {v(vlane)}")
        a(f"v_lshl_add_u32 {v(t0)}, {v(t2)}, 3, {v(t0)}")
        for t in range(len(self.addr[0])):
            if isinstance(s_seg0, int) and s_seg0 < 0:
                a(f"v_xor_b32 {v(t3)}, {(-s_seg0-1)+t}, {v(t1)}")
            else:
                a(f"s_add_u32 s99, {s(s_seg0)}, {t}")
                a(f"v_xor_b32 {v(t3)}, s99, {v(t1)}")
            a(f"v_lshl_add_u32 {v(t3)}, {v(t3)}, 6, {v(t0)}")
            for sl in range(self.NS):
                a(f"v_add_u32 {v(self.addr[sl][t])}, {self.lds_off + sl*slot_bytes}, {v(t3)}")
    def dma(self, srd, slot_off, flags=""):
        out = []
        for j in range(self.nper):
            at = []
            if j % 4 == 0:
                at.append(f"s_add_u32 m0, {s(self.s_ldsw)}, {slot_off + self.lds_off + (j//4)*4096}")
                at.append("s_nop 0")
            at.append(f"buffer_load_dwordx4 {v(self.voff[j])}, {s(srd,4)}, {s(self.s_k)} offen offset:{(j%4)*1024} {flags} lds")
            out.append("\n".join(at))
        return out
    def read(self, dst, slot, t, ks):
        o = ks * 16 * self.W
        return [f"ds_read_b64_tr_b16 {v(dst,2)}, {v(self.addr[slot][t])} offset:{o}",
                f"ds_read_b64_tr_b16 {v(dst+2,2)}, {v(self.addr[slot][t])} offset:{o + 4*self.W}"]

def spread(main, fill):
    out = []; n = len(main); k = 0
    for i, m in enumerate(main):
        out.append(m)
        take = -(-(len(fill) - k) // (n - i))
        for _ in range(take):
            out.append(fill[k]); k += 1
    return out

def split(lst, parts):
    n = len(lst); r = []; k = 0
    for p in range(parts):
        take = -(-(n - k) // (parts - p)); r.append(lst[k:k+take]); k += take
    return r

def emit_main(a, n, NS, slot_bytes, dma_fn, ndma, kadv_fn, reads_fn, mfma_fn, extra=None, vm_extra=None, stage_head=None, npre=2):
    extra = extra or {}; vm_extra = vm_extra or {}
    d = []
    for st in range(npre, NS):
        d += dma_fn(st*slot_bytes) + kadv_fn()
    pend = split(d, 3) if d else []
    for i in range(n):
        slot = i % NS
        if stage_head: stage_head(a, i)
        for ks in range(4):
            cur = ks & 1
            m = mfma_fn(i, ks, cur)
            ex = extra.get((i, ks), [])
            if ks < 3:
                a("s_waitcnt lgkmcnt(0)")
                fill = reads_fn(slot, ks+1, cur ^ 1) + (pend.pop(0) if pend else []) + ex
                for l in spread(m, fill): a(l)
            else:
                a("s_waitcnt lgkmcnt(0)")
                if i == n-1:
                    for l in spread(m, ex): a(l)
                else:
                    newer = min(NS-2, n-2-i)
                    a(m[0])
                    a(f"s_waitcnt vmcnt({newer*ndma + vm_extra.get(i,0)})")
                    a("s_barrier")
                    if i + NS < n:
                        d = dma_fn(slot*slot_bytes)
                        parts = split(d, 4)
                        parts[3] = parts[3] + kadv_fn()
                        pend = parts
                    else:
                        pend = []
                    fill = reads_fn((i+1) % NS, 0, 0) + (pend.pop(0) if pend else []) + ex
                    for l in spread(m[1:], fill) if len(m) > 1 else fill: a(l)

def store_rows(a, V, vlane, sW, t, RB, RS, lds_base, rows_per_wave, ld, srd, s_base, buf, nbuf, sTmp, rowlimit=None, sf="", s_rowlimit=None, nw=4, s_row0=None, maxrow=None):
    cpr = RB // 16
    m = V.mark()
    nst = rows_per_wave * cpr // 64
    assert rows_per_wave * cpr % 64 == 0
    if cpr in (24, 12):
        period = 3; magic = 2731 if cpr == 24 else 5462
    else:
        period = 1
    rows_per = period * 64 // cpr
    npat = min(period, nst)
    vRd = [V.alloc() for _ in range(npat)]; vGo = [V.alloc() for _ in range(npat)]; vRow = [V.alloc() for _ in range(npat)]
    for j in range(npat):
        if period == 3:
            if j: a(f"v_add_u32 {v(t)}, {64*j}, {v(vlane)}")
            src = t if j else vlane
            a(f"v_mul_u32_u24 {v(t+1)}, {magic}, {v(src)}")
            a(f"v_lshrrev_b32 {v(t+1)}, 16, {v(t+1)}")
            a(f"v_mul_u32_u24 {v(t+2)}, {cpr}, {v(t+1)}")
            a(f"v_sub_u32 {v(t)}, {v(src)}, {v(t+2)}")
        else:
            sh = cpr.bit_length() - 1
            a(f"v_lshrrev_b32 {v(t+1)}, {sh}, {v(vlane)}")
            a(f"v_and_b32 {v(t)}, {cpr-1}, {v(vlane)}")
        if s_row0 is None:
            a(f"s_mul_i32 s99, {s(sW)}, {rows_per_wave}")
            a(f"v_add_u32 {v(vRow[j])}, s99, {v(t+1)}")
        else:
            a(f"v_add_u32 {v(vRow[j])}, {s(s_row0)}, {v(t+1)}")
        a(f"v_mul_u32_u24 {v(t+2)}, {RS}, {v(vRow[j])}")
        a(f"v_lshl_add_u32 {v(vRd[j])}, {v(t)}, 4, {v(t+2)}")
        if lds_base: a(f"v_add_u32 {v(vRd[j])}, {lds_base}, {v(vRd[j])}")
        a(f"v_mul_u32_u24 {v(t+2)}, {ld}, {v(vRow[j])}")
        a(f"v_lshl_add_u32 {v(t+2)}, {v(t)}, 4, {v(t+2)}")
        a(f"v_add_u32 {v(vGo[j])}, {s(s_base)}, {v(t+2)}")
    items = [(i // npat, i % npat) for i in range(nst)]
    for b0 in range(0, len(items), nbuf):
        grp = items[b0:b0+nbuf]
        for i2, (p, j) in enumerate(grp):
            a(f"ds_read_b128 {v(buf+4*i2,4)}, {v(vRd[j])} offset:{p*rows_per*RS}")
        for i2, (p, j) in enumerate(grp):
            top = (nw-1)*rows_per_wave if maxrow is None else maxrow
            masked = (rowlimit is not None and (p+1)*rows_per + top > rowlimit) or s_rowlimit is not None
            if masked:
                a(f"v_add_u32 {v(t)}, {p*rows_per}, {v(vRow[j])}")
                a(f"v_cmp_gt_u32 vcc, {s(s_rowlimit) if s_rowlimit is not None else rowlimit}, {v(t)}")
                a(f"v_mov_b32 {v(t+1)}, 0x80000000")
                a(f"v_add_u32 {v(t+2)}, {p*rows_per*ld}, {v(vGo[j])}")
                a(f"v_cndmask_b32 {v(t+2)}, {v(t+1)}, {v(t+2)}, vcc")
                a(f"s_waitcnt lgkmcnt({len(grp)-1-i2})")
                a(f"buffer_store_dwordx4 {v(buf+4*i2,4)}, {v(t+2)}, {s(srd,4)}, 0 offen {sf}")
            else:
                a(f"s_mov_b32 {s(sTmp)}, {p*rows_per*ld}")
                a(f"s_waitcnt lgkmcnt({len(grp)-1-i2})")
                a(f"buffer_store_dwordx4 {v(buf+4*i2,4)}, {v(vGo[j])}, {s(srd,4)}, {s(sTmp)} offen {sf}")
        if b0 + nbuf < len(items): a("s_nop 1")
    V.release(m)


def distribute(extra, atoms, s0, s1, ks_list=(0,1,2,3)):
    slots = [(st, ks) for st in range(s0, s1) for ks in ks_list]
    parts = split(atoms, len(slots))
    for sl, p in zip(slots, parts):
        extra[sl] = extra.get(sl, []) + p

class Rec:
    def __init__(self): self.atoms = []
    def __call__(self, sx=""):
        ls = [l.strip() for l in sx.split("\n") if l.strip()]
        if ls: self.atoms.append("\n".join(ls))
    def c(self, x): pass
    def join_last(self, n):
        j = "\n".join(self.atoms[-n:]); del self.atoms[-n:]; self.atoms.append(j)
```

```python
from gcore import *
import gcore
from gemm2 import OpK, OpT, spread, split, distribute, Rec, store_rows
from gemm3 import *
from conv import *

O_Y   = 0;         Y_LD = 5120;  Y_BYTES = 2000*Y_LD
O_GS  = 0xA00000;  GS_BYTES = 8*2048*8
O_XS  = 0xA20000;  XS_BYTES = 16*128*8
O_P   = 0xB00000;  P_LD = 2048;  P_BYTES = 2*1024*P_LD
O_ML  = 0xF00000;  ML_BYTES = 2048*64
O_VT  = 0x1000000; VT_LD = 2048; VT_BYTES = 2*512*VT_LD
O_Z   = 0x1300000; Z_LD = 1024;  Z_BYTES = 2000*Z_LD
O_MC  = 0x1500000; MC_LD = 2048; MC_BYTES = 2000*MC_LD
CSC = 512**-0.5 * 1.4426950408889634
MFMA = "v_mfma_f32_32x32x16_bf16"
OPT = {}

def srd_from(a, dst, ptr, size, off=0):
    if off:
        a(f"s_add_u32 {s(dst)}, {s(ptr)}, {off}"); a(f"s_addc_u32 {s(dst+1)}, {s(ptr+1)}, 0")
    else:
        a(f"s_mov_b32 {s(dst)}, {s(ptr)}"); a(f"s_mov_b32 {s(dst+1)}, {s(ptr+1)}")
    a(f"s_mov_b32 {s(dst+2)}, {size}"); a(f"s_mov_b32 {s(dst+3)}, 0x20000")
def batch_srd(a, dst, sB, off, stride, nbytes):
    a(f"s_mul_i32 s38, {s(sB)}, {stride}")
    a(f"s_add_u32 s{dst}, s30, s38"); a(f"s_addc_u32 s{dst+1}, s31, 0")
    if off: a(f"s_add_u32 s{dst}, s{dst}, {off}"); a(f"s_addc_u32 s{dst+1}, s{dst+1}, 0")
    a(f"s_mov_b32 s{dst+2}, {nbytes}"); a(f"s_mov_b32 s{dst+3}, 0x20000")
def halfop(a, op, x, t):
    a(f"v_mov_b32 {v(t)}, {v(x)}"); a("s_nop 1")
    a(f"v_permlane32_swap_b32 {v(x)}, {v(t)}"); a("s_nop 1")
    a(f"{op} {v(x)}, {v(x)}, {v(t)}")
FUSED = [False]
O_BAR = 0x2F00000
NEXT = {0: "k2_begin", 1: "k3_begin", 2: "k4_begin"}
O_CNT = 0x2F10000
def finish(a, kidx, vt, who, arr=None):
    if gcore.PROF:
        a("s_waitcnt vmcnt(0)"); stamp(a, 6)
        gcore.prof_flush(a, 30, kidx, 7, vt, who)
        if who >= 4: gcore.trace_flush(a, 30, kidx, who, vt)
    if OPT.get("f34") and kidx == 2:
        sB_, sT0_, span = arr
        a("s_waitcnt vmcnt(0) lgkmcnt(0)")
        a("s_barrier")
        if who == 0:
            lab = f".Larr34_{len(a.lines)}"
            a(f"s_cmp_eq_u32 s20, 0"); a(f"s_cbranch_scc0 {lab}")
            a(f"s_add_u32 s76, s30, {O_CNT}"); a("s_addc_u32 s77, s31, 0"); a("s_mov_b32 s78, 4096"); a("s_mov_b32 s79, 0x20000")
            a(f"s_lshr_b32 s98, {s(sT0_)}, 6")
            a(f"s_add_u32 s99, {s(sT0_)}, {span-1}"); a("s_lshr_b32 s99, s99, 6"); a("s_min_u32 s99, s99, 15")
            a(f"v_and_b32 {v(vt)}, 63, v0"); a(f"v_add_u32 {v(vt)}, s98, {v(vt)}")
            a(f"v_cmp_ge_u32 vcc, s99, {v(vt)}")
            a(f"s_lshl_b32 s98, {s(sB_)}, 4"); a(f"v_add_u32 {v(vt)}, s98, {v(vt)}"); a(f"v_lshlrev_b32 {v(vt)}, 7, {v(vt)}")
            a(f"v_mov_b32 {v(vt+1)}, 1")
            a("s_and_saveexec_b64 s[72:73], vcc")
            a(f"buffer_atomic_add {v(vt+1)}, {v(vt)}, s[76:79], 0 offen sc1")
            a("s_mov_b64 exec, s[72:73]")
            a(f"{lab}:")
        a("s_branch k4_begin")
        return
    if FUSED[0] and kidx < 3:
        a("s_waitcnt vmcnt(0) lgkmcnt(0)")
        a("s_barrier")
        if who == 0:
            lab = f".Larr_{kidx}_{len(a.lines)}"
            a(f"s_cmp_eq_u32 s20, 0"); a(f"s_cbranch_scc0 {lab}")
            if kidx == 0:
                a("s_load_dwordx2 s[76:77], s[0:1], 72"); a("s_and_b32 s98, s2, 1"); a("s_lshl_b32 s98, s98, 6")
                a("s_waitcnt lgkmcnt(0)"); a("s_mov_b32 s78, 256")
            else:
                a(f"s_add_u32 s76, s30, {O_BAR + (kidx-1)*1024}"); a("s_addc_u32 s77, s31, 0")
                a("s_and_b32 s98, s2, 7"); a("s_lshl_b32 s98, s98, 7"); a("s_mov_b32 s78, 1024")
            a("s_mov_b32 s79, 0x20000")
            a(f"v_mov_b32 {v(vt)}, s98"); a(f"v_mov_b32 {v(vt+1)}, 1")
            a("s_mov_b64 exec, 1")
            a(f"buffer_atomic_add {v(vt+1)}, {v(vt)}, s[76:79], 0 offen sc1")
            a("s_mov_b64 exec, -1")
            a(f"{lab}:")
        a(f"s_branch {NEXT[kidx]}")
    else:
        a("s_endpgm")

def gate(a, kidx, loader, vt):
    if not FUSED[0]: return
    if loader:
        lab = f".Lgate_{kidx}_{len(a.lines)}"
        a(f"s_cmp_eq_u32 s20, 4"); a(f"s_cbranch_scc0 {lab}_d")
        a("s_load_dwordx2 s[72:73], s[0:1], 72")
        a("s_mov_b32 s79, 0x20000")
        a("s_waitcnt lgkmcnt(0)")
        a("s_cmp_lt_u32 s2, 8"); a(f"s_cbranch_scc0 {lab}_m")
        if kidx == 1:
            a("s_mov_b32 s76, s72"); a("s_mov_b32 s77, s73"); a("s_mov_b32 s78, 256")
            nsh, sh, tgt = 2, 6, 128
        else:
            a(f"s_add_u32 s76, s30, {O_BAR + (kidx-2)*1024}"); a("s_addc_u32 s77, s31, 0"); a("s_mov_b32 s78, 1024")
            nsh, sh, tgt = 8, 7, 32
        a(f"v_and_b32 {v(vt)}, 63, v0"); a(f"v_lshlrev_b32 {v(vt)}, {sh}, {v(vt)}")
        a(f"s_mov_b64 exec, {(1 << nsh) - 1}")
        a("s_mov_b32 s98, 0")
        a(f"{lab}_p:")
        a(f"buffer_load_dword {v(vt+1)}, {v(vt)}, s[76:79], 0 offen sc1")
        a("s_waitcnt vmcnt(0)")
        a(f"v_cmp_eq_u32 vcc, {tgt}, {v(vt+1)}")
        a("s_add_u32 s98, s98, 1"); a("s_nop 3")
        a("s_cmp_eq_u64 vcc, exec"); a(f"s_cbranch_scc1 {lab}_o")
        a(f"s_sleep {OPT.get('slp', 2)}")
        a("s_cmp_lt_u32 s98, 0x20000"); a(f"s_cbranch_scc1 {lab}_p")
        a(f"{lab}_o:")
        rel_srd(a, kidx)
        a("s_mov_b64 exec, 1")
        a(f"v_mov_b32 {v(vt)}, s98" if False else f"s_and_b32 s98, s2, 7"); rel_off(a, kidx)
        a(f"v_mov_b32 {v(vt)}, s98"); a(f"v_mov_b32 {v(vt+1)}, 1")
        a(f"buffer_store_dword {v(vt+1)}, {v(vt)}, s[76:79], 0 offen sc1")
        a("s_mov_b64 exec, -1")
        a(f"s_branch {lab}_d")
        a(f"{lab}_m:")
        rel_srd(a, kidx)
        a("s_mov_b64 exec, 1")
        a("s_and_b32 s98, s2, 7"); rel_off(a, kidx)
        a(f"v_mov_b32 {v(vt)}, s98")
        a("s_mov_b32 s98, 0")
        a(f"{lab}_q:")
        a(f"buffer_load_dword {v(vt+1)}, {v(vt)}, s[76:79], 0 offen sc1")
        a("s_waitcnt vmcnt(0)")
        a(f"v_readfirstlane_b32 s99, {v(vt+1)}")
        a("s_add_u32 s98, s98, 1"); a("s_nop 3")
        a("s_cmp_eq_u32 s99, 1"); a(f"s_cbranch_scc1 {lab}_r")
        a(f"s_sleep {OPT.get('slp2', 4)}")
        a("s_cmp_lt_u32 s98, 0x20000"); a(f"s_cbranch_scc1 {lab}_q")
        a(f"{lab}_r:")
        a("s_mov_b64 exec, -1")
        a(f"{lab}_d:")
    a("s_barrier")
def rel_srd(a, kidx):
    if kidx == 1:
        a("s_mov_b32 s76, s72"); a("s_mov_b32 s77, s73"); a("s_mov_b32 s78, 256")
    else:
        a(f"s_add_u32 s76, s30, {O_BAR + 2048 + (kidx-2)*1024}"); a("s_addc_u32 s77, s31, 0"); a("s_mov_b32 s78, 1024")
def rel_off(a, kidx):
    if kidx == 1: a("s_lshl_b32 s98, s98, 4"); a("s_add_u32 s98, s98, 128")
    else: a("s_lshl_b32 s98, s98, 7")

SW = 20
SL = 25

class OutPass:
    def __init__(self, V, nrows):
        self.nrows = nrows; self.n = -(-nrows // 64)
        self.vRd = [V.alloc() for _ in range(self.n)]; self.vZo = [V.alloc() for _ in range(self.n)]
    def setup(self, a, t, OUT, sT0, sCol, ld_shift):
        a(f"v_lshrrev_b32 {v(t)}, 3, v0")
        a(f"v_and_b32 {v(t+1)}, 7, v0")
        a(f"v_lshrrev_b32 {v(t+2)}, 4, {v(t)}")
        a(f"v_add_u32 {v(t+3)}, {s(sT0)}, {v(t)}")
        a(f"v_lshlrev_b32 {v(t+3)}, {ld_shift}, {v(t+3)}")
        a(f"v_lshl_add_u32 {v(t+3)}, {v(t+1)}, 4, {v(t+3)}")
        a(f"v_add_u32 {v(self.vZo[0])}, {s(sCol)}, {v(t+3)}")
        for i in range(1, self.n):
            a(f"v_add_u32 {v(self.vZo[i])}, {(64*i) << ld_shift}, {v(self.vZo[0])}")
            if 64*(i+1) > self.nrows:
                a(f"v_mov_b32 {v(t+3)}, 0x80000000")
                a(f"v_cmp_gt_u32 vcc, {self.nrows - 64*i}, {v(t)}\ns_nop 1\nv_cndmask_b32 {v(self.vZo[i])}, {v(t+3)}, {v(self.vZo[i])}, vcc")
        for i in range(self.n):
            a(f"v_add_u32 {v(t+3)}, {4*i}, {v(t+2)}")
            a(f"v_and_b32 {v(t+3)}, 7, {v(t+3)}")
            a(f"v_xor_b32 {v(t+3)}, {v(t+3)}, {v(t+1)}")
            a(f"v_lshlrev_b32 {v(t+3)}, 4, {v(t+3)}")
            a(f"v_lshl_add_u32 {v(t+3)}, {v(t)}, 7, {v(t+3)}")
            a(f"v_add_u32 {v(self.vRd[i])}, {OUT + i*64*128}, {v(t+3)}")
    def reads(self, a, vD):
        for i in range(self.n): a(f"ds_read_b128 {v(vD+4*i,4)}, {v(self.vRd[i])}")
    def emit(self, a, vD, srd, sf):
        self.reads(a, vD)
        for i in range(self.n):
            a(f"s_waitcnt lgkmcnt({self.n-1-i})")
            a(f"buffer_store_dwordx4 {v(vD+4*i,4)}, {v(self.vZo[i])}, {s(srd,4)}, 0 offen {sf}")

def l2_prefetch(a, vm, t, items, once=False):
    if OPT.get("nowpf"): return
    a(f"s_lshl_b32 s98, {'s2' if once else 's33'}, 2"); a(f"s_add_u32 s98, s98, {s(SL)}"); a("s_lshl_b32 s98, s98, 13")
    a(f"v_and_b32 {v(t)}, 63, v0"); a(f"v_lshlrev_b32 {v(t)}, 7, {v(t)}"); a(f"v_add_u32 {v(t)}, s98, {v(t)}")
    for off, nb in items:
        a(f"s_load_dwordx2 s[76:77], s[0:1], {off}")
        a(f"s_mov_b32 s78, {nb}"); a("s_mov_b32 s79, 0x20000")
        a("s_waitcnt lgkmcnt(0)")
        a(f"buffer_load_dword v252, {v(t)}, s[76:79], 0 offen")
        vm.issue("pf")

def touch(a, vm, t, srd, s_base, span, nlanes=16):
    if not OPT.get("touch"): return
    step = max(128, span // nlanes) & ~3
    a(f"v_and_b32 {v(t)}, {nlanes-1}, v0"); a(f"v_mul_u32_u24 {v(t)}, {step}, {v(t)}")
    a(f"buffer_load_dword v252, {v(t)}, {s(srd,4)}, {s(s_base)} offen")
    if vm is not None: vm.issue("touch")

def role_split(a, name):
    a(f"s_and_b32 {s(SL)}, {s(SW)}, 3")
    a(f"s_cmp_ge_u32 {s(SW)}, 4")
    if OPT.get("swap"): a(f"s_cbranch_scc0 {name}_loader"); a(f"s_mov_b32 {s(SW)}, {s(SL)}")
    else: a(f"s_cbranch_scc1 {name}_loader")
def loader_start(a):
    if OPT.get("prio"): a(f"s_setprio {OPT['prio']}")

def k4(sf=""):
    a = Asm(); stamp(a, 0)
    a("""
    s_cmp_ge_u32 s2, 256
    s_cbranch_scc1 k4_exit
    """)
    a("k4_begin:")
    if FUSED[0]: stamp(a, 0)
    a("""
    s_load_dwordx2 s[30:31], s[0:1], 80       ; ws
    s_load_dwordx4 s[40:43], s[0:1], 56
    s_load_dwordx2 s[4:5], s[0:1], 0          ; x
    v_lshrrev_b32 v1, 6, v0
    s_and_b32 s32, s2, 7
    s_lshr_b32 s33, s2, 3
    v_readfirstlane_b32 s20, v1
    s_lshr_b32 s34, s33, 3
    s_lshl_b32 s21, s32, 2
    s_add_u32 s21, s21, s34
    s_and_b32 s22, s33, 7                     ; te
    s_lshl_b32 s24, s22, 1
    s_add_u32 s24, s24, s34
    s_and_b32 s24, s24, 15                    ; c0
    s_lshl_b32 s26, s21, 6
    s_lshl_b32 s27, s22, 7
    """)
    if OPT.get("rot4"): a("s_lshl_b32 s24, s22, 1\ns_lshl_b32 s35, s34, 2\ns_add_u32 s24, s24, s35\ns_and_b32 s24, s24, 15")
    if OPT.get("norot"): a("s_mov_b32 s24, 0")
    NS = OPT.get("ns", 5); n = 16
    sR, sCol, sC0 = 26, 27, 24
    srdM, srdW, srdX, srdO = 8, 12, 16, 44
    RS = 144
    def mkops(V, S, role):
        opW = OpT(64, 0); opM = OpK(64, opW.bytes)
        opW.alloc(V, S, NS, 1, role=role); opM.alloc(V, S, NS, role=role)
        return opW, opM
    def tail(a, V, S, vlane, t, buf):
        sT = S.alloc(); sBase = S.alloc()
        a("s_barrier")
        a(f"s_lshl_b32 {s(sBase)}, {s(sR)}, 10")
        a(f"s_add_u32 {s(sBase)}, {s(sBase)}, {s(sCol)}")
        store_rows(a, V, vlane, SW, t, 128, RS, 0, 8, 1024, srdO, sBase, buf, 8, sT, sf=sf)
    role_split(a, "k4")
    V = Regs(1, 252, "v"); S = Regs(52, 72, "s")
    vlane = V.alloc(); t = V.alloc(8, 4)
    opW, opM = mkops(V, S, 'c'); slot = opW.bytes + opM.bytes
    sWm = S.alloc(); sWn = S.alloc()
    acc = V.alloc(16, 4); frb = V.alloc(32, 4); fr = [frb+8*k for k in range(4)]; vXr = V.alloc(8, 2)
    a(f"v_and_b32 {v(vlane)}, 63, v0")
    a(f"s_and_b32 {s(sWm)}, {s(SW)}, 1")
    a(f"s_lshr_b32 {s(sWn)}, {s(SW)}, 1")
    vrow = V.alloc(); vXo = V.alloc(); vStg = V.alloc()
    a(f"v_and_b32 {v(t)}, 31, {v(vlane)}")
    a(f"s_lshl_b32 s99, {s(sWn)}, 5")
    a(f"v_add_u32 {v(vrow)}, s99, {v(t)}")
    opM.setup_read(a, vlane, t, 0, vrow, slot)
    opW.setup_read(a, vlane, t, sWm, slot)
    a(f"v_add_u32 {v(t)}, {s(sR)}, {v(vrow)}")
    a(f"v_lshlrev_b32 {v(t)}, 10, {v(t)}")
    a(f"v_lshrrev_b32 {v(t+1)}, 5, {v(vlane)}")
    a(f"v_lshl_add_u32 {v(t)}, {v(t+1)}, 3, {v(t)}")
    a(f"s_lshl_b32 s99, {s(sWm)}, 6"); a(f"s_add_u32 s99, s99, {s(sCol)}")
    a(f"v_add_u32 {v(vXo)}, s99, {v(t)}")
    a(f"v_mul_u32_u24 {v(vStg)}, {RS}, {v(vrow)}")
    a(f"v_lshl_add_u32 {v(vStg)}, {v(t+1)}, 3, {v(vStg)}")
    a(f"s_lshl_b32 s99, {s(sWm)}, 6"); a(f"v_add_u32 {v(vStg)}, s99, {v(vStg)}")
    a("s_waitcnt lgkmcnt(0)")
    srd_from(a, srdX, 4, SIZES[X]); srd_from(a, srdO, 42, SIZES[OUT])
    for q in range(4): a(f"buffer_load_dwordx2 {v(vXr+2*q,2)}, {v(vXo)}, {s(srdX,4)}, 0 offen offset:{16*q}")
    stamp(a, 1)
    gate(a, 3, False, t)
    def reads(sl, ks, st): return opW.read(fr[st], sl, 0, ks) + opM.read(fr[st]+4, sl, ks)
    def mfma(i, ks, st):
        if OPT.get("nomfma"): return ["s_nop 0"]
        return [f"{MFMA} {v(acc,16)}, {v(fr[st],4)}, {v(fr[st]+4,4)}, " + ("0" if (i == 0 and ks == 0) else v(acc,16))]
    DEP = OPT.get('depth', 3)
    emit_compute(a, n, NS, reads, mfma, depth=DEP)
    stamp(a, 3)
    vP = V.alloc(8, 2); vU = V.alloc(4, 2)
    a("s_waitcnt vmcnt(0)"); a("s_nop 7")
    a("s_barrier")
    for q in range(4):
        for d in range(2):
            x_ = vXr + 2*q + d; r0 = acc + 4*q + 2*d
            a(f"v_lshlrev_b32 {v(vU)}, 16, {v(x_)}")
            a(f"v_and_b32 {v(vU+1)}, 0xffff0000, {v(x_)}")
            a(f"v_pk_add_f32 {v(r0,2)}, {v(r0,2)}, {v(vU,2)}")
            a(f"v_cvt_pk_bf16_f32 {v(vP+2*q+d)}, {v(r0)}, {v(r0+1)}")
        a(f"ds_write_b64 {v(vStg)}, {v(vP+2*q,2)} offset:{q*16}")
    a("s_waitcnt lgkmcnt(0)")
    stamp(a, 4)
    tail(a, V, S, vlane, t, frb)
    stamp(a, 5); finish(a, 3, t, 0)
    a("k4_loader:"); loader_start(a)
    V = Regs(1, 252, "v"); S = Regs(52, 72, "s")
    vlane = V.alloc(); t = V.alloc(8, 4)
    opW, opM = mkops(V, S, 'l'); sKc = S.alloc()
    a(f"v_and_b32 {v(vlane)}, 63, v0")
    opM.setup_dma(a, vlane, SL, t, MC_LD, srowbase=sR)
    opW.setup_dma(a, vlane, SL, t, 1024, colbase_s=sCol)
    def ksets(): return [f"s_lshl_b32 {s(opM.s_k)}, {s(sKc)}, 7", f"s_lshl_b32 {s(opW.s_k)}, {s(sKc)}, 16"]
    def kadv(): return [f"s_add_u32 {s(sKc)}, {s(sKc)}, 1\ns_and_b32 {s(sKc)}, {s(sKc)}, 15\n" + "\n".join(ksets())]
    a(f"s_mov_b32 {s(sKc)}, {s(sC0)}")
    for l in ksets(): a(l)
    a("s_waitcnt lgkmcnt(0)")
    srd_from(a, srdM, 30, MC_BYTES, O_MC); srd_from(a, srdW, 40, SIZES[WM]); srd_from(a, srdO, 42, SIZES[OUT])
    stamp(a, 1)
    gate(a, 3, True, t); stamp(a, 2)
    if OPT.get("lat"):
        a(f"buffer_load_dword v250, {v(opM.voff[0])}, {s(srdM,4)}, {s(opM.s_k)} offen"); a("s_waitcnt vmcnt(0)"); stamp(a, 2)
        a(f"buffer_load_dword v250, {v(opW.voff[0])}, {s(srdW,4)}, {s(opW.s_k)} offen"); a("s_waitcnt vmcnt(0)"); stamp(a, 4)
        a(f"buffer_load_dword v250, {v(opM.voff[1])}, {s(srdM,4)}, {s(opM.s_k)} offen"); a("s_waitcnt vmcnt(0)"); stamp(a, 5)
    vm = Vm()
    def dma(so): return opM.dma(srdM, so) + opW.dma(srdW, so)
    bg = {}
    if gcore.CODEPF: bg[0] = [lambda a: code_prefetch(a, "k4_kernel", "k4_exit", 33, SL, 255, 254)]
    sTch = S.alloc()
    bg[1] = [lambda a: (a(f"s_lshl_b32 {s(sTch)}, {s(sR)}, 10"), touch(a, vm, t, srdO, sTch, 64*1024))]
    emit_loader(a, vm, n, NS, slot, dma, opM.nper + opW.nper, kadv, bg=bg, lag=(1 if OPT.get('depth', 3) > 1 else 0), npre=OPT.get('k4pre', 3), ahead=OPT.get('k4ahead', 3))
    stamp(a, 3)
    buf = V.alloc(32, 4)
    a("s_barrier")
    tail(a, V, S, vlane, t, buf)
    finish(a, 3, t, 4)
    a("k4_exit:"); a("s_endpgm")
    return ("k4_kernel", a.text(), 256, 100, None), NS*slot


def k4f(sf=""):
    a = Asm()
    a("k4_begin:")
    stamp(a, 0)
    a("""
    s_load_dwordx4 s[40:43], s[0:1], 56
    s_load_dwordx2 s[4:5], s[0:1], 0          ; x
    s_and_b32 s32, s2, 7
    s_lshr_b32 s33, s2, 3
    s_lshr_b32 s34, s33, 3
    s_lshl_b32 s35, s32, 2
    s_add_u32 s35, s35, s34
    s_lshr_b32 s21, s35, 4                    ; b
    s_and_b32 s23, s35, 15                    ; j
    s_and_b32 s22, s33, 7                     ; te
    s_lshl_b32 s26, s23, 6
    s_lshl_b32 s27, s22, 7
    """)
    NS = 4; n = 16
    sB, sJ, sR, sCol = 21, 23, 26, 27
    srdM, srdW, srdX, srdO = 8, 12, 16, 44
    WRES = 0; RING = 131072; RS = 144
    exp = []
    for j in range(16):
        lo, hi = 64*j, min(64*j+63, 999)
        npv = sum(1 for tt in range(11) if 96*tt <= hi and 96*tt+95 >= lo)
        nl = sum(1 for tt in range(5) if 224*tt <= hi and 224*tt+223 >= lo)
        exp.append(npv + nl)
    packed = sum(e << (4*j) for j, e in enumerate(exp))
    role_split(a, "k4f")
    def tail(a, V, S, vlane, t, buf):
        sT = S.alloc(); sBase = S.alloc()
        a("s_barrier")
        a(f"s_lshl_b32 {s(sBase)}, {s(sR)}, 10"); a(f"s_add_u32 {s(sBase)}, {s(sBase)}, {s(sCol)}")
        store_rows(a, V, vlane, SW, t, 128, RS, 0, 8, 1024, srdO, sBase, buf, 8, sT, sf=sf)
    V = Regs(1, 252, "v"); S = Regs(52, 72, "s")
    vlane = V.alloc(); t = V.alloc(8, 4)
    opW = OpT(64, WRES); opW.alloc(V, S, 2, 1, role='c')
    opM = OpK(64, RING); opM.alloc(V, S, NS, role='c')
    sWm = S.alloc(); sWn = S.alloc()
    acc = V.alloc(16, 4); frb = V.alloc(32, 4); fr = [frb+8*k for k in range(4)]; vXr = V.alloc(8, 2)
    a(f"v_and_b32 {v(vlane)}, 63, v0")
    a(f"s_and_b32 {s(sWm)}, {s(SW)}, 1"); a(f"s_lshr_b32 {s(sWn)}, {s(SW)}, 1")
    vrow = V.alloc(); vXo = V.alloc(); vStg = V.alloc()
    a(f"v_and_b32 {v(t)}, 31, {v(vlane)}"); a(f"s_lshl_b32 s99, {s(sWn)}, 5"); a(f"v_add_u32 {v(vrow)}, s99, {v(t)}")
    opM.setup_read(a, vlane, t, 0, vrow, 8192)
    opW.setup_read(a, vlane, t, sWm, 65536)
    a(f"v_add_u32 {v(t)}, {s(sR)}, {v(vrow)}"); a(f"v_lshlrev_b32 {v(t)}, 10, {v(t)}")
    a(f"v_lshrrev_b32 {v(t+1)}, 5, {v(vlane)}"); a(f"v_lshl_add_u32 {v(t)}, {v(t+1)}, 3, {v(t)}")
    a(f"s_lshl_b32 s99, {s(sWm)}, 6"); a(f"s_add_u32 s99, s99, {s(sCol)}"); a(f"v_add_u32 {v(vXo)}, s99, {v(t)}")
    a(f"v_mul_u32_u24 {v(vStg)}, {RS}, {v(vrow)}"); a(f"v_lshl_add_u32 {v(vStg)}, {v(t+1)}, 3, {v(vStg)}")
    a(f"s_lshl_b32 s99, {s(sWm)}, 6"); a(f"v_add_u32 {v(vStg)}, s99, {v(vStg)}")
    a("s_waitcnt lgkmcnt(0)")
    def xo_srd(a):
        a(f"s_mul_i32 s38, {s(sB)}, 1024000")
        a(f"s_add_u32 {s(srdX)}, s4, s38"); a(f"s_addc_u32 {s(srdX+1)}, s5, 0"); a(f"s_mov_b32 {s(srdX+2)}, 1024000"); a(f"s_mov_b32 {s(srdX+3)}, 0x20000")
        a(f"s_add_u32 {s(srdO)}, s42, s38"); a(f"s_addc_u32 {s(srdO+1)}, s43, 0"); a(f"s_mov_b32 {s(srdO+2)}, 1024000"); a(f"s_mov_b32 {s(srdO+3)}, 0x20000")
    xo_srd(a)
    for q in range(4): a(f"buffer_load_dwordx2 {v(vXr+2*q,2)}, {v(vXo)}, {s(srdX,4)}, 0 offen offset:{16*q}")
    stamp(a, 1)
    def reads(sl, ks, st, stage):
        o = opW.read(fr[st], stage >> 3, 0, ks)
        o = [x.replace(f"offset:{int(x.split('offset:')[1])}", f"offset:{int(x.split('offset:')[1]) + (stage & 7)*8192}") for x in o]
        return o + opM.read(fr[st]+4, sl, ks)
    def mfma(i, ks, st): return [f"{MFMA} {v(acc,16)}, {v(fr[st],4)}, {v(fr[st]+4,4)}, " + ("0" if (i == 0 and ks == 0) else v(acc,16))]
    a("s_barrier")
    emit_compute(a, n, NS, reads, mfma, depth=3, pass_stage=True)
    stamp(a, 3)
    vP = V.alloc(8, 2); vU = V.alloc(4, 2)
    a("s_waitcnt vmcnt(0)"); a("s_nop 7")
    a("s_barrier")
    for q in range(4):
        for d in range(2):
            x_ = vXr + 2*q + d; r0 = acc + 4*q + 2*d
            a(f"v_lshlrev_b32 {v(vU)}, 16, {v(x_)}"); a(f"v_and_b32 {v(vU+1)}, 0xffff0000, {v(x_)}")
            a(f"v_pk_add_f32 {v(r0,2)}, {v(r0,2)}, {v(vU,2)}")
            a(f"v_cvt_pk_bf16_f32 {v(vP+2*q+d)}, {v(r0)}, {v(r0+1)}")
        a(f"ds_write_b64 {v(vStg)}, {v(vP+2*q,2)} offset:{q*16}")
    a("s_waitcnt lgkmcnt(0)")
    stamp(a, 4)
    tail(a, V, S, vlane, t, frb)
    stamp(a, 5); finish(a, 3, t, 0)
    a("k4f_loader:")
    V = Regs(1, 252, "v"); S = Regs(52, 72, "s")
    vlane = V.alloc(); t = V.alloc(8, 4)
    opW = OpT(64, WRES); opW.alloc(V, S, 1, 1, role='l')
    opM = OpK(64, 0); opM.alloc(V, S, NS, role='l'); sKc = S.alloc()
    a(f"v_and_b32 {v(vlane)}, 63, v0")
    opW.setup_dma(a, vlane, SL, t, 1024, colbase_s=sCol)
    opM.setup_dma(a, vlane, SL, t, MC_LD, srowbase=sR)
    a("s_waitcnt lgkmcnt(0)")
    srd_from(a, srdW, 40, SIZES[WM])
    vm = Vm()
    for st_ in range(16):
        a(f"s_mov_b32 {s(opW.s_k)}, {st_*65536}")
        for l in opW.dma(srdW, st_*8192): a(l)
        vm.issue("w", opW.nper)
    batch_srd(a, srdM, sB, O_MC, 1000*MC_LD, 1000*MC_LD)
    xo_srd(a)
    stamp(a, 1)
    a(f"s_cmp_eq_u32 {s(SL)}, 0"); a("s_cbranch_scc0 k4f_gd")
    a(f"s_add_u32 s76, s30, {O_CNT}"); a("s_addc_u32 s77, s31, 0"); a("s_mov_b32 s78, 4096"); a("s_mov_b32 s79, 0x20000")
    a(f"s_lshl_b32 s98, {s(sB)}, 4"); a(f"s_add_u32 s98, s98, {s(sJ)}"); a("s_lshl_b32 s98, s98, 7")
    a(f"v_mov_b32 {v(t)}, s98")
    a(f"s_mov_b32 s72, {packed & 0xffffffff}"); a(f"s_mov_b32 s73, {packed >> 32}")
    a(f"s_lshl_b32 s98, {s(sJ)}, 2"); a("s_lshr_b64 s[72:73], s[72:73], s98"); a("s_and_b32 s72, s72, 15"); a("s_lshl_b32 s72, s72, 3")
    a("s_mov_b32 s98, 0")
    a("k4f_gp:")
    a(f"buffer_load_dword {v(t+1)}, {v(t)}, s[76:79], 0 offen sc1")
    a("s_waitcnt vmcnt(0)")
    a(f"v_readfirstlane_b32 s99, {v(t+1)}")
    a("s_add_u32 s98, s98, 1"); a("s_nop 3")
    a("s_cmp_eq_u32 s99, s72"); a("s_cbranch_scc1 k4f_gd")
    a(f"s_sleep {OPT.get('slp', 2)}")
    a("s_cmp_lt_u32 s98, 0x20000"); a("s_cbranch_scc1 k4f_gp")
    a("k4f_gd:")
    a("s_barrier")
    stamp(a, 2)
    def ksets(): return [f"s_lshl_b32 {s(opM.s_k)}, {s(sKc)}, 7"]
    def kadv(): return [f"s_add_u32 {s(sKc)}, {s(sKc)}, 1\n" + "\n".join(ksets())]
    a(f"s_mov_b32 {s(sKc)}, 0")
    for l in ksets(): a(l)
    def dma(so): return opM.dma(srdM, so + RING, flags="sc1" if OPT.get("dmasc1", 1) else "")
    emit_loader(a, vm, n, NS, 8192, dma, opM.nper, kadv, lag=1, npre=2, ahead=2)
    stamp(a, 3)
    buf = V.alloc(32, 4)
    a("s_barrier")
    tail(a, V, S, vlane, t, buf)
    finish(a, 3, t, 4)
    return a.text(), 163840

def k3_PV(a, sf):
    name = "k3P"
    DEP = OPT.get("k3pd", 3)
    NS = OPT.get("k3pns", 4); n = 16
    sB, sTt, sTc, sT0, sCol = 21, 22, 23, 26, 27
    srdP, srdVT, srdML, srdDW, srdMC = 8, 12, 16, 44, 48
    slot = 64*128 + 128*128
    FT = NS*slot
    TB = FT + 8192
    GT = TB + TB_BYTES
    OUT = 0
    lds_total = GT + 64*384
    a(f"s_mul_i32 {s(sT0)}, {s(sTt)}, 96")
    a(f"s_lshl_b32 {s(sCol)}, {s(sTc)}, 7")
    role_split(a, name)
    def mkops(V, S, role):
        opV = OpK(64, 0); opP = OpK(128, opV.bytes)
        opV.alloc(V, S, NS, role=role); opP.alloc(V, S, NS, role=role)
        return opV, opP
    def tail(a, V, OV, vlane, t, vD):
        cv = Conv(OV, GT, 384, TB, OUT, residual=True, nch=8)
        op = OutPass(OV, 96)
        return cv, op
    V = Regs(1, 252, "v"); S = Regs(52, 72, "s")
    vlane = V.alloc(); t = V.alloc(8, 4)
    opV, opP = mkops(V, S, 'c')
    sWm = S.alloc(); sWn = S.alloc()
    a(f"v_and_b32 {v(vlane)}, 63, v0")
    a(f"s_and_b32 {s(sWm)}, {s(SW)}, 1"); a(f"s_lshr_b32 {s(sWn)}, {s(SW)}, 1")
    vrowV = V.alloc(); vrowP = V.alloc()
    a(f"v_and_b32 {v(t)}, 31, {v(vlane)}")
    a(f"s_lshl_b32 s99, {s(sWm)}, 5"); a(f"v_add_u32 {v(vrowV)}, s99, {v(t)}")
    a(f"s_lshl_b32 s99, {s(sWn)}, 6"); a(f"v_add_u32 {v(vrowP)}, s99, {v(t)}")
    opV.setup_read(a, vlane, t, 0, vrowV, slot); opP.setup_read(a, vlane, t, 0, vrowP, slot)
    cur = [V.alloc(32, 4), V.alloc(32, 4)]; tot = V.alloc(32, 4); frb = V.alloc(max(24, 12*(DEP+1)), 4); fr = [frb+12*k for k in range(DEP+1)]
    vF = V.alloc(16); vFa = V.alloc()
    a(f"v_lshlrev_b32 {v(vFa)}, 2, {v(vrowP)}"); a(f"v_add_u32 {v(vFa)}, {FT}, {v(vFa)}")
    if OPT.get("pvrot"):
        a(f"s_lshl_b32 s99, {s(sTc)}, 9"); a(f"v_add_u32 {v(vFa)}, s99, {v(vFa)}")
    vML = cur[1]; shr = V.alloc(12, 4); vz = shr; vTap = shr+4; vValid = V.alloc(); vMo = cur[1]+28; bt = V.alloc(4)
    a(f"v_and_b32 {v(t)}, 127, v0")
    a(f"s_sub_u32 s99, {s(sT0)}, 16"); a(f"v_add_u32 {v(t)}, s99, {v(t)}")
    a(f"v_cmp_gt_u32 vcc, 1000, {v(t)}")
    a(f"v_mov_b32 {v(t+2)}, 0"); a(f"v_mov_b32 {v(t+3)}, 1.0")
    a(f"v_cndmask_b32 {v(vValid)}, {v(t+2)}, {v(t+3)}, vcc")
    a(f"v_max_i32 {v(t+1)}, 0, {v(t)}"); a(f"v_min_i32 {v(t+1)}, 999, {v(t+1)}")
    a(f"s_lshl_b32 s99, {s(sB)}, 10"); a(f"v_add_u32 {v(t+1)}, s99, {v(t+1)}")
    a(f"v_lshlrev_b32 {v(vMo)}, 6, {v(t+1)}")
    a("s_waitcnt lgkmcnt(0)")
    gate(a, 2, False, t)
    srd_from(a, srdML, 30, ML_BYTES, O_ML)
    for k in range(4): a(f"buffer_load_dwordx4 {v(vML+4*k,4)}, {v(vMo)}, {s(srdML,4)}, 0 offen offset:{16*k}")
    srd_from(a, srdDW, 6, SIZES[DWM])
    taps_load(a, 0, t, vTap, srdDW, sCol, 2048)
    batch_srd(a, srdMC, sB, O_MC, 1000*MC_LD, 1000*MC_LD)
    stamp(a, 1)
    bgx = {}
    r = Rec(); F = vML; M = bt
    r("s_waitcnt vmcnt(8)")
    r(f"v_max3_f32 {v(M)}, {v(F)}, {v(F+2)}, {v(F+4)}"); r(f"v_max3_f32 {v(M)}, {v(M)}, {v(F+6)}, {v(F+8)}")
    r(f"v_max3_f32 {v(M)}, {v(M)}, {v(F+10)}, {v(F+12)}"); r(f"v_max_f32 {v(M)}, {v(M)}, {v(F+14)}")
    for k in range(8): r(f"v_sub_f32 {v(F+2*k)}, {v(F+2*k)}, {v(M)}")
    for k in range(8): r(f"v_exp_f32 {v(F+2*k)}, {v(F+2*k)}")
    r(f"s_nop 0\nv_mul_f32 {v(bt+1)}, {v(F)}, {v(F+1)}")
    for k in range(1, 8): r(f"v_fmac_f32 {v(bt+1)}, {v(F+2*k)}, {v(F+2*k+1)}")
    r(f"v_rcp_f32 {v(bt+1)}, {v(bt+1)}\ns_nop 0\nv_mul_f32 {v(bt+1)}, {v(bt+1)}, {v(vValid)}")
    r(f"v_and_b32 {v(bt+2)}, 127, v0"); r(f"v_lshlrev_b32 {v(bt+2)}, 2, {v(bt+2)}")
    r(f"v_lshrrev_b32 {v(bt+3)}, 7, v0"); r(f"v_lshl_add_u32 {v(bt+2)}, {v(bt+3)}, 12, {v(bt+2)}"); r(f"v_add_u32 {v(bt+2)}, {FT}, {v(bt+2)}")
    for k in range(8): r(f"v_mul_f32 {v(F+2*k)}, {v(F+2*k)}, {v(bt+1)}")
    for k in range(8): r(f"ds_write_b32 {v(bt+2)}, {v(F+2*k)} offset:{k*512}")
    distribute(bgx, r.atoms, 0, 1, ks_list=(0, 1, 2, 3))
    r = Rec(); zero_lds(r, 0, vz, TB, TB_BYTES + 64*384, bt); distribute(bgx, r.atoms, 3, 5)
    r = Rec(); r("s_waitcnt vmcnt(0)"); taps_write(r, 0, bt, vTap, TB); distribute(bgx, r.atoms, 6, 8)
    r = Rec()
    vAd = [[shr + 4*x + y for y in range(4)] for x in range(2)]
    for nt in range(2):
        r(f"v_add_u32 {v(bt)}, {32*nt}, {v(vrowP)}")
        r(f"v_lshrrev_b32 {v(bt+1)}, 3, {v(bt)}")
        r(f"v_lshrrev_b32 {v(bt+2)}, 5, {v(vlane)}")
        r(f"v_lshlrev_b32 {v(bt+3)}, 1, {v(bt+2)}")
        r(f"v_xor_b32 {v(bt+1)}, {v(bt+1)}, {v(bt+3)}")
        r(f"v_and_b32 {v(bt)}, 7, {v(bt)}")
        r(f"v_lshlrev_b32 {v(bt)}, 1, {v(bt)}")
        r(f"v_mul_u32_u24 {v(bt+2)}, {4*384}, {v(bt+2)}")
        r(f"v_add_u32 {v(bt)}, {v(bt)}, {v(bt+2)}")
        r(f"s_mul_i32 s99, {s(sWm)}, {32*384}\ns_add_u32 s99, s99, {GT}\nv_add_u32 {v(bt)}, s99, {v(bt)}")
        for var in range(4):
            st_ = ((var >> 1) << 2) | (var & 1)
            r(f"v_xor_b32 {v(bt+2)}, {st_}, {v(bt+1)}")
            r(f"v_lshl_add_u32 {v(vAd[nt][var])}, {v(bt+2)}, 4, {v(bt)}")
    OV = Overlay(V, cur[0], frb + max(24, 12*(DEP+1)))
    cv = Conv(OV, GT, 384, TB, OUT, residual=True, nch=8, nsets=4); cv.setup(r, vlane, SW, bt)
    op = OutPass(Overlay(V, 0, 0, pool=[shr+8, shr+9, shr+10, shr+11], minbig=99), 96); op.setup(r, bt, OUT, sT0, sCol, 11)
    distribute(bgx, r.atoms, 9, 15)
    def reads(sl, ks, st):
        o = opV.read(fr[st], sl, ks)
        for i in range(2): o += opP.read(fr[st]+4+4*i, sl, ks, tile_rows=32*i)
        return o
    def mfma(i, ks, st):
        c = cur[(i >> 1) & 1]
        return [f"{MFMA} {v(c+16*nt,16)}, {v(fr[st],4)}, {v(fr[st]+4+4*nt,4)}, " + ("0" if (ks == 0 and i % 2 == 0) else v(c+16*nt,16))
                for nt in range(2)]
    def fmas(c_):
        c = cur[c_ & 1]
        op_ = "v_mul_f32" if c_ == 0 else "v_fmac_f32"
        return [f"{op_} {v(tot+16*nt+r)}, {v(c+16*nt+r)}, {v(vF+2*c_+nt)}" for nt in range(2) for r in range(16)]
    extra = dict(bgx)
    extra[(2, 0)] = extra.get((2, 0), []) + [f"ds_read_b32 {v(vF+2*c_+nt)}, {v(vFa)} offset:{c_*512 + nt*128}" for c_ in range(8) for nt in range(2)]
    for c_ in range(7):
        slots = [(2*c_+2, 1), (2*c_+2, 2), (2*c_+2, 3), (2*c_+3, 0), (2*c_+3, 1), (2*c_+3, 2)]
        for sl, p in zip(slots, split(fmas(c_), len(slots))): extra[sl] = extra.get(sl, []) + p
    emit_compute(a, n, NS, reads, mfma, extra=extra, depth=DEP)
    stamp(a, 3)
    a("s_nop 7"); a("s_nop 7")
    for l in fmas(7): a(l)
    vP = frb
    for nt in range(2):
        for q in range(4):
            for rp in range(2):
                r0 = tot + 16*nt + 4*q + 2*rp
                a(f"v_cvt_pk_bf16_f32 {v(vP+8*nt+2*q+rp)}, {v(r0)}, {v(r0+1)}")
        for q in range(4):
            for rp in range(2):
                ad = vAd[nt][((q & 1) << 1) + rp]
                a(f"ds_write_b16 {v(ad)}, {v(vP+8*nt+2*q+rp)} offset:{(8*q + 2*rp)*384}")
                a(f"ds_write_b16_d16_hi {v(ad)}, {v(vP+8*nt+2*q+rp)} offset:{(8*q + 2*rp + 1)*384}")
    a("s_waitcnt lgkmcnt(0)")
    a("s_barrier")
    stamp(a, 4)
    cv.emit(a, 6)
    a("s_waitcnt lgkmcnt(0)")
    a("s_barrier")
    op.emit(a, cur[0], srdMC, sf)
    stamp(a, 5); finish(a, 2, t, 0, arr=(sB, sT0, 96))
    a(f"{name}_loader:"); loader_start(a)
    V = Regs(1, 252, "v"); S = Regs(52, 72, "s")
    vlane = V.alloc(); t = V.alloc(8, 4); vl = V.alloc()
    opV, opP = mkops(V, S, 'l'); sKc = S.alloc(); sR = S.alloc()
    a(f"v_and_b32 {v(vlane)}, 63, v0"); a(f"v_and_b32 {v(vl)}, 255, v0")
    a(f"s_sub_u32 {s(sR)}, {s(sT0)}, 16")
    opP.setup_dma(a, vlane, SL, t, P_LD, srowbase=sR)
    a(f"s_lshl_b32 {s(sR)}, {s(sTc)}, 6"); a(f"s_lshl_b32 s98, {s(sB)}, 9"); a(f"s_add_u32 {s(sR)}, {s(sR)}, s98")
    opV.setup_dma(a, vlane, SL, t, VT_LD, srowbase=sR)
    def ksets(): return [f"s_lshl_b32 {s(opV.s_k)}, {s(sKc)}, 7", f"s_mov_b32 {s(opP.s_k)}, {s(opV.s_k)}"]
    def kadv(): return [f"s_add_u32 {s(sKc)}, {s(sKc)}, 1\ns_and_b32 {s(sKc)}, {s(sKc)}, 15\n" + "\n".join(ksets())]
    if not OPT.get("pvrot"): a(f"s_mov_b32 {s(sKc)}, 0")
    else: a(f"s_lshl_b32 {s(sKc)}, {s(sTc)}, 1")
    for l in ksets(): a(l)
    a("s_waitcnt lgkmcnt(0)")
    batch_srd(a, srdP, sB, O_P, 1024*P_LD, 1000*P_LD)
    srd_from(a, srdVT, 30, VT_BYTES, O_VT)
    stamp(a, 1)
    gate(a, 2, True, t); stamp(a, 2)
    vm = Vm()
    def dma(so): return opP.dma(srdP, so) + opV.dma(srdVT, so)
    fa_blk = V.alloc(104, 4)
    cvL = Conv(Overlay(V, fa_blk, fa_blk+104), GT, 384, TB, OUT, residual=True, nch=8, nsets=4); opL = OutPass(V, 96)
    def setups(a):
        cvL.setup(a, vlane, SW, t); opL.setup(a, t, OUT, sT0, sCol, 11)
    sTch = S.alloc()
    def tch(a):
        batch_srd(a, srdMC, sB, O_MC, 1000*MC_LD, 1000*MC_LD)
        a(f"s_lshl_b32 {s(sTch)}, {s(sT0)}, 11")
        touch(a, vm, t, srdMC, sTch, 96*MC_LD)
    bg = {n-2: [setups], 0: [tch]}
    if gcore.CODEPF: bg[5] = [lambda a: code_prefetch(a, "k3_kernel", "k4_exit", 33, SL, 255, 254)]
    bg[n-1] = [lambda a: l2_prefetch(a, vm, t, [(56, SIZES[WM])])]
    emit_loader(a, vm, n, NS, slot, dma, 6, kadv, bg=bg, lag=(1 if DEP > 1 else 0), npre=OPT.get("pvpre", 2), ahead=OPT.get("pvahead", 2))
    stamp(a, 3)
    a("s_barrier")
    cvL.emit(a, 6)
    a("s_waitcnt lgkmcnt(0)")
    a("s_barrier")
    vD = V.alloc(8, 4)
    opL.emit(a, vD, srdMC, sf)
    finish(a, 2, t, 4, arr=(sB, sT0, 96))
    return lds_total

def k3_L(a, sf):
    name = "k3L"
    DEP = OPT.get("k3ld", 1)
    NS = 3; n = 8
    sB, sTt, sTe, sC0, sT0, sCol, sCol2 = 21, 22, 23, 24, 26, 27, 28
    srdZ, srdW, srdDW, srdMC = 8, 12, 44, 48
    slot = 256*128 + 64*128
    GS_ = 640
    TB = NS*slot; GT = 0; OUT = 64*GS_
    lds_total = TB + TB_BYTES
    a(f"s_mul_i32 {s(sT0)}, {s(sTt)}, 224")
    a(f"s_lshl_b32 {s(sCol)}, {s(sTe)}, 7")
    a(f"s_add_u32 {s(sCol2)}, {s(sCol)}, 1024")
    role_split(a, name)
    def mkops(V, S, role):
        opZ = OpK(256, 0); opW = OpT(64, opZ.bytes)
        opZ.alloc(V, S, NS, role=role); opW.alloc(V, S, NS, 2, role=role)
        return opZ, opW
    V = Regs(1, 252, "v"); S = Regs(52, 72, "s")
    vlane = V.alloc(); t = V.alloc(8, 4)
    opZ, opW = mkops(V, S, 'c'); sZero = S.alloc()
    acc = V.alloc(64, 4); frb = V.alloc(max(32, 16*(DEP+1)), 4); fr = [frb+16*k for k in range(DEP+1)]
    A_ = lambda mt, nt: acc + (mt*2+nt)*16
    vrowZ = V.alloc()
    a(f"v_and_b32 {v(vlane)}, 63, v0")
    a(f"v_and_b32 {v(t)}, 31, {v(vlane)}")
    a(f"s_lshl_b32 s99, {s(SW)}, 6"); a(f"v_add_u32 {v(vrowZ)}, s99, {v(t)}")
    opZ.setup_read(a, vlane, t, 0, vrowZ, slot)
    a(f"s_mov_b32 {s(sZero)}, 0"); opW.setup_read(a, vlane, t, sZero, slot)
    vAd = V.alloc(8); vPz = V.alloc(); vz = V.alloc(4, 4); vTap = V.alloc(8); bt = V.alloc(5)
    a("s_waitcnt lgkmcnt(0)")
    srd_from(a, srdDW, 6, SIZES[DWM])
    taps_load(a, 0, t, vTap, srdDW, sCol2, 2048)
    batch_srd(a, srdMC, sB, O_MC, 1000*MC_LD, 1000*MC_LD)
    extra = {}
    r = Rec(); zero_lds(r, 0, vz, TB, TB_BYTES, bt); distribute(extra, r.atoms, 0, 1)
    r = Rec(); r("s_waitcnt vmcnt(0)"); taps_write(r, 0, bt, vTap, TB); distribute(extra, r.atoms, 2, 4)
    r = Rec()
    r(f"v_and_b32 {v(bt)}, 31, {v(vlane)}")
    r(f"v_bfe_u32 {v(bt+1)}, {v(vlane)}, 1, 3")
    r(f"v_mul_u32_u24 {v(bt)}, {GS_}, {v(bt)}")
    r(f"v_lshrrev_b32 {v(bt+2)}, 5, {v(vlane)}")
    r(f"v_lshl_add_u32 {v(bt)}, {v(bt+2)}, 3, {v(bt)}")
    r(f"s_lshl_b32 s99, {s(SW)}, 7\ns_add_u32 s99, s99, {GT}\nv_add_u32 {v(bt)}, s99, {v(bt)}")
    for k in range(8):
        r(f"v_xor_b32 {v(bt+2)}, {k}, {v(bt+1)}")
        r(f"v_lshl_add_u32 {v(vAd+k)}, {v(bt+2)}, 4, {v(bt)}")
    r(f"v_lshrrev_b32 {v(bt+3)}, 2, v0"); r(f"v_mul_u32_u24 {v(bt+3)}, {GS_}, {v(bt+3)}")
    r(f"v_and_b32 {v(bt+4)}, 3, v0"); r(f"v_lshl_add_u32 {v(vPz)}, {v(bt+4)}, 5, {v(bt+3)}")
    cv = Conv(Overlay(V, acc, frb+max(32, 16*(DEP+1))), GT, GS_, TB, OUT, residual=True, nch=8, nsets=3); cv.setup(r, vlane, SW, bt)
    op = OutPass(V, 224); op.setup(r, bt, OUT, sT0, sCol2, 11)
    distribute(extra, r.atoms, 4, 8, ks_list=(0, 1, 2))
    stamp(a, 1)
    gate(a, 2, False, t)
    def reads(sl, ks, st):
        o = []
        for i in range(2): o += opZ.read(fr[st]+4*i, sl, ks, tile_rows=32*i)
        for i in range(2): o += opW.read(fr[st]+8+4*i, sl, i, ks)
        return o
    def mfma(i, ks, st):
        return [f"{MFMA} {v(A_(mt,nt),16)}, {v(fr[st]+4*mt,4)}, {v(fr[st]+8+4*nt,4)}, " + ("0" if (i == 0 and ks == 0) else v(A_(mt,nt),16))
                for mt in range(2) for nt in range(2)]
    emit_compute(a, n, NS, reads, mfma, extra=extra, depth=DEP)
    stamp(a, 3)
    vP = V.alloc(8, 2)
    a("s_nop 7")
    a("s_barrier")
    a(f"ds_write_b128 {v(vPz)}, {v(vz,4)} offset:{GT + 512}")
    a(f"ds_write_b128 {v(vPz)}, {v(vz,4)} offset:{GT + 528}")
    for nt in range(2):
        for mt in range(2):
            ac = A_(mt, nt)
            for q in range(4):
                a(f"v_cvt_pk_bf16_f32 {v(vP+2*q)}, {v(ac+4*q)}, {v(ac+4*q+1)}")
                a(f"v_cvt_pk_bf16_f32 {v(vP+2*q+1)}, {v(ac+4*q+2)}, {v(ac+4*q+3)}")
            for q in range(4):
                a(f"ds_write_b64 {v(vAd+4*mt+q)}, {v(vP+2*q,2)} offset:{nt*32*GS_}")
    a("s_waitcnt lgkmcnt(0)")
    a("s_barrier")
    stamp(a, 4)
    cv.emit(a, 14)
    a("s_waitcnt lgkmcnt(0)")
    a("s_barrier")
    vD = V.alloc(16, 4)
    op.emit(a, vD, srdMC, sf)
    stamp(a, 5); finish(a, 2, t, 0, arr=(sB, sT0, 224))
    a(f"{name}_loader:"); loader_start(a)
    V = Regs(1, 252, "v"); S = Regs(52, 72, "s")
    vlane = V.alloc(); t = V.alloc(8, 4); vl = V.alloc()
    opZ, opW = mkops(V, S, 'l'); sKc = S.alloc(); sR = S.alloc()
    a(f"v_and_b32 {v(vlane)}, 63, v0"); a(f"v_and_b32 {v(vl)}, 255, v0")
    a(f"s_sub_u32 {s(sR)}, {s(sT0)}, 16")
    opZ.setup_dma(a, vlane, SL, t, Z_LD, srowbase=sR)
    opW.setup_dma(a, vlane, SL, t, 1024, colbase_s=sCol)
    def ksets(): return [f"s_lshl_b32 {s(opZ.s_k)}, {s(sKc)}, 7", f"s_lshl_b32 {s(opW.s_k)}, {s(sKc)}, 16"]
    def kadv(): return [f"s_add_u32 {s(sKc)}, {s(sKc)}, 1\ns_and_b32 {s(sKc)}, {s(sKc)}, 7\n" + "\n".join(ksets())]
    a(f"s_mov_b32 {s(sKc)}, {s(sC0)}")
    for l in ksets(): a(l)
    a("s_waitcnt lgkmcnt(0)")
    batch_srd(a, srdZ, sB, O_Z, 1000*Z_LD, 1000*Z_LD)
    srd_from(a, srdW, 4, SIZES[WMO])
    stamp(a, 1)
    gate(a, 2, True, t); stamp(a, 2)
    vm = Vm()
    def dma(so): return opZ.dma(srdZ, so) + opW.dma(srdW, so)
    fa_blk = V.alloc(104, 4)
    cvL = Conv(Overlay(V, fa_blk, fa_blk+104), GT, GS_, TB, OUT, residual=True, nch=8, nsets=4); opL = OutPass(V, 224)
    def setups(a):
        cvL.setup(a, vlane, SW, t); opL.setup(a, t, OUT, sT0, sCol2, 11)
    sTch = S.alloc()
    def tch(a):
        batch_srd(a, srdMC, sB, O_MC, 1000*MC_LD, 1000*MC_LD)
        a(f"s_lshl_b32 {s(sTch)}, {s(sT0)}, 11")
        touch(a, vm, t, srdMC, sTch, 224*MC_LD)
    bg = {n-2: [setups], 0: [tch]}
    if gcore.CODEPF: bg[4] = [lambda a: code_prefetch(a, "k3_kernel", "k4_exit", 33, SL, 255, 254)]
    bg[n-1] = [lambda a: l2_prefetch(a, vm, t, [(56, SIZES[WM])])]
    emit_loader(a, vm, n, NS, slot, dma, 10, kadv, bg=bg, npre=2, lag=(1 if DEP > 1 else 0))
    stamp(a, 3)
    a("s_barrier")
    a("s_barrier")
    cvL.emit(a, 14)
    a("s_waitcnt lgkmcnt(0)")
    a("s_barrier")
    vD = V.alloc(16, 4)
    opL.emit(a, vD, srdMC, sf)
    finish(a, 2, t, 4, arr=(sB, sT0, 224))
    return lds_total

def k3(sf=""):
    a = Asm(); stamp(a, 0)
    a("""
    s_cmp_ge_u32 s2, 256
    s_cbranch_scc1 k3_exit
    """)
    a("k3_begin:")
    if FUSED[0]: stamp(a, 0)
    a("""
    s_load_dwordx2 s[30:31], s[0:1], 80       ; ws
    s_load_dwordx2 s[4:5], s[0:1], 40         ; w_mlp_out
    s_load_dwordx2 s[6:7], s[0:1], 48         ; dw_merge
    v_lshrrev_b32 v1, 6, v0
    s_and_b32 s32, s2, 7                      ; xcd
    s_lshr_b32 s33, s2, 3                     ; li
    v_readfirstlane_b32 s20, v1               ; wave
    s_cmp_ge_u32 s33, 22
    s_cbranch_scc1 k3_typeL
    s_lshr_b32 s21, s32, 2                    ; b
    s_and_b32 s34, s32, 3
    s_mul_i32 s34, s34, 22
    s_add_u32 s34, s34, s33                   ; n = 22q + li
    s_lshr_b32 s22, s34, 3                    ; tt
    s_and_b32 s23, s34, 7                     ; tc
    """)
    la = k3_PV(a, sf)
    a("""k3_typeL:
    s_mul_i32 s34, s32, 10
    s_add_u32 s34, s34, s33
    s_sub_u32 s34, s34, 22                    ; n = 10x + li - 22
    s_lshr_b32 s35, s34, 3                    ; bt 0..9
    s_and_b32 s23, s34, 7                     ; te
    s_cmp_ge_u32 s35, 5
    s_cselect_b32 s21, 1, 0                   ; b
    s_mul_i32 s36, s21, 5
    s_sub_u32 s22, s35, s36                   ; tt
    s_add_u32 s24, s23, s22
    s_and_b32 s24, s24, 7                     ; c0
    """)
    if OPT.get("k3norot"): a("s_mov_b32 s24, 0")
    lb = k3_L(a, sf)
    a("k3_exit:"); a("s_endpgm")
    return ("k3_kernel", a.text(), 256, 100, None), max(la, lb)

def y_srd(a): batch_srd(a, 8, 21, O_Y, 1000*Y_LD, 1000*Y_LD)

def k2_S(a, sf):
    name = "k2S"
    DEP = OPT.get("k2sd", 2)
    NS = OPT.get("k2sns", 4); n = 8
    sB, sTq, sTs, sC0, sBase = 21, 22, 23, 24, 26
    srdY, srdP, srdML = 8, 12, 16
    slot = 2*128*128
    RS = 272
    MX = NS*slot
    lds_total = MX + 2048
    a(f"s_lshl_b32 s99, {s(sB)}, 10"); a(f"s_lshl_b32 s98, {s(sTq)}, 7"); a(f"s_add_u32 s99, s99, s98")
    a(f"s_mul_i32 {s(sBase)}, s99, {P_LD}"); a(f"s_lshl_b32 s98, {s(sTs)}, 8"); a(f"s_add_u32 {s(sBase)}, {s(sBase)}, s98")
    role_split(a, name)
    def mkops(V, S, role):
        opK = OpK(128, 0); opQ = OpK(128, opK.bytes)
        opK.alloc(V, S, NS, role=role); opQ.alloc(V, S, NS, role=role)
        return opK, opQ
    V = Regs(1, 252, "v"); S = Regs(52, 72, "s")
    vlane = V.alloc(); t = V.alloc(8, 4)
    opK, opQ = mkops(V, S, 'c')
    acc = V.alloc(64, 4); frb = V.alloc(max(32, 16*(DEP+1)), 4); fr = [frb+16*k for k in range(DEP+1)]
    A_ = lambda mt, nt: acc + (mt*2+nt)*16
    sWm = S.alloc(); sWn = S.alloc(); sT = S.alloc()
    a(f"v_and_b32 {v(vlane)}, 63, v0")
    a(f"s_and_b32 {s(sWm)}, {s(SW)}, 1"); a(f"s_lshr_b32 {s(sWn)}, {s(SW)}, 1")
    vrowK = V.alloc(); vrowQ = V.alloc()
    a(f"v_and_b32 {v(t)}, 31, {v(vlane)}")
    a(f"s_lshl_b32 s99, {s(sWm)}, 6"); a(f"v_add_u32 {v(vrowK)}, s99, {v(t)}")
    a(f"s_lshl_b32 s99, {s(sWn)}, 6"); a(f"v_add_u32 {v(vrowQ)}, s99, {v(t)}")
    opK.setup_read(a, vlane, t, 0, vrowK, slot); opQ.setup_read(a, vlane, t, 0, vrowQ, slot)
    vStg = V.alloc(); vMo = V.alloc(); vMxW = V.alloc(); vMxR = V.alloc()
    a(f"v_mul_u32_u24 {v(vStg)}, {RS}, {v(vrowQ)}")
    a(f"v_lshrrev_b32 {v(t)}, 5, {v(vlane)}")
    a(f"v_lshl_add_u32 {v(vStg)}, {v(t)}, 3, {v(vStg)}")
    a(f"s_lshl_b32 s99, {s(sWm)}, 7"); a(f"v_add_u32 {v(vStg)}, s99, {v(vStg)}")
    a(f"s_lshl_b32 s99, {s(sB)}, 10"); a(f"s_lshl_b32 s98, {s(sTq)}, 7"); a(f"s_add_u32 s99, s99, s98")
    a(f"v_add_u32 {v(vMo)}, s99, {v(vrowQ)}"); a(f"v_lshlrev_b32 {v(vMo)}, 6, {v(vMo)}")
    a(f"s_lshl_b32 s99, {s(sTs)}, 3"); a(f"v_add_u32 {v(vMo)}, s99, {v(vMo)}")
    a(f"v_lshlrev_b32 {v(t)}, 2, {v(vrowQ)}")
    a(f"s_lshl_b32 s99, {s(sWm)}, 9"); a(f"s_add_u32 s99, s99, {MX}"); a(f"v_add_u32 {v(vMxW)}, s99, {v(t)}")
    a(f"s_xor_b32 s99, {s(sWm)}, 1"); a(f"s_lshl_b32 s99, s99, 9"); a(f"s_add_u32 s99, s99, {MX}"); a(f"v_add_u32 {v(vMxR)}, s99, {v(t)}")
    sC = S.alloc(2, 2)
    a(f"s_mov_b32 {s(sC)}, {f2u(CSC)}"); a(f"s_mov_b32 {s(sC+1)}, {f2u(CSC)}")
    a("s_waitcnt lgkmcnt(0)")
    srd_from(a, srdP, 30, P_BYTES, O_P); srd_from(a, srdML, 30, ML_BYTES, O_ML)
    stamp(a, 1)
    gate(a, 1, False, t)
    def reads(sl, ks, st):
        o = []
        for i in range(2): o += opK.read(fr[st]+4*i, sl, ks, tile_rows=32*i)
        for i in range(2): o += opQ.read(fr[st]+8+4*i, sl, ks, tile_rows=32*i)
        return o
    def mfma(i, ks, st):
        return [f"{MFMA} {v(A_(mt,nt),16)}, {v(fr[st]+4*mt,4)}, {v(fr[st]+8+4*nt,4)}, " + ("0" if (i == 0 and ks == 0) else v(A_(mt,nt),16))
                for mt in range(2) for nt in range(2)]
    emit_compute(a, n, NS, reads, mfma, depth=DEP)
    stamp(a, 3)
    a("s_nop 7"); a("s_nop 3")
    a(f"s_cmp_eq_u32 {s(sTs)}, 7"); a(f"s_cbranch_scc0 {name}_nomask")
    a(f"s_cmp_eq_u32 {s(sWm)}, 1"); a(f"s_cbranch_scc0 {name}_nomask")
    for nt in range(2):
        for r in range(4, 16): a(f"v_mov_b32 {v(A_(1,nt)+r)}, 0xff800000")
    a(f"{name}_nomask:")
    vM = V.alloc(4, 2); vL = V.alloc(4, 2); vP = V.alloc(8, 2); vO = V.alloc(2)
    for nt in range(2):
        regs = [A_(mt, nt) + r for mt in range(2) for r in range(16)]
        m = vM + 2*nt
        a(f"v_max3_f32 {v(m)}, {v(regs[0])}, {v(regs[1])}, {v(regs[2])}")
        a(f"v_max3_f32 {v(m+1)}, {v(regs[3])}, {v(regs[4])}, {v(regs[5])}")
        k = 6; tog = 0
        while k < 32:
            a(f"v_max3_f32 {v(m+tog)}, {v(m+tog)}, {v(regs[k])}, {v(regs[k+1])}"); k += 2; tog ^= 1
        a(f"v_max_f32 {v(m)}, {v(m)}, {v(m+1)}")
        halfop(a, "v_max_f32", m, t)
        a(f"ds_write_b32 {v(vMxW)}, {v(m)} offset:{nt*128}")
    a("s_waitcnt lgkmcnt(0)")
    a("s_barrier")
    for nt in range(2): a(f"ds_read_b32 {v(vO+nt)}, {v(vMxR)} offset:{nt*128}")
    a("s_waitcnt lgkmcnt(0)")
    for nt in range(2):
        m = vM + 2*nt
        a(f"v_max_f32 {v(m)}, {v(m)}, {v(vO+nt)}")
        a(f"v_mul_f32 {v(m)}, {f2u(CSC)}, {v(m)}")
        a(f"v_sub_f32 {v(m+1)}, 0, {v(m)}")
        l = vL + 2*nt
        a(f"v_mov_b32 {v(l)}, 0"); a(f"v_mov_b32 {v(l+1)}, 0")
        for mt in range(2):
            ac = A_(mt, nt)
            for pr in range(8):
                a(f"v_pk_fma_f32 {v(ac+2*pr,2)}, {v(ac+2*pr,2)}, {s(sC,2)}, {v(m,2)} op_sel:[0,0,1] op_sel_hi:[1,1,1]")
            for r in range(16): a(f"v_exp_f32 {v(ac+r)}, {v(ac+r)}")
            for pr in range(8): a(f"v_pk_add_f32 {v(l,2)}, {v(l,2)}, {v(ac+2*pr,2)}")
            for q in range(4):
                a(f"v_cvt_pk_bf16_f32 {v(vP+2*q)}, {v(ac+4*q)}, {v(ac+4*q+1)}")
                a(f"v_cvt_pk_bf16_f32 {v(vP+2*q+1)}, {v(ac+4*q+2)}, {v(ac+4*q+3)}")
            for q in range(4):
                a(f"ds_write_b64 {v(vStg)}, {v(vP+2*q,2)} offset:{nt*32*RS + mt*64 + q*16}")
        a(f"v_add_f32 {v(l)}, {v(l)}, {v(l+1)}")
        halfop(a, "v_add_f32", l, t)
        a(f"ds_write_b32 {v(vMxW)}, {v(l)} offset:{1024 + nt*128}")
        a("s_waitcnt lgkmcnt(0)")
        if nt == 1: stamp(a, 4)
        a("s_barrier")
    a(f"s_cmp_eq_u32 {s(sWm)}, 0"); a(f"s_cbranch_scc0 {name}_noml")
    for nt in range(2): a(f"ds_read_b32 {v(vO+nt)}, {v(vMxR)} offset:{1024 + nt*128}")
    a("s_waitcnt lgkmcnt(0)")
    for nt in range(2): a(f"v_add_f32 {v(vM+2*nt+1)}, {v(vL+2*nt)}, {v(vO+nt)}")
    a(f"v_add_u32 {v(t)}, {32*64}, {v(vMo)}")
    a("s_mov_b32 exec_hi, 0")
    a(f"buffer_store_dwordx2 {v(vM,2)}, {v(vMo)}, {s(srdML,4)}, 0 offen {sf}")
    a(f"buffer_store_dwordx2 {v(vM+2,2)}, {v(t)}, {s(srdML,4)}, 0 offen {sf}")
    a("s_mov_b32 exec_hi, -1")
    a(f"{name}_noml:")
    sR0 = S.alloc()
    a(f"s_lshr_b32 s99, {s(SW)}, 2"); a("s_lshl_b32 s99, s99, 6"); a(f"s_and_b32 {s(sR0)}, {s(SW)}, 3"); a(f"s_lshl_b32 {s(sR0)}, {s(sR0)}, 3")
    a(f"s_add_u32 {s(sR0)}, {s(sR0)}, s99"); a(f"s_add_u32 {s(sR0)}, {s(sR0)}, 32")
    store_rows(a, V, vlane, SW, t, 256, RS, 0, 8, P_LD, srdP, sBase, frb, 8, sT, sf=sf, s_row0=sR0)
    stamp(a, 5); finish(a, 1, t, 0)
    a(f"{name}_loader:"); loader_start(a)
    V = Regs(1, 252, "v"); S = Regs(52, 72, "s")
    vlane = V.alloc(); t = V.alloc(8, 4)
    opK, opQ = mkops(V, S, 'l'); sKc = S.alloc(); sR = S.alloc(); sT = S.alloc()
    a(f"v_and_b32 {v(vlane)}, 63, v0")
    a(f"s_lshl_b32 {s(sR)}, {s(sTs)}, 7"); opK.setup_dma(a, vlane, SL, t, Y_LD, srowbase=sR)
    a(f"s_lshl_b32 {s(sR)}, {s(sTq)}, 7"); opQ.setup_dma(a, vlane, SL, t, Y_LD, srowbase=sR)
    def ksets(): return [f"s_lshl_b32 {s(opQ.s_k)}, {s(sKc)}, 7", f"s_add_u32 {s(opK.s_k)}, {s(opQ.s_k)}, 1024"]
    def kadv(): return [f"s_add_u32 {s(sKc)}, {s(sKc)}, 1\ns_and_b32 {s(sKc)}, {s(sKc)}, 7\n" + "\n".join(ksets())]
    a(f"s_mov_b32 {s(sKc)}, {s(sC0)}")
    for l in ksets(): a(l)
    a("s_waitcnt lgkmcnt(0)")
    y_srd(a)
    stamp(a, 1)
    gate(a, 1, True, t); stamp(a, 2)
    vm = Vm()
    def dma(so): return opK.dma(srdY, so) + opQ.dma(srdY, so)
    bg = {0: [lambda a: (srd_from(a, srdP, 30, P_BYTES, O_P), touch(a, vm, t, srdP, sBase, 128*P_LD))]}
    if gcore.CODEPF: bg[1] = [lambda a: code_prefetch(a, "k2_kernel", "k3_exit", 33, SL, 255, 254)]
    bg[n-1] = [lambda a: l2_prefetch(a, vm, t, [(40, SIZES[WMO]), (48, SIZES[DWM])])]
    emit_loader(a, vm, n, NS, slot, dma, 8, kadv, bg=bg, npre=2, lag=(1 if DEP > 1 else 0))
    stamp(a, 3)
    buf = V.alloc(32, 4)
    sR0 = S.alloc()
    a("s_barrier")
    a("s_barrier")
    a(f"s_lshr_b32 s99, {s(SL)}, 1"); a("s_lshl_b32 s99, s99, 6"); a(f"s_and_b32 {s(sR0)}, {s(SL)}, 1"); a(f"s_lshl_b32 {s(sR0)}, {s(sR0)}, 4")
    a(f"s_add_u32 {s(sR0)}, {s(sR0)}, s99")
    store_rows(a, V, vlane, SW, t, 256, RS, 0, 16, P_LD, srdP, sBase, buf, 8, sT, sf=sf, s_row0=sR0)
    a("s_barrier")
    a(f"s_lshr_b32 s99, {s(SW)}, 2"); a("s_lshl_b32 s99, s99, 6"); a(f"s_and_b32 {s(sR0)}, {s(SW)}, 3"); a(f"s_lshl_b32 {s(sR0)}, {s(sR0)}, 3")
    a(f"s_add_u32 {s(sR0)}, {s(sR0)}, s99"); a(f"s_add_u32 {s(sR0)}, {s(sR0)}, 32")
    store_rows(a, V, vlane, SW, t, 256, RS, 0, 8, P_LD, srdP, sBase, buf, 8, sT, sf=sf, s_row0=sR0)
    finish(a, 1, t, 4)
    return lds_total

def k2_V(a, sf):
    name = "k2V"
    DEP = OPT.get("k2vd", 2)
    NS = OPT.get("k2vns", 4); n = 8
    RS = 272
    slot = 128*128 + 64*128
    GT = NS*slot; TB = GT + 64*384; OUT = TB + TB_BYTES; ST = OUT; STG = 0
    lds_total = OUT + 128*128
    sB, sTc, sTs, sC0, sT0, sT, sBase = 21, 22, 23, 24, 26, 27, 28
    srdY, srdWo, srdVT, srdGS, srdDW, srdZ = 8, 44, 48, 52, 56, 60
    a(f"s_lshl_b32 {s(sT0)}, {s(sTs)}, 7")
    a(f"s_lshl_b32 {s(sT)}, {s(sTc)}, 7")
    a(f"s_lshl_b32 s99, {s(sB)}, 9"); a(f"s_lshl_b32 s98, {s(sTc)}, 6"); a(f"s_add_u32 s99, s99, s98")
    a(f"s_mul_i32 {s(sBase)}, s99, {VT_LD}"); a(f"s_lshl_b32 s98, {s(sTs)}, 8"); a(f"s_add_u32 {s(sBase)}, {s(sBase)}, s98")
    role_split(a, name)
    def mkops(V, S, role):
        opV = OpK(128, 0); opW = OpT(64, opV.bytes)
        opV.alloc(V, S, NS, role=role); opW.alloc(V, S, NS, 1, role=role)
        return opV, opW
    def zpass(a, V, t, op, vU, vGc):
        vA = t+4; vB = t+6
        op.reads(a, vGc)
        a("s_waitcnt lgkmcnt(0)")
        for i in range(2):
            for d in range(4):
                g_, u_ = vGc+4*i+d, vU+4*i+d
                a(f"v_lshlrev_b32 {v(vA)}, 16, {v(g_)}")
                a(f"v_and_b32 {v(vA+1)}, 0xffff0000, {v(g_)}")
                a(f"v_lshlrev_b32 {v(vB)}, 16, {v(u_)}")
                a(f"v_and_b32 {v(vB+1)}, 0xffff0000, {v(u_)}")
                a(f"v_pk_mul_f32 {v(vA,2)}, {v(vA,2)}, {v(vB,2)}")
                a(f"v_cvt_pk_bf16_f32 {v(g_)}, {v(vA)}, {v(vA+1)}")
            a(f"buffer_store_dwordx4 {v(vGc+4*i,4)}, {v(op.vZo[i])}, {s(srdZ,4)}, 0 offen {sf}")
    def uload(a, V, t):
        vU = V.alloc(8, 4)
        a(f"v_lshrrev_b32 {v(t)}, 3, v0")
        a(f"v_add_u32 {v(t)}, {s(sT0)}, {v(t)}")
        a(f"v_mul_u32_u24 {v(t)}, {Y_LD}, {v(t)}")
        a(f"v_and_b32 {v(t+1)}, 7, v0")
        a(f"v_lshl_add_u32 {v(t)}, {v(t+1)}, 4, {v(t)}")
        a(f"s_add_u32 s99, {s(sT)}, 3072")
        a(f"v_add_u32 {v(t)}, s99, {v(t)}")
        for i in range(2):
            a(f"s_mov_b32 s99, {64*i*Y_LD}")
            a(f"buffer_load_dwordx4 {v(vU+4*i,4)}, {v(t)}, {s(srdY,4)}, s99 offen")
        return vU
    def z_srd(a): batch_srd(a, srdZ, sB, O_Z, 1000*Z_LD, 1000*Z_LD)
    V = Regs(1, 252, "v"); S = Regs(64, 72, "s")
    vlane = V.alloc(); t = V.alloc(8, 4)
    opV, opW = mkops(V, S, 'c')
    acc = V.alloc(32, 4); frb = V.alloc(max(32, 12*(DEP+1)), 4); fr = [frb+12*k for k in range(DEP+1)]
    A_ = lambda mt: acc + mt*16
    sWm = S.alloc(); sWn = S.alloc(); sTmp = S.alloc()
    a(f"v_and_b32 {v(vlane)}, 63, v0")
    a(f"s_and_b32 {s(sWm)}, {s(SW)}, 1"); a(f"s_lshr_b32 {s(sWn)}, {s(SW)}, 1")
    vrowV = V.alloc(); vStg = V.alloc()
    a(f"v_and_b32 {v(t)}, 31, {v(vlane)}")
    a(f"s_lshl_b32 s99, {s(sWm)}, 6"); a(f"v_add_u32 {v(vrowV)}, s99, {v(t)}")
    opV.setup_read(a, vlane, t, 0, vrowV, slot); opW.setup_read(a, vlane, t, sWn, slot)
    a(f"v_and_b32 {v(t)}, 31, {v(vlane)}")
    a(f"s_lshl_b32 s99, {s(sWn)}, 5"); a(f"v_add_u32 {v(t)}, s99, {v(t)}")
    a(f"v_mul_u32_u24 {v(vStg)}, {RS}, {v(t)}")
    a(f"v_lshrrev_b32 {v(t)}, 5, {v(vlane)}")
    a(f"v_lshl_add_u32 {v(vStg)}, {v(t)}, 3, {v(vStg)}")
    a(f"s_lshl_b32 s99, {s(sWm)}, 7"); a(f"s_add_u32 s99, s99, {STG}"); a(f"v_add_u32 {v(vStg)}, s99, {v(vStg)}")
    op = OutPass(V, 128)
    blk = V.alloc(104, 4)
    vGSd = blk; vTap = blk+16; vG = blk+24; vAB = blk+44; vX = blk+84; vPk = blk+92; vz = blk+96
    vGo = V.alloc(); vValid = V.alloc(); vW = [V.alloc(), V.alloc()]; vSt = V.alloc(); bt = V.alloc(6, 2)
    cvC = Conv(Overlay(V, blk, blk+104), GT, 384, TB, OUT, residual=False, nch=8, nsets=4)
    vGSo = V.alloc()
    a(f"s_sub_u32 s99, {s(sT0)}, 16"); a(f"v_add_u32 {v(t)}, s99, v0")
    a(f"v_max_i32 {v(t+1)}, 0, {v(t)}"); a(f"v_min_i32 {v(t+1)}, 999, {v(t+1)}")
    a(f"s_mul_i32 s99, {s(sB)}, 1000"); a(f"v_add_u32 {v(t+1)}, s99, {v(t+1)}")
    a(f"v_lshlrev_b32 {v(vGSo)}, 3, {v(t+1)}")
    a(f"v_cmp_gt_u32 vcc, 1000, {v(t)}")
    a(f"v_mov_b32 {v(t+2)}, 0"); a(f"v_mov_b32 {v(t+3)}, 1.0")
    a(f"v_cndmask_b32 {v(vValid)}, {v(t+2)}, {v(t+3)}, vcc")
    a(f"v_lshrrev_b32 {v(t)}, 5, {v(vlane)}"); a(f"v_lshlrev_b32 {v(t)}, 2, {v(t)}")
    a(f"s_lshl_b32 s99, {s(SW)}, 3"); a(f"s_add_u32 s99, s99, {s(sT0)}"); a(f"s_sub_u32 s99, s99, 16")
    a(f"v_add_u32 {v(t)}, s99, {v(t)}")
    a(f"v_mul_i32_i24 {v(t)}, {Y_LD}, {v(t)}")
    a(f"v_and_b32 {v(t+1)}, 31, {v(vlane)}"); a(f"v_lshl_add_u32 {v(t)}, {v(t+1)}, 2, {v(t)}")
    a(f"s_add_u32 s99, {s(sT)}, 4096"); a(f"v_add_u32 {v(vGo)}, s99, {v(t)}")
    a(f"v_lshrrev_b32 {v(t)}, 5, {v(vlane)}")
    a(f"s_lshl_b32 s99, {s(SW)}, 6"); a(f"v_lshl_add_u32 {v(vSt)}, {v(t)}, 5, s99"); a(f"v_add_u32 {v(vSt)}, {ST}, {v(vSt)}")
    a(f"v_and_b32 {v(t+1)}, 31, {v(vlane)}"); a(f"v_and_b32 {v(t+2)}, 7, {v(t+1)}")
    a(f"v_xor_b32 {v(t+2)}, {s(SW)}, {v(t+2)}")
    a(f"v_mul_u32_u24 {v(t+1)}, 768, {v(t+1)}"); a(f"v_lshl_add_u32 {v(t+1)}, {v(t)}, 3, {v(t+1)}")
    a(f"v_add_u32 {v(t+1)}, {GT}, {v(t+1)}")
    a(f"v_lshl_add_u32 {v(vW[0])}, {v(t+2)}, 4, {v(t+1)}")
    a(f"v_xor_b32 {v(t+2)}, 4, {v(t+2)}"); a(f"v_lshl_add_u32 {v(vW[1])}, {v(t+2)}, 4, {v(t+1)}")
    a("s_waitcnt lgkmcnt(0)")
    y_srd(a); srd_from(a, srdGS, 30, GS_BYTES, O_GS); srd_from(a, srdDW, 6, SIZES[DWC])
    gate(a, 1, False, t)
    for k in range(8):
        a(f"s_mov_b32 s99, {k*16384}")
        a(f"buffer_load_dwordx2 {v(vGSd+2*k,2)}, {v(vGSo)}, {s(srdGS,4)}, s99 offen")
    srd_from(a, srdVT, 30, VT_BYTES, O_VT); z_srd(a)
    stamp(a, 1)
    extra = {}
    r = Rec()
    taps_load(r, 0, bt, vTap, srdDW, sT, 1024)
    for gi in range(5):
        for r_ in range(4):
            r(f"v_add_u32 {v(bt)}, {(32*gi + r_)*Y_LD}, {v(vGo)}\nbuffer_load_dword {v(vG+4*gi+r_)}, {v(bt)}, {s(srdY,4)}, 0 offen")
    vU = V.alloc(8, 4)
    r(f"v_lshrrev_b32 {v(bt)}, 3, v0"); r(f"v_add_u32 {v(bt)}, {s(sT0)}, {v(bt)}"); r(f"v_mul_u32_u24 {v(bt)}, {Y_LD}, {v(bt)}")
    r(f"v_and_b32 {v(bt+1)}, 7, v0"); r(f"v_lshl_add_u32 {v(bt)}, {v(bt+1)}, 4, {v(bt)}")
    r(f"s_add_u32 s99, {s(sT)}, 3072\nv_add_u32 {v(bt)}, s99, {v(bt)}")
    for i_ in range(2):
        r(f"s_mov_b32 s99, {64*i_*Y_LD}\nbuffer_load_dwordx4 {v(vU+4*i_,4)}, {v(bt)}, {s(srdY,4)}, s99 offen")
    zero_lds(r, 0, vz, GT, 64*384 + TB_BYTES, bt)
    distribute(extra, r.atoms, 0, 1)
    r = Rec()
    r("s_waitcnt vmcnt(30)")
    r(f"v_add_f32 {v(bt)}, {v(vGSd)}, {v(vGSd+2)}"); r(f"v_add_f32 {v(bt+1)}, {v(vGSd+1)}, {v(vGSd+3)}")
    for k in range(2, 8):
        r(f"v_add_f32 {v(bt)}, {v(bt)}, {v(vGSd+2*k)}"); r(f"v_add_f32 {v(bt+1)}, {v(bt+1)}, {v(vGSd+2*k+1)}")
    r(f"v_mul_f32 {v(bt)}, {f2u(1/512)}, {v(bt)}"); r(f"v_mul_f32 {v(bt+1)}, {f2u(1/512)}, {v(bt+1)}")
    r(f"v_fma_f32 {v(bt+1)}, -{v(bt)}, {v(bt)}, {v(bt+1)}")
    r(f"v_max_f32 {v(bt+1)}, 0, {v(bt+1)}"); r(f"v_add_f32 {v(bt+1)}, {f2u(1e-5)}, {v(bt+1)}")
    r(f"v_rsq_f32 {v(bt+2)}, {v(bt+1)}\ns_nop 0\nv_mul_f32 {v(bt+2)}, {v(bt+2)}, {v(vValid)}")
    r(f"v_mul_f32 {v(bt+3)}, -{v(bt)}, {v(bt+2)}")
    r(f"v_lshlrev_b32 {v(bt+4)}, 3, v0"); r(f"v_add_u32 {v(bt+4)}, {ST}, {v(bt+4)}")
    r(f"ds_write_b64 {v(bt+4)}, {v(bt+2,2)}")
    distribute(extra, r.atoms, 1, 2)
    r = Rec(); r("s_waitcnt vmcnt(22)"); taps_write(r, 0, bt, vTap, TB); distribute(extra, r.atoms, 2, 3)
    r = Rec()
    for gi in range(5):
        r(f"ds_read_b128 {v(vAB+8*gi,4)}, {v(vSt)} offset:{gi*256}"); r(f"ds_read_b128 {v(vAB+8*gi+4,4)}, {v(vSt)} offset:{gi*256+16}")
    distribute(extra, r.atoms, 3, 4, ks_list=(0, 1, 2))
    r = Rec()
    for gi in range(5):
        AB = vAB + 8*gi
        for r_ in range(4):
            r(f"v_lshlrev_b32 {v(vX+2*r_)}, 16, {v(vG+4*gi+r_)}"); r(f"v_and_b32 {v(vX+2*r_+1)}, 0xffff0000, {v(vG+4*gi+r_)}")
        for r_ in range(4):
            r(f"v_fma_f32 {v(vX+2*r_)}, {v(vX+2*r_)}, {v(AB+2*r_)}, {v(AB+2*r_+1)}")
            r(f"v_fma_f32 {v(vX+2*r_+1)}, {v(vX+2*r_+1)}, {v(AB+2*r_)}, {v(AB+2*r_+1)}")
        r(f"v_cvt_pk_bf16_f32 {v(vPk)}, {v(vX)}, {v(vX+2)}"); r(f"v_cvt_pk_bf16_f32 {v(vPk+1)}, {v(vX+4)}, {v(vX+6)}")
        r(f"v_cvt_pk_bf16_f32 {v(vPk+2)}, {v(vX+1)}, {v(vX+3)}"); r(f"v_cvt_pk_bf16_f32 {v(vPk+3)}, {v(vX+5)}, {v(vX+7)}")
        r(f"ds_write_b64 {v(vW[gi&1])}, {v(vPk,2)} offset:{(gi>>1)*128}")
        r(f"ds_write_b64 {v(vW[gi&1])}, {v(vPk+2,2)} offset:{(gi>>1)*128 + 384}")
    r.atoms.insert(0, "s_waitcnt vmcnt(2)")
    distribute(extra, r.atoms, 4, 7)
    r = Rec(); cvC.setup(r, vlane, SW, bt); op.setup(r, bt, OUT, sT0, sT, 10); distribute(extra, r.atoms, 7, 8)
    def reads(sl, ks, st):
        o = []
        for i in range(2): o += opV.read(fr[st]+4*i, sl, ks, tile_rows=32*i)
        o += opW.read(fr[st]+8, sl, 0, ks)
        return o
    def mfma(i, ks, st):
        return [f"{MFMA} {v(A_(mt),16)}, {v(fr[st]+4*mt,4)}, {v(fr[st]+8,4)}, " + ("0" if (i == 0 and ks == 0) else v(A_(mt),16))
                for mt in range(2)]
    emit_compute(a, n, NS, reads, mfma, extra=extra, depth=DEP)
    stamp(a, 3)
    vP = frb + 16
    a("s_nop 7"); a("s_nop 1")
    a("s_barrier")
    for mt in range(2):
        ac = A_(mt)
        for q in range(4):
            a(f"v_cvt_pk_bf16_f32 {v(vP+2*q)}, {v(ac+4*q)}, {v(ac+4*q+1)}")
            a(f"v_cvt_pk_bf16_f32 {v(vP+2*q+1)}, {v(ac+4*q+2)}, {v(ac+4*q+3)}")
        for q in range(4):
            a(f"ds_write_b64 {v(vStg)}, {v(vP+2*q,2)} offset:{mt*64 + q*16}")
    a("s_waitcnt vmcnt(0) lgkmcnt(0)")
    stamp(a, 4)
    a("s_barrier")
    store_rows(a, V, vlane, SW, t, 256, RS, STG, 8, VT_LD, srdVT, sBase, frb, 8, sTmp, sf=sf)
    cvC.emit(a, 8)
    a("s_waitcnt lgkmcnt(0)")
    a("s_barrier")
    zpass(a, V, t, op, vU, acc)
    stamp(a, 5); finish(a, 1, t, 0)
    a(f"{name}_loader:"); loader_start(a)
    V = Regs(1, 252, "v"); S = Regs(64, 72, "s")
    vlane = V.alloc(); t = V.alloc(8, 4); vl = V.alloc()
    opV, opW = mkops(V, S, 'l'); sKc = S.alloc(); sTmp = S.alloc()
    a(f"v_and_b32 {v(vlane)}, 63, v0"); a(f"v_and_b32 {v(vl)}, 255, v0")
    opV.setup_dma(a, vlane, SL, t, Y_LD, srowbase=sT0)
    opW.setup_dma(a, vlane, SL, t, 1024, colbase_s=sT)
    def ksets(): return [f"s_lshl_b32 {s(opV.s_k)}, {s(sKc)}, 7\ns_add_u32 {s(opV.s_k)}, {s(opV.s_k)}, 2048", f"s_lshl_b32 {s(opW.s_k)}, {s(sKc)}, 16"]
    def kadv(): return [f"s_add_u32 {s(sKc)}, {s(sKc)}, 1\ns_and_b32 {s(sKc)}, {s(sKc)}, 7\n" + "\n".join(ksets())]
    a(f"s_mov_b32 {s(sKc)}, {s(sC0)}")
    for l in ksets(): a(l)
    a("s_waitcnt lgkmcnt(0)")
    y_srd(a); srd_from(a, srdWo, 4, SIZES[WO])
    stamp(a, 1)
    gate(a, 1, True, t); stamp(a, 2)
    vm = Vm()
    def dma(so): return opV.dma(srdY, so) + opW.dma(srdWo, so)
    fa_blk = V.alloc(104, 4)
    cv = Conv(Overlay(V, fa_blk, fa_blk+104), GT, 384, TB, OUT, residual=False, nch=8, nsets=4)
    op = OutPass(V, 128)
    uref = {}
    def setups(a):
        cv.setup(a, vlane, SW, t); op.setup(a, t, OUT, sT0, sT, 10)
        uref['u'] = uload(a, V, t); vm.issue("u", 2)
    def tch(a):
        srd_from(a, srdVT, 30, VT_BYTES, O_VT); z_srd(a)
        touch(a, vm, t, srdVT, sBase, 64*VT_LD)
        a(f"s_lshl_b32 {s(sTmp)}, {s(sT0)}, 10")
        touch(a, vm, t, srdZ, sTmp, 128*Z_LD)
    bg = {n-2: [setups], 0: [tch]}
    if gcore.CODEPF: bg[4] = [lambda a: code_prefetch(a, "k2_kernel", "k3_exit", 33, SL, 255, 254)]
    bg[n-1] = [lambda a: l2_prefetch(a, vm, t, [(40, SIZES[WMO]), (48, SIZES[DWM])])]
    emit_loader(a, vm, n, NS, slot, dma, 6, kadv, bg=bg, lag=(1 if DEP > 1 else 0))
    stamp(a, 3)
    a(f"s_waitcnt vmcnt({vm.wait('u')})")
    a("s_barrier")
    a("s_barrier")
    buf = V.alloc(16, 4)
    store_rows(a, V, vlane, SW, t, 256, RS, STG, 8, VT_LD, srdVT, sBase, buf, 4, sTmp, sf=sf)
    cv.emit(a, 8)
    a("s_waitcnt lgkmcnt(0)")
    a("s_barrier")
    zpass(a, V, t, op, uref['u'], buf+8)
    finish(a, 1, t, 4)
    return lds_total

def k2(sf=""):
    a = Asm(); stamp(a, 0)
    a("""
    s_cmp_ge_u32 s2, 256
    s_cbranch_scc1 k2_exit
    """)
    a("k2_begin:")
    if FUSED[0]: stamp(a, 0)
    a("""
    s_load_dwordx2 s[30:31], s[0:1], 80       ; ws
    s_load_dwordx2 s[4:5], s[0:1], 16         ; w_att_out
    s_load_dwordx2 s[6:7], s[0:1], 32         ; dw_csgu
    v_lshrrev_b32 v1, 6, v0
    s_and_b32 s32, s2, 7                      ; xcd
    s_lshr_b32 s33, s2, 3                     ; li
    v_readfirstlane_b32 s20, v1               ; wave
    s_lshr_b32 s21, s32, 2                    ; b
    s_and_b32 s34, s32, 3                     ; quadrant
    s_and_b32 s35, s33, 3                     ; li&3
    s_bfe_u32 s36, s33, 0x20002               ; (li>>2)&3
    s_and_b32 s37, s34, 1
    s_lshl_b32 s37, s37, 2
    s_add_u32 s23, s37, s35
    s_lshr_b32 s37, s34, 1
    s_lshl_b32 s37, s37, 2
    s_add_u32 s22, s37, s36
    s_lshl_b32 s24, s35, 1
    s_add_u32 s24, s24, s36
    s_and_b32 s24, s24, 7                     ; c0
    """)
    if not OPT.get("k2rot"): a("s_mov_b32 s24, 0")
    if OPT.get("k2rot2"): a("s_add_u32 s24, s35, s36\ns_lshl_b32 s24, s24, 1\ns_and_b32 s24, s24, 7")
    a("""
    s_cmp_ge_u32 s33, 16
    s_cbranch_scc1 k2_typeV
    """)
    la = k2_S(a, sf)
    a("k2_typeV:")
    lb = k2_V(a, sf)
    a("k2_exit:"); a("s_endpgm")
    return ("k2_kernel", a.text(), 256, 100, None), max(la, lb)

def k1_type(a, typ, sf):
    name = f"k1{typ}"
    NE = 192 if typ == 'A' else 128
    MT = NE // 64
    DEP = OPT.get("k1d"+typ, 1 if typ == 'A' else 2)
    NS = OPT.get("k1ns"+typ, 3 if typ == 'A' else 4); n = 8
    WB = 64*NE*2
    slot = WB + 128*128
    CS = NS*slot; STAT = CS + 768
    lds_total = STAT + 1024
    RS = NE*2 + 16
    sTi, sTj, sC0, sG, sNidx, sRow0, sBase = 21, 22, 23, 36, 35, 26, 27
    srdX, srdW, srdY, srdG, srdXS, srdF = 8, 12, 16, 52, 44, 48
    ldW = 3072 if typ == 'A' else 2048
    colbase = 0 if typ == 'A' else 1536
    a(f"s_mul_i32 {s(sRow0)}, {s(sTi)}, 125")
    a(f"s_mul_i32 {s(sBase)}, {s(sRow0)}, {Y_LD}"); a(f"s_mul_i32 s99, {s(sTj)}, {NE*2}")
    a(f"s_add_u32 {s(sBase)}, {s(sBase)}, s99"); a(f"s_add_u32 {s(sBase)}, {s(sBase)}, {colbase*2}")
    role_split(a, name)
    def mkops(V, S, role):
        opW = OpT(NE, 0); opX = OpK(128, opW.bytes)
        opW.alloc(V, S, NS, MT, role=role); opX.alloc(V, S, NS, 1, role=role)
        return opW, opX
    rows_pw = 16
    class RowStats:
        def __init__(self, V):
            self.a = [V.alloc(), V.alloc()]; self.sum = V.alloc(2, 2); self.sq = V.alloc(2, 2); self.d = V.alloc(8, 4); self.u = V.alloc(8, 2); self.t = V.alloc(6, 2)
        def setup(self, a):
            t = self.t
            a(f"v_lshrrev_b32 {v(t)}, 2, v0"); a(f"v_and_b32 {v(t+1)}, 3, v0")
            a(f"v_bfe_u32 {v(t+2)}, {v(t)}, 1, 1")
            a(f"v_lshlrev_b32 {v(t+1)}, 1, {v(t+1)}"); a(f"v_xor_b32 {v(t+1)}, {v(t+1)}, {v(t+2)}")
            a(f"v_lshlrev_b32 {v(t)}, 7, {v(t)}"); a(f"v_lshl_add_u32 {v(t)}, {v(t+1)}, 4, {v(t)}")
            a(f"v_add_u32 {v(self.a[0])}, {WB}, {v(t)}"); a(f"v_xor_b32 {v(self.a[1])}, 16, {v(t)}"); a(f"v_add_u32 {v(self.a[1])}, {WB}, {v(self.a[1])}")
            for r in (self.sum, self.sum+1, self.sq, self.sq+1): a(f"v_mov_b32 {v(r)}, 0")
        def reads(self, i):
            so = (i % NS)*slot; o = []
            for k in range(2):
                if so < 32768: o.append(f"ds_read_b128 {v(self.d+4*k,4)}, {v(self.a[k])} offset:{so}")
                else: o.append(f"v_add_u32 {v(self.t)}, {so}, {v(self.a[k])}\nds_read_b128 {v(self.d+4*k,4)}, {v(self.t)}")
            return o
        def math(self):
            o = []
            for k in range(2):
                for d in range(4):
                    r = self.d + 4*k + d; lo = self.u + 2*d
                    o += [f"v_lshlrev_b32 {v(lo)}, 16, {v(r)}", f"v_and_b32 {v(lo+1)}, 0xffff0000, {v(r)}"]
                for d in range(4):
                    lo = self.u + 2*d
                    o += [f"v_add_f32 {v(self.sum)}, {v(self.sum)}, {v(lo)}", f"v_add_f32 {v(self.sum+1)}, {v(self.sum+1)}, {v(lo+1)}",
                          f"v_fmac_f32 {v(self.sq)}, {v(lo)}, {v(lo)}", f"v_fmac_f32 {v(self.sq+1)}, {v(lo+1)}, {v(lo+1)}"]
            return o
        def final(self):
            t = self.t; o = []
            o += [f"v_add_f32 {v(t)}, {v(self.sum)}, {v(self.sum+1)}", f"v_add_f32 {v(t+1)}, {v(self.sq)}, {v(self.sq+1)}"]
            for dpp in ("quad_perm:[1,0,3,2]", "quad_perm:[2,3,0,1]"):
                o += [f"s_nop 1\nv_add_f32_dpp {v(t)}, {v(t)}, {v(t)} {dpp} row_mask:0xf bank_mask:0xf\nv_add_f32_dpp {v(t+1)}, {v(t+1)}, {v(t+1)} {dpp} row_mask:0xf bank_mask:0xf"]
            o += [f"v_mul_f32 {v(t)}, {f2u(1/512)}, {v(t)}", f"v_mul_f32 {v(t+1)}, {f2u(1/512)}, {v(t+1)}",
                  f"v_fma_f32 {v(t+1)}, -{v(t)}, {v(t)}, {v(t+1)}", f"v_max_f32 {v(t+1)}, 0, {v(t+1)}", f"v_add_f32 {v(t+1)}, {f2u(1e-5)}, {v(t+1)}",
                  f"v_rsq_f32 {v(t+2)}, {v(t+1)}\ns_nop 0\nv_mul_f32 {v(t+3)}, {v(t)}, {v(t+2)}",
                  f"v_lshrrev_b32 {v(t+4)}, 2, v0", f"v_lshlrev_b32 {v(t+4)}, 3, {v(t+4)}", f"v_add_u32 {v(t+4)}, {STAT}, {v(t+4)}",
                  f"ds_write_b64 {v(t+4)}, {v(t+2,2)}"]
            return o
    V = Regs(1, 252, "v"); S = Regs(56, 72, "s")
    vlane = V.alloc(); t = V.alloc(8, 4)
    opW, opX = mkops(V, S, 'c')
    acc = V.alloc(MT*2*16, 4); frb = V.alloc(max(4*(DEP+1)*(MT+2), 16*MT, 32), 4); fr = [frb + 4*(MT+2)*k for k in range(DEP+1)]
    fW = lambda st, mt: fr[st] + 4*mt
    fX = lambda st, nt: fr[st] + 4*MT + 4*nt
    A_ = lambda mt, nt: acc + (mt*2 + nt)*16
    sWm = S.alloc(); sWn = S.alloc(); sSeg = S.alloc(); sT = S.alloc(); sCol = S.alloc()
    a(f"v_and_b32 {v(vlane)}, 63, v0")
    a(f"s_and_b32 {s(sWm)}, {s(SW)}, 1"); a(f"s_lshr_b32 {s(sWn)}, {s(SW)}, 1")
    a(f"s_mul_i32 {s(sSeg)}, {s(sWm)}, {MT}")
    opW.setup_read(a, vlane, t, sSeg, slot)
    vrow = V.alloc()
    a(f"v_and_b32 {v(t)}, 31, {v(vlane)}")
    a(f"s_lshl_b32 s99, {s(sWn)}, 6"); a(f"v_add_u32 {v(vrow)}, s99, {v(t)}")
    opX.setup_read(a, vlane, t, 0, vrow, slot)
    rsC = RowStats(V); rsC.setup(a)
    vCsA = V.alloc(); vStA = V.alloc(); vStg = V.alloc()
    a(f"v_lshrrev_b32 {v(t)}, 5, {v(vlane)}")
    a(f"v_lshlrev_b32 {v(vCsA)}, 4, {v(t)}")
    a(f"s_mul_i32 s99, {s(sWm)}, {NE*2}"); a(f"s_add_u32 s99, s99, {CS}"); a(f"v_add_u32 {v(vCsA)}, s99, {v(vCsA)}")
    a(f"v_lshlrev_b32 {v(vStA)}, 3, {v(vrow)}"); a(f"v_add_u32 {v(vStA)}, {STAT}, {v(vStA)}")
    a(f"v_mul_u32_u24 {v(vStg)}, {RS}, {v(vrow)}")
    a(f"v_lshl_add_u32 {v(vStg)}, {v(t)}, 3, {v(vStg)}")
    a(f"s_mul_i32 s99, {s(sWm)}, {NE}"); a(f"v_add_u32 {v(vStg)}, s99, {v(vStg)}")
    if typ == 'B':
        sC = S.alloc(2, 2); vC = V.alloc(4, 2)
        k1c = 2*0.7978845608028654*1.4426950408889634
        a(f"s_mov_b32 {s(sC)}, {f2u(1.0)}"); a(f"s_mov_b32 {s(sC+1)}, {f2u(1.0)}")
        a(f"v_mov_b32 {v(vC)}, {f2u(-k1c*0.044715)}"); a(f"v_mov_b32 {v(vC+1)}, {f2u(-k1c*0.044715)}")
        a(f"v_mov_b32 {v(vC+2)}, {f2u(-k1c)}"); a(f"v_mov_b32 {v(vC+3)}, {f2u(-k1c)}")
        vG = [[V.alloc(2,2), V.alloc(2,2)] for _ in range(2)]
        for nt in range(2):
            for r in vG[nt]: a(f"v_mov_b32 {v(r)}, 0"); a(f"v_mov_b32 {v(r+1)}, 0")
    a("s_waitcnt lgkmcnt(0)")
    a("s_mov_b32 s30, s42"); a("s_mov_b32 s31, s43")
    srd_from(a, srdY, 30, Y_BYTES, O_Y)
    if typ == 'B': srd_from(a, srdG, 30, GS_BYTES, O_GS)
    if OPT.get("f34") and typ == 'A':
        a("s_cmp_eq_u32 s2, 0"); a(f"s_cbranch_scc0 {name}_nz34")
        a(f"s_cmp_eq_u32 {s(SW)}, 0"); a(f"s_cbranch_scc0 {name}_nz34")
        a(f"s_add_u32 s76, s30, {O_CNT}"); a("s_addc_u32 s77, s31, 0"); a("s_mov_b32 s78, 4096"); a("s_mov_b32 s79, 0x20000")
        a(f"v_lshlrev_b32 {v(t)}, 7, {v(vlane)}"); a(f"v_mov_b32 {v(t+1)}, 0")
        a("s_mov_b32 exec_hi, 0")
        a(f"buffer_store_dword {v(t+1)}, {v(t)}, s[76:79], 0 offen sc1")
        a("s_mov_b64 exec, -1")
        a(f"{name}_nz34:")
    if FUSED[0] and typ == 'A':
        a("s_cmp_eq_u32 s2, 0"); a(f"s_cbranch_scc0 {name}_nz")
        a(f"s_cmp_eq_u32 {s(SW)}, 0"); a(f"s_cbranch_scc0 {name}_nz")
        a(f"s_add_u32 s76, s30, {O_BAR}"); a("s_addc_u32 s77, s31, 0"); a("s_mov_b32 s78, 4096"); a("s_mov_b32 s79, 0x20000")
        a(f"v_lshlrev_b32 {v(t)}, 7, {v(vlane)}"); a(f"v_mov_b32 {v(t+1)}, 0")
        a("s_mov_b32 exec_hi, 0")
        a(f"buffer_store_dword {v(t+1)}, {v(t)}, s[76:79], 0 offen sc1")
        a("s_mov_b64 exec, -1")
        a(f"{name}_nz:")
    stamp(a, 1)
    def reads(sl, ks, st):
        o = []
        for nt in range(2): o += opX.read(fX(st, nt), sl, ks, tile_rows=32*nt)
        for mt in range(MT): o += opW.read(fW(st, mt), sl, mt, ks)
        return o
    def mfma(i, ks, st):
        if OPT.get("nomfma"): return ["s_nop 0"]*(2*MT)
        return [f"{MFMA} {v(A_(mt,nt),16)}, {v(fW(st,mt),4)}, {v(fX(st,nt),4)}, " + ("0" if (i == 0 and ks == 0) else v(A_(mt,nt),16))
                for mt in range(MT) for nt in range(2)]
    extra = {}
    for i in range(n):
        extra[(i, 0)] = rsC.reads(i)
        for k_, p_ in enumerate(split(rsC.math(), 3)): extra[(i, k_+1)] = p_
    emit_compute(a, n, NS, reads, mfma, extra=extra, depth=DEP)
    for l in rsC.final(): a(l)
    stamp(a, 3)
    a("s_nop 7"); a("s_nop 3")
    a(f"s_cmp_eq_u32 {s(sWn)}, 1"); a(f"s_cbranch_scc0 {name}_nocs")
    a(f"s_mov_b32 exec_lo, {1<<29}"); a(f"s_mov_b32 exec_hi, {1<<29}")
    for mt in range(MT):
        for q in range(4): a(f"ds_write_b128 {v(vCsA)}, {v(A_(mt,1)+4*q,4)} offset:{mt*128+q*32}")
    a("s_mov_b64 exec, -1")
    a(f"{name}_nocs:")
    a("s_waitcnt lgkmcnt(0)")
    a("s_barrier")
    stamp(a, 2)
    vCS = frb; vXS = [V.alloc(2, 2), V.alloc(2, 2)]
    for nt in range(2): a(f"ds_read_b64 {v(vXS[nt],2)}, {v(vStA)} offset:{nt*256}")
    for mt in range(MT):
        for q in range(4): a(f"ds_read_b128 {v(vCS+16*mt+4*q,4)}, {v(vCsA)} offset:{mt*128+q*32}")
    vT = V.alloc(16, 2); vP = V.alloc(8, 2)
    a("s_waitcnt lgkmcnt(0)")
    sR0 = S.alloc()
    for nt in range(2):
        for mt in range(MT):
            ac = A_(mt, nt)
            P_ = range(8); R_ = lambda pr: ac + 2*pr; T_ = lambda pr: vT + 2*pr
            for pr in P_: a(f"v_pk_mul_f32 {v(T_(pr),2)}, {v(vCS+16*mt+2*pr,2)}, {v(vXS[nt],2)} op_sel:[0,1] op_sel_hi:[1,1]")
            for pr in P_: a(f"v_pk_fma_f32 {v(R_(pr),2)}, {v(R_(pr),2)}, {v(vXS[nt],2)}, {v(T_(pr),2)} op_sel_hi:[1,0,1] neg_lo:[0,0,1] neg_hi:[0,0,1]")
            if typ == 'B':
                for pr in P_: a(f"v_pk_mul_f32 {v(T_(pr),2)}, {v(R_(pr),2)}, {v(R_(pr),2)}")
                for pr in P_: a(f"v_pk_fma_f32 {v(T_(pr),2)}, {v(T_(pr),2)}, {v(vC,2)}, {v(vC+2,2)}")
                for pr in P_: a(f"v_pk_mul_f32 {v(T_(pr),2)}, {v(T_(pr),2)}, {v(R_(pr),2)}")
                for pr in P_: a(f"v_exp_f32 {v(T_(pr))}, {v(T_(pr))}"); a(f"v_exp_f32 {v(T_(pr)+1)}, {v(T_(pr)+1)}")
                for pr in P_: a(f"v_pk_add_f32 {v(T_(pr),2)}, {v(T_(pr),2)}, {s(sC,2)}")
                for pr in P_: a(f"v_rcp_f32 {v(T_(pr))}, {v(T_(pr))}"); a(f"v_rcp_f32 {v(T_(pr)+1)}, {v(T_(pr)+1)}")
                for pr in P_: a(f"v_pk_mul_f32 {v(R_(pr),2)}, {v(R_(pr),2)}, {v(T_(pr),2)}")
                for pr in P_:
                    a(f"v_pk_add_f32 {v(vG[nt][0],2)}, {v(vG[nt][0],2)}, {v(R_(pr),2)}")
                    a(f"v_pk_fma_f32 {v(vG[nt][1],2)}, {v(R_(pr),2)}, {v(R_(pr),2)}, {v(vG[nt][1],2)}")
            for q in range(4):
                a(f"v_cvt_pk_bf16_f32 {v(vP+2*q)}, {v(ac+4*q)}, {v(ac+4*q+1)}")
                a(f"v_cvt_pk_bf16_f32 {v(vP+2*q+1)}, {v(ac+4*q+2)}, {v(ac+4*q+3)}")
            for q in range(4):
                a(f"ds_write_b64 {v(vStg)}, {v(vP+2*q,2)} offset:{nt*32*RS + mt*64 + q*16}")
        a("s_waitcnt lgkmcnt(0)")
        if nt == 1: stamp(a, 4)
        a("s_barrier")
    a(f"s_lshr_b32 s99, {s(SW)}, 2"); a("s_lshl_b32 s99, s99, 6"); a(f"s_and_b32 {s(sR0)}, {s(SW)}, 3"); a(f"s_lshl_b32 {s(sR0)}, {s(sR0)}, 3")
    a(f"s_add_u32 {s(sR0)}, {s(sR0)}, s99"); a(f"s_add_u32 {s(sR0)}, {s(sR0)}, 32")
    store_rows(a, V, vlane, SW, t, NE*2, RS, 0, 8, Y_LD, srdY, sBase, frb, 8, sT, rowlimit=125, sf=sf, s_row0=sR0, maxrow=120)
    if typ == 'B':
        a(f"s_cmp_ge_u32 {s(sTj)}, 4"); a(f"s_cbranch_scc0 {name}_end")
        a(f"s_sub_u32 s99, {s(sTj)}, 4"); a(f"s_lshl_b32 s99, s99, 1"); a(f"s_add_u32 s99, s99, {s(sWm)}")
        a(f"s_lshl_b32 {s(sCol)}, s99, 14")
        for nt in range(2):
            a(f"v_add_f32 {v(t)}, {v(vG[nt][0])}, {v(vG[nt][0]+1)}")
            a(f"v_add_f32 {v(t+1)}, {v(vG[nt][1])}, {v(vG[nt][1]+1)}")
            halfop(a, "v_add_f32", t, t+2); halfop(a, "v_add_f32", t+1, t+3)
            a(f"v_add_u32 {v(t+5)}, {32*nt}, {v(vrow)}")
            a(f"v_add_u32 {v(t+4)}, {s(sRow0)}, {v(t+5)}")
            a(f"v_lshlrev_b32 {v(t+4)}, 3, {v(t+4)}")
            a(f"v_cmp_gt_u32 vcc, 125, {v(t+5)}")
            a(f"v_mov_b32 {v(t+6)}, 0x80000000"); a("s_nop 0")
            a(f"v_cndmask_b32 {v(t+4)}, {v(t+6)}, {v(t+4)}, vcc")
            a("s_mov_b32 exec_hi, 0")
            a(f"buffer_store_dwordx2 {v(t,2)}, {v(t+4)}, {s(srdG,4)}, {s(sCol)} offen {sf}")
            a("s_mov_b32 exec_hi, -1"); a("s_nop 1")
    a(f"{name}_end:")
    stamp(a, 5); finish(a, 0, t, 0)
    a(f"{name}_loader:"); loader_start(a)
    V = Regs(1, 252, "v"); S = Regs(56, 72, "s")
    vlane = V.alloc(); t = V.alloc(8, 4)
    opW, opX = mkops(V, S, 'l')
    sMask = S.alloc(2, 2); sKc = S.alloc(); sCol = S.alloc(); sT = S.alloc(); sFo = S.alloc()
    a(f"v_and_b32 {v(vlane)}, 63, v0")
    opX.setup_dma(a, vlane, SL, t, 1024, srowbase=sRow0)
    a(f"s_mul_i32 {s(sCol)}, {s(sTj)}, {NE*2}")
    opW.setup_dma(a, vlane, SL, t, ldW, colbase_s=sCol)
    a(f"s_cmp_eq_u32 {s(SL)}, 3")
    a(f"s_cselect_b32 {s(sMask)}, 0xffffffff, 0xffffffff"); a(f"s_cselect_b32 {s(sMask+1)}, 0xff, 0xffffffff")
    def ksets(): return [f"s_mul_i32 {s(opW.s_k)}, {s(sKc)}, {64*ldW}", f"s_lshl_b32 {s(opX.s_k)}, {s(sKc)}, 7"]
    def kadv(): return [f"s_add_u32 {s(sKc)}, {s(sKc)}, 1\ns_and_b32 {s(sKc)}, {s(sKc)}, 7\n" + "\n".join(ksets())]
    a(f"s_mov_b32 {s(sKc)}, {s(sC0)}")
    for l in ksets(): a(l)
    a(f"v_mov_b32 {v(t+4)}, 0x3f803f80")
    for k in range(1, 4): a(f"v_mov_b32 {v(t+4+k)}, 0x3f803f80")
    a(f"v_lshlrev_b32 {v(t)}, 4, {v(vlane)}")
    a("s_mov_b64 exec, 0xffffff")
    for sl in range(NS):
        a(f"v_add_u32 {v(t+1)}, {sl*slot + WB + 125*128}, {v(t)}")
        a(f"ds_write_b128 {v(t+1)}, {v(t+4,4)}")
    a("s_mov_b64 exec, -1")
    a("s_waitcnt lgkmcnt(0)")
    a("s_mov_b32 s30, s42"); a("s_mov_b32 s31, s43")
    srd_from(a, srdX, 4, SIZES[X])
    if typ == 'A': srd_from(a, srdW, 6, SIZES[WQKV])
    else: srd_from(a, srdW, 28, SIZES[WIN])
    stamp(a, 1)
    vm = Vm()
    def dma(so): return opX.dma(srdX, so, masks={3: sMask}) + opW.dma(srdW, so)
    ndma = opW.nper + opX.nper
    buf = V.alloc(32, 4)
    bg = {}
    rsL = RowStats(V)
    def pre(a):
        srd_from(a, srdY, 30, Y_BYTES, O_Y)
        touch(a, vm, t, srdY, sBase, 125*Y_LD)
        rsL.setup(a)
    def stats(i):
        def f(a):
            for l in rsL.reads(i): a(l)
            a("s_waitcnt lgkmcnt(0)")
            for l in rsL.math(): a(l)
            if i == n-1:
                for l in rsL.final(): a(l)
                a("s_waitcnt lgkmcnt(0)")
        return f
    bg[-1] = [pre]
    mix = {i: stats(i) for i in range(n)}
    if gcore.CODEPF: bg[3] = [lambda a: code_prefetch(a, "k1_kernel", "k4_exit", 33, SL, 255, 254)]
    bg[n-3] = [lambda a: l2_prefetch(a, vm, t, [(40, SIZES[WMO]), (56, SIZES[WM]), (48, SIZES[DWM])], once=True)]
    bg[n-2] = [lambda a: l2_prefetch(a, vm, t, [(16, SIZES[WO]), (32, SIZES[DWC])], once=bool(OPT.get("k1once")))]
    emit_loader(a, vm, n, NS, slot, (lambda so: [] ) if OPT.get('nodma') else dma, ndma, kadv, bg=bg, mix=mix, npre=OPT.get('npre', 2), lag=(1 if DEP > 1 else 0))
    stamp(a, 3)
    sR0 = S.alloc()
    a("s_barrier")
    a("s_barrier")
    a(f"s_lshr_b32 s99, {s(SL)}, 1"); a("s_lshl_b32 s99, s99, 6"); a(f"s_and_b32 {s(sR0)}, {s(SL)}, 1"); a(f"s_lshl_b32 {s(sR0)}, {s(sR0)}, 4")
    a(f"s_add_u32 {s(sR0)}, {s(sR0)}, s99")
    store_rows(a, V, vlane, SW, t, NE*2, RS, 0, 16, Y_LD, srdY, sBase, buf, 8, sT, sf=sf, s_row0=sR0)
    a("s_barrier")
    a(f"s_lshr_b32 s99, {s(SW)}, 2"); a("s_lshl_b32 s99, s99, 6"); a(f"s_and_b32 {s(sR0)}, {s(SW)}, 3"); a(f"s_lshl_b32 {s(sR0)}, {s(sR0)}, 3")
    a(f"s_add_u32 {s(sR0)}, {s(sR0)}, s99"); a(f"s_add_u32 {s(sR0)}, {s(sR0)}, 32")
    store_rows(a, V, vlane, SW, t, NE*2, RS, 0, 8, Y_LD, srdY, sBase, buf, 8, sT, rowlimit=125, sf=sf, s_row0=sR0, maxrow=120)
    finish(a, 0, t, 4)
    return lds_total

def k1(sf=""):
    a = Asm(); stamp(a, 0)
    a("""
    s_cmp_ge_u32 s2, 256
    s_cbranch_scc1 k1_exit
    s_load_dwordx4 s[4:7], s[0:1], 0          ; x, wqkv
    s_load_dwordx2 s[28:29], s[0:1], 24       ; win
    s_load_dwordx4 s[40:43], s[0:1], 72
    v_lshrrev_b32 v1, 6, v0
    s_and_b32 s32, s2, 7                      ; xcd
    s_lshr_b32 s33, s2, 3                     ; li
    v_readfirstlane_b32 s20, v1               ; wave
    s_and_b32 s34, s33, 7
    s_and_b32 s21, s32, 1
    s_lshl_b32 s21, s21, 3
    s_add_u32 s21, s21, s34                   ; ti
    s_lshr_b32 s35, s33, 3                    ; nidx 0..3
    s_lshl_b32 s23, s35, 1
    s_add_u32 s23, s23, s34
    s_and_b32 s23, s23, 7                     ; c0
    s_lshr_b32 s36, s32, 1                    ; g
    s_lshl_b32 s22, s36, 1
    s_and_b32 s37, s35, 1
    s_add_u32 s22, s22, s37
    """)
    if OPT.get("k1norot"): a("s_mov_b32 s23, 0")
    if OPT.get("k1rot2") == 1: a("s_and_b32 s23, s34, 1\ns_lshl_b32 s23, s23, 2")
    if OPT.get("k1rot2") == 2: a("s_and_b32 s23, s34, 3\ns_lshl_b32 s23, s23, 1")
    if OPT.get("k1rot2") == 3: a("s_and_b32 s23, s35, 1\ns_lshl_b32 s23, s23, 2")
    if OPT.get("k1rot2") == 4: a("s_lshl_b32 s23, s35, 1")
    a("""
    s_cmp_ge_u32 s35, 2
    s_cbranch_scc1 k1_typeB
    """)
    la = k1_type(a, 'A', sf)
    a("k1_typeB:")
    lb = k1_type(a, 'B', sf)
    a("k1_exit:"); a("s_endpgm")
    return ("k1_kernel", a.text(), 256, 100, None), max(la, lb)

KNAME = "standalone__conformer_family_e_branchformer__speech_kernel"
def build_fused(prof=False, sf="", sf_last="", as_list=True):
    gcore.PROF = prof; FUSED[0] = True
    A, la = k1(sf); B, lb = k2(sf); C, lc = k3(sf); D, ld = k4(sf_last)
    FUSED[0] = False
    lds = max(la, lb, lc, ld)
    body = A[1].replace("k1_kernel", KNAME) + B[1].replace("k1_kernel", KNAME) + C[1] + D[1]
    body = body.replace('"k2_kernel"', "k2_begin")
    for nm in ("k2_kernel", "k3_kernel", "k4_kernel"): body = body.replace(nm, nm[:2] + "_begin")
    if as_list:
        return make_file([(KNAME, 256, 512, lds)], [(KNAME, body, 256, 100, None)])
    t = make_file([(KNAME, 256, 512, lds)], [(KNAME, body, 256, 100, None)])
    return t.replace(f"; @launch kernel={KNAME} grid", "; @launch grid")

def build_all(prof=False, sf="", sf_last=""):
    if OPT.get("fused"): return build_fused(prof, sf, sf_last)
    gcore.PROF = prof
    FL = {0: "", 1: "sc1", 2: "nt", 3: "sc1 nt", 4: "sc0 sc1"}
    sfs = [FL[OPT[f"sf{k}"]] if f"sf{k}" in OPT else d for k, d in zip((1, 2, 3, 4), (sf, sf, sf, sf_last))]
    A, la = k1(sfs[0]); B, lb = k2(sfs[1]); C, lc = k3(sfs[2]); D, ld = k4(sfs[3])
    print("lds", la, lb, lc, ld)
    if OPT.get("f34"):
        txt, l4 = k4f(sfs[3])
        body = C[1].replace("k4_exit", "k34_end") + txt
        A = (A[0], A[1].replace("k4_exit", "k34_end"), A[2], A[3], A[4])
        body = body + "k34_end:\n    s_endpgm\n"
        return make_file([("k1_kernel",256,512,la),("k2_kernel",256,512,lb),("k3_kernel",256,512,max(lc, l4))], [A, B, ("k3_kernel", body, 256, 100, None)])
    return make_file([("k1_kernel",256,512,la),("k2_kernel",256,512,lb),("k3_kernel",256,512,lc),("k4_kernel",256,512,ld)], [A,B,C,D])
if __name__ == "__main__":
    import build, sys
    gcore.CODEPF = "nocodepf" not in sys.argv
    if "fused" in sys.argv: OPT["fused"] = 1
    sf = " ".join(x for x in sys.argv[1:] if x in ("sc1","sc0","nt"))
    open("all.s","w").write(build_all("prof" in sys.argv, sf, sf))
    build.build("all.s","all.co")
```

```python
from gcore import *
import gcore
from gemm2 import OpK, OpT, spread, split, distribute, Rec, store_rows
from gemm3 import *
from conv import *

O_Y   = 0;         Y_LD = 5120;  Y_BYTES = 2000*Y_LD
O_GS  = 0xA00000;  GS_BYTES = 8*2048*8
O_XS  = 0xA20000;  XS_BYTES = 16*128*8
O_P   = 0xB00000;  P_LD = 2048;  P_BYTES = 2*1024*P_LD
O_ML  = 0xF00000;  ML_BYTES = 2048*64
O_VT  = 0x1000000; VT_LD = 2048; VT_BYTES = 2*512*VT_LD
O_Z   = 0x1300000; Z_LD = 1024;  Z_BYTES = 2000*Z_LD
O_MC  = 0x1500000; MC_LD = 2048; MC_BYTES = 2000*MC_LD
CSC = 512**-0.5 * 1.4426950408889634
MFMA = "v_mfma_f32_32x32x16_bf16"
OPT = {}

def srd_from(a, dst, ptr, size, off=0):
    if off:
        a(f"s_add_u32 {s(dst)}, {s(ptr)}, {off}"); a(f"s_addc_u32 {s(dst+1)}, {s(ptr+1)}, 0")
    else:
        a(f"s_mov_b32 {s(dst)}, {s(ptr)}"); a(f"s_mov_b32 {s(dst+1)}, {s(ptr+1)}")
    a(f"s_mov_b32 {s(dst+2)}, {size}"); a(f"s_mov_b32 {s(dst+3)}, 0x20000")
def batch_srd(a, dst, sB, off, stride, nbytes):
    a(f"s_mul_i32 s38, {s(sB)}, {stride}")
    a(f"s_add_u32 s{dst}, s30, s38"); a(f"s_addc_u32 s{dst+1}, s31, 0")
    if off: a(f"s_add_u32 s{dst}, s{dst}, {off}"); a(f"s_addc_u32 s{dst+1}, s{dst+1}, 0")
    a(f"s_mov_b32 s{dst+2}, {nbytes}"); a(f"s_mov_b32 s{dst+3}, 0x20000")
def halfop(a, op, x, t):
    a(f"v_mov_b32 {v(t)}, {v(x)}"); a("s_nop 1")
    a(f"v_permlane32_swap_b32 {v(x)}, {v(t)}"); a("s_nop 1")
    a(f"{op} {v(x)}, {v(x)}, {v(t)}")
FUSED = [False]
O_BAR = 0x2F00000
NEXT = {0: "k2_begin", 1: "k3_begin", 2: "k4_begin"}
O_CNT = 0x2F10000
def finish(a, kidx, vt, who, arr=None):
    if gcore.PROF:
        a("s_waitcnt vmcnt(0)"); stamp(a, 6)
        gcore.prof_flush(a, 30, kidx, 7, vt, who)
        if who >= 4: gcore.trace_flush(a, 30, kidx, who, vt)
    if OPT.get("f34") and kidx == 2:
        sB_, sT0_, span = arr
        a("s_waitcnt vmcnt(0) lgkmcnt(0)")
        a("s_barrier")
        if who == 0:
            lab = f".Larr34_{len(a.lines)}"
            a(f"s_cmp_eq_u32 s20, 0"); a(f"s_cbranch_scc0 {lab}")
            a(f"s_add_u32 s76, s30, {O_CNT}"); a("s_addc_u32 s77, s31, 0"); a("s_mov_b32 s78, 4096"); a("s_mov_b32 s79, 0x20000")
            a(f"s_lshr_b32 s98, {s(sT0_)}, 6")
            a(f"s_add_u32 s99, {s(sT0_)}, {span-1}"); a("s_lshr_b32 s99, s99, 6"); a("s_min_u32 s99, s99, 15")
            a(f"v_and_b32 {v(vt)}, 63, v0"); a(f"v_add_u32 {v(vt)}, s98, {v(vt)}")
            a(f"v_cmp_ge_u32 vcc, s99, {v(vt)}")
            a(f"s_lshl_b32 s98, {s(sB_)}, 4"); a(f"v_add_u32 {v(vt)}, s98, {v(vt)}"); a(f"v_lshlrev_b32 {v(vt)}, 7, {v(vt)}")
            a(f"v_mov_b32 {v(vt+1)}, 1")
            a("s_and_saveexec_b64 s[72:73], vcc")
            a(f"buffer_atomic_add {v(vt+1)}, {v(vt)}, s[76:79], 0 offen sc1")
            a("s_mov_b64 exec, s[72:73]")
            a(f"{lab}:")
        a("s_branch k4_begin")
        return
    if FUSED[0] and kidx < 3:
        a("s_waitcnt vmcnt(0) lgkmcnt(0)")
        a("s_barrier")
        if who == 0:
            lab = f".Larr_{kidx}_{len(a.lines)}"
            a(f"s_cmp_eq_u32 s20, 0"); a(f"s_cbranch_scc0 {lab}")
            if kidx == 0:
                a("s_load_dwordx2 s[76:77], s[0:1], 72"); a("s_and_b32 s98, s2, 1"); a("s_lshl_b32 s98, s98, 6")
                a("s_waitcnt lgkmcnt(0)"); a("s_mov_b32 s78, 256")
            else:
                a(f"s_add_u32 s76, s30, {O_BAR + (kidx-1)*1024}"); a("s_addc_u32 s77, s31, 0")
                a("s_and_b32 s98, s2, 7"); a("s_lshl_b32 s98, s98, 7"); a("s_mov_b32 s78, 1024")
            a("s_mov_b32 s79, 0x20000")
            a(f"v_mov_b32 {v(vt)}, s98"); a(f"v_mov_b32 {v(vt+1)}, 1")
            a("s_mov_b64 exec, 1")
            a(f"buffer_atomic_add {v(vt+1)}, {v(vt)}, s[76:79], 0 offen sc1")
            a("s_mov_b64 exec, -1")
            a(f"{lab}:")
        a(f"s_branch {NEXT[kidx]}")
    else:
        a("s_endpgm")

def gate(a, kidx, loader, vt):
    if not FUSED[0]: return
    if loader:
        lab = f".Lgate_{kidx}_{len(a.lines)}"
        a(f"s_cmp_eq_u32 s20, 4"); a(f"s_cbranch_scc0 {lab}_d")
        a("s_load_dwordx2 s[72:73], s[0:1], 72")
        a("s_mov_b32 s79, 0x20000")
        a("s_waitcnt lgkmcnt(0)")
        a("s_cmp_lt_u32 s2, 8"); a(f"s_cbranch_scc0 {lab}_m")
        if kidx == 1:
            a("s_mov_b32 s76, s72"); a("s_mov_b32 s77, s73"); a("s_mov_b32 s78, 256")
            nsh, sh, tgt = 2, 6, 128
        else:
            a(f"s_add_u32 s76, s30, {O_BAR + (kidx-2)*1024}"); a("s_addc_u32 s77, s31, 0"); a("s_mov_b32 s78, 1024")
            nsh, sh, tgt = 8, 7, 32
        a(f"v_and_b32 {v(vt)}, 63, v0"); a(f"v_lshlrev_b32 {v(vt)}, {sh}, {v(vt)}")
        a(f"s_mov_b64 exec, {(1 << nsh) - 1}")
        a("s_mov_b32 s98, 0")
        a(f"{lab}_p:")
        a(f"buffer_load_dword {v(vt+1)}, {v(vt)}, s[76:79], 0 offen sc1")
        a("s_waitcnt vmcnt(0)")
        a(f"v_cmp_eq_u32 vcc, {tgt}, {v(vt+1)}")
        a("s_add_u32 s98, s98, 1"); a("s_nop 3")
        a("s_cmp_eq_u64 vcc, exec"); a(f"s_cbranch_scc1 {lab}_o")
        a(f"s_sleep {OPT.get('slp', 2)}")
        a("s_cmp_lt_u32 s98, 0x20000"); a(f"s_cbranch_scc1 {lab}_p")
        a(f"{lab}_o:")
        rel_srd(a, kidx)
        a("s_mov_b64 exec, 1")
        a(f"v_mov_b32 {v(vt)}, s98" if False else f"s_and_b32 s98, s2, 7"); rel_off(a, kidx)
        a(f"v_mov_b32 {v(vt)}, s98"); a(f"v_mov_b32 {v(vt+1)}, 1")
        a(f"buffer_store_dword {v(vt+1)}, {v(vt)}, s[76:79], 0 offen sc1")
        a("s_mov_b64 exec, -1")
        a(f"s_branch {lab}_d")
        a(f"{lab}_m:")
        rel_srd(a, kidx)
        a("s_mov_b64 exec, 1")
        a("s_and_b32 s98, s2, 7"); rel_off(a, kidx)
        a(f"v_mov_b32 {v(vt)}, s98")
        a("s_mov_b32 s98, 0")
        a(f"{lab}_q:")
        a(f"buffer_load_dword {v(vt+1)}, {v(vt)}, s[76:79], 0 offen sc1")
        a("s_waitcnt vmcnt(0)")
        a(f"v_readfirstlane_b32 s99, {v(vt+1)}")
        a("s_add_u32 s98, s98, 1"); a("s_nop 3")
        a("s_cmp_eq_u32 s99, 1"); a(f"s_cbranch_scc1 {lab}_r")
        a(f"s_sleep {OPT.get('slp2', 4)}")
        a("s_cmp_lt_u32 s98, 0x20000"); a(f"s_cbranch_scc1 {lab}_q")
        a(f"{lab}_r:")
        a("s_mov_b64 exec, -1")
        a(f"{lab}_d:")
    a("s_barrier")
def rel_srd(a, kidx):
    if kidx == 1:
        a("s_mov_b32 s76, s72"); a("s_mov_b32 s77, s73"); a("s_mov_b32 s78, 256")
    else:
        a(f"s_add_u32 s76, s30, {O_BAR + 2048 + (kidx-2)*1024}"); a("s_addc_u32 s77, s31, 0"); a("s_mov_b32 s78, 1024")
def rel_off(a, kidx):
    if kidx == 1: a("s_lshl_b32 s98, s98, 4"); a("s_add_u32 s98, s98, 128")
    else: a("s_lshl_b32 s98, s98, 7")

SW = 20
SL = 25

class OutPass:
    def __init__(self, V, nrows):
        self.nrows = nrows; self.n = -(-nrows // 64)
        self.vRd = [V.alloc() for _ in range(self.n)]; self.vZo = [V.alloc() for _ in range(self.n)]
    def setup(self, a, t, OUT, sT0, sCol, ld_shift):
        a(f"v_lshrrev_b32 {v(t)}, 3, v0")
        a(f"v_and_b32 {v(t+1)}, 7, v0")
        a(f"v_lshrrev_b32 {v(t+2)}, 4, {v(t)}")
        a(f"v_add_u32 {v(t+3)}, {s(sT0)}, {v(t)}")
        a(f"v_lshlrev_b32 {v(t+3)}, {ld_shift}, {v(t+3)}")
        a(f"v_lshl_add_u32 {v(t+3)}, {v(t+1)}, 4, {v(t+3)}")
        a(f"v_add_u32 {v(self.vZo[0])}, {s(sCol)}, {v(t+3)}")
        for i in range(1, self.n):
            a(f"v_add_u32 {v(self.vZo[i])}, {(64*i) << ld_shift}, {v(self.vZo[0])}")
            if 64*(i+1) > self.nrows:
                a(f"v_mov_b32 {v(t+3)}, 0x80000000")
                a(f"v_cmp_gt_u32 vcc, {self.nrows - 64*i}, {v(t)}\ns_nop 1\nv_cndmask_b32 {v(self.vZo[i])}, {v(t+3)}, {v(self.vZo[i])}, vcc")
        for i in range(self.n):
            a(f"v_add_u32 {v(t+3)}, {4*i}, {v(t+2)}")
            a(f"v_and_b32 {v(t+3)}, 7, {v(t+3)}")
            a(f"v_xor_b32 {v(t+3)}, {v(t+3)}, {v(t+1)}")
            a(f"v_lshlrev_b32 {v(t+3)}, 4, {v(t+3)}")
            a(f"v_lshl_add_u32 {v(t+3)}, {v(t)}, 7, {v(t+3)}")
            a(f"v_add_u32 {v(self.vRd[i])}, {OUT + i*64*128}, {v(t+3)}")
    def reads(self, a, vD):
        for i in range(self.n): a(f"ds_read_b128 {v(vD+4*i,4)}, {v(self.vRd[i])}")
    def emit(self, a, vD, srd, sf):
        self.reads(a, vD)
        for i in range(self.n):
            a(f"s_waitcnt lgkmcnt({self.n-1-i})")
            a(f"buffer_store_dwordx4 {v(vD+4*i,4)}, {v(self.vZo[i])}, {s(srd,4)}, 0 offen {sf}")

def l2_prefetch(a, vm, t, items, once=False):
    if OPT.get("nowpf"): return
    a(f"s_lshl_b32 s98, {'s2' if once else 's33'}, 2"); a(f"s_add_u32 s98, s98, {s(SL)}"); a("s_lshl_b32 s98, s98, 13")
    a(f"v_and_b32 {v(t)}, 63, v0"); a(f"v_lshlrev_b32 {v(t)}, 7, {v(t)}"); a(f"v_add_u32 {v(t)}, s98, {v(t)}")
    for off, nb in items:
        a(f"s_load_dwordx2 s[76:77], s[0:1], {off}")
        a(f"s_mov_b32 s78, {nb}"); a("s_mov_b32 s79, 0x20000")
        a("s_waitcnt lgkmcnt(0)")
        a(f"buffer_load_dword v252, {v(t)}, s[76:79], 0 offen")
        vm.issue("pf")

def touch(a, vm, t, srd, s_base, span, nlanes=16):
    if not OPT.get("touch"): return
    step = max(128, span // nlanes) & ~3
    a(f"v_and_b32 {v(t)}, {nlanes-1}, v0"); a(f"v_mul_u32_u24 {v(t)}, {step}, {v(t)}")
    a(f"buffer_load_dword v252, {v(t)}, {s(srd,4)}, {s(s_base)} offen")
    if vm is not None: vm.issue("touch")

def role_split(a, name):
    a(f"s_and_b32 {s(SL)}, {s(SW)}, 3")
    a(f"s_cmp_ge_u32 {s(SW)}, 4")
    if OPT.get("swap"): a(f"s_cbranch_scc0 {name}_loader"); a(f"s_mov_b32 {s(SW)}, {s(SL)}")
    else: a(f"s_cbranch_scc1 {name}_loader")
def loader_start(a):
    if OPT.get("prio"): a(f"s_setprio {OPT['prio']}")

def k4(sf=""):
    a = Asm(); stamp(a, 0)
    a("""
    s_cmp_ge_u32 s2, 256
    s_cbranch_scc1 k4_exit
    """)
    a("k4_begin:")
    if FUSED[0]: stamp(a, 0)
    a("""
    s_load_dwordx2 s[30:31], s[0:1], 80       ; ws
    s_load_dwordx4 s[40:43], s[0:1], 56
    s_load_dwordx2 s[4:5], s[0:1], 0          ; x
    v_lshrrev_b32 v1, 6, v0
    s_and_b32 s32, s2, 7
    s_lshr_b32 s33, s2, 3
    v_readfirstlane_b32 s20, v1
    s_lshr_b32 s34, s33, 3
    s_lshl_b32 s21, s32, 2
    s_add_u32 s21, s21, s34
    s_and_b32 s22, s33, 7                     ; te
    s_lshl_b32 s24, s22, 1
    s_add_u32 s24, s24, s34
    s_and_b32 s24, s24, 15                    ; c0
    s_lshl_b32 s26, s21, 6
    s_lshl_b32 s27, s22, 7
    """)
    if OPT.get("rot4"): a("s_lshl_b32 s24, s22, 1\ns_lshl_b32 s35, s34, 2\ns_add_u32 s24, s24, s35\ns_and_b32 s24, s24, 15")
    if OPT.get("norot"): a("s_mov_b32 s24, 0")
    NS = OPT.get("ns", 5); n = 16
    sR, sCol, sC0 = 26, 27, 24
    srdM, srdW, srdX, srdO = 8, 12, 16, 44
    RS = 144
    def mkops(V, S, role):
        opW = OpT(64, 0); opM = OpK(64, opW.bytes)
        opW.alloc(V, S, NS, 1, role=role); opM.alloc(V, S, NS, role=role)
        return opW, opM
    def tail(a, V, S, vlane, t, buf):
        sT = S.alloc(); sBase = S.alloc()
        a("s_barrier")
        a(f"s_lshl_b32 {s(sBase)}, {s(sR)}, 10")
        a(f"s_add_u32 {s(sBase)}, {s(sBase)}, {s(sCol)}")
        store_rows(a, V, vlane, SW, t, 128, RS, 0, 8, 1024, srdO, sBase, buf, 8, sT, sf=sf)
    role_split(a, "k4")
    V = Regs(1, 252, "v"); S = Regs(52, 72, "s")
    vlane = V.alloc(); t = V.alloc(8, 4)
    opW, opM = mkops(V, S, 'c'); slot = opW.bytes + opM.bytes
    sWm = S.alloc(); sWn = S.alloc()
    acc = V.alloc(16, 4); frb = V.alloc(32, 4); fr = [frb+8*k for k in range(4)]; vXr = V.alloc(8, 2)
    a(f"v_and_b32 {v(vlane)}, 63, v0")
    a(f"s_and_b32 {s(sWm)}, {s(SW)}, 1")
    a(f"s_lshr_b32 {s(sWn)}, {s(SW)}, 1")
    vrow = V.alloc(); vXo = V.alloc(); vStg = V.alloc()
    a(f"v_and_b32 {v(t)}, 31, {v(vlane)}")
    a(f"s_lshl_b32 s99, {s(sWn)}, 5")
    a(f"v_add_u32 {v(vrow)}, s99, {v(t)}")
    opM.setup_read(a, vlane, t, 0, vrow, slot)
    opW.setup_read(a, vlane, t, sWm, slot)
    a(f"v_add_u32 {v(t)}, {s(sR)}, {v(vrow)}")
    a(f"v_lshlrev_b32 {v(t)}, 10, {v(t)}")
    a(f"v_lshrrev_b32 {v(t+1)}, 5, {v(vlane)}")
    a(f"v_lshl_add_u32 {v(t)}, {v(t+1)}, 3, {v(t)}")
    a(f"s_lshl_b32 s99, {s(sWm)}, 6"); a(f"s_add_u32 s99, s99, {s(sCol)}")
    a(f"v_add_u32 {v(vXo)}, s99, {v(t)}")
    a(f"v_mul_u32_u24 {v(vStg)}, {RS}, {v(vrow)}")
    a(f"v_lshl_add_u32 {v(vStg)}, {v(t+1)}, 3, {v(vStg)}")
    a(f"s_lshl_b32 s99, {s(sWm)}, 6"); a(f"v_add_u32 {v(vStg)}, s99, {v(vStg)}")
    a("s_waitcnt lgkmcnt(0)")
    srd_from(a, srdX, 4, SIZES[X]); srd_from(a, srdO, 42, SIZES[OUT])
    for q in range(4): a(f"buffer_load_dwordx2 {v(vXr+2*q,2)}, {v(vXo)}, {s(srdX,4)}, 0 offen offset:{16*q}")
    stamp(a, 1)
    gate(a, 3, False, t)
    def reads(sl, ks, st): return opW.read(fr[st], sl, 0, ks) + opM.read(fr[st]+4, sl, ks)
    def mfma(i, ks, st):
        if OPT.get("nomfma"): return ["s_nop 0"]
        return [f"{MFMA} {v(acc,16)}, {v(fr[st],4)}, {v(fr[st]+4,4)}, " + ("0" if (i == 0 and ks == 0) else v(acc,16))]
    DEP = OPT.get('depth', 3)
    emit_compute(a, n, NS, reads, mfma, depth=DEP)
    stamp(a, 3)
    vP = V.alloc(8, 2); vU = V.alloc(4, 2)
    a("s_waitcnt vmcnt(0)"); a("s_nop 7")
    a("s_barrier")
    for q in range(4):
        for d in range(2):
            x_ = vXr + 2*q + d; r0 = acc + 4*q + 2*d
            a(f"v_lshlrev_b32 {v(vU)}, 16, {v(x_)}")
            a(f"v_and_b32 {v(vU+1)}, 0xffff0000, {v(x_)}")
            a(f"v_pk_add_f32 {v(r0,2)}, {v(r0,2)}, {v(vU,2)}")
            a(f"v_cvt_pk_bf16_f32 {v(vP+2*q+d)}, {v(r0)}, {v(r0+1)}")
        a(f"ds_write_b64 {v(vStg)}, {v(vP+2*q,2)} offset:{q*16}")
    a("s_waitcnt lgkmcnt(0)")
    stamp(a, 4)
    tail(a, V, S, vlane, t, frb)
    stamp(a, 5); finish(a, 3, t, 0)
    a("k4_loader:"); loader_start(a)
    V = Regs(1, 252, "v"); S = Regs(52, 72, "s")
    vlane = V.alloc(); t = V.alloc(8, 4)
    opW, opM = mkops(V, S, 'l'); sKc = S.alloc()
    a(f"v_and_b32 {v(vlane)}, 63, v0")
    opM.setup_dma(a, vlane, SL, t, MC_LD, srowbase=sR)
    opW.setup_dma(a, vlane, SL, t, 1024, colbase_s=sCol)
    def ksets(): return [f"s_lshl_b32 {s(opM.s_k)}, {s(sKc)}, 7", f"s_lshl_b32 {s(opW.s_k)}, {s(sKc)}, 16"]
    def kadv(): return [f"s_add_u32 {s(sKc)}, {s(sKc)}, 1\ns_and_b32 {s(sKc)}, {s(sKc)}, 15\n" + "\n".join(ksets())]
    a(f"s_mov_b32 {s(sKc)}, {s(sC0)}")
    for l in ksets(): a(l)
    a("s_waitcnt lgkmcnt(0)")
    srd_from(a, srdM, 30, MC_BYTES, O_MC); srd_from(a, srdW, 40, SIZES[WM]); srd_from(a, srdO, 42, SIZES[OUT])
    stamp(a, 1)
    gate(a, 3, True, t); stamp(a, 2)
    if OPT.get("lat"):
        a(f"buffer_load_dword v250, {v(opM.voff[0])}, {s(srdM,4)}, {s(opM.s_k)} offen"); a("s_waitcnt vmcnt(0)"); stamp(a, 2)
        a(f"buffer_load_dword v250, {v(opW.voff[0])}, {s(srdW,4)}, {s(opW.s_k)} offen"); a("s_waitcnt vmcnt(0)"); stamp(a, 4)
        a(f"buffer_load_dword v250, {v(opM.voff[1])}, {s(srdM,4)}, {s(opM.s_k)} offen"); a("s_waitcnt vmcnt(0)"); stamp(a, 5)
    vm = Vm()
    def dma(so): return opM.dma(srdM, so) + opW.dma(srdW, so)
    bg = {}
    if gcore.CODEPF: bg[0] = [lambda a: code_prefetch(a, "k4_kernel", "k4_exit", 33, SL, 255, 254)]
    sTch = S.alloc()
    bg[1] = [lambda a: (a(f"s_lshl_b32 {s(sTch)}, {s(sR)}, 10"), touch(a, vm, t, srdO, sTch, 64*1024))]
    emit_loader(a, vm, n, NS, slot, dma, opM.nper + opW.nper, kadv, bg=bg, lag=(1 if OPT.get('depth', 3) > 1 else 0), npre=OPT.get('k4pre', 3), ahead=OPT.get('k4ahead', 3))
    stamp(a, 3)
    buf = V.alloc(32, 4)
    a("s_barrier")
    tail(a, V, S, vlane, t, buf)
    finish(a, 3, t, 4)
    a("k4_exit:"); a("s_endpgm")
    return ("k4_kernel", a.text(), 256, 100, None), NS*slot


def k4f(sf=""):
    a = Asm()
    a("k4_begin:")
    stamp(a, 0)
    a("""
    s_load_dwordx4 s[40:43], s[0:1], 56
    s_load_dwordx2 s[4:5], s[0:1], 0          ; x
    s_and_b32 s32, s2, 7
    s_lshr_b32 s33, s2, 3
    s_lshr_b32 s34, s33, 3
    s_lshl_b32 s35, s32, 2
    s_add_u32 s35, s35, s34
    s_lshr_b32 s21, s35, 4                    ; b
    s_and_b32 s23, s35, 15                    ; j
    s_and_b32 s22, s33, 7                     ; te
    s_lshl_b32 s26, s23, 6
    s_lshl_b32 s27, s22, 7
    """)
    NS = 4; n = 16
    sB, sJ, sR, sCol = 21, 23, 26, 27
    srdM, srdW, srdX, srdO = 8, 12, 16, 44
    WRES = 0; RING = 131072; RS = 144
    exp = []
    for j in range(16):
        lo, hi = 64*j, min(64*j+63, 999)
        npv = sum(1 for tt in range(11) if 96*tt <= hi and 96*tt+95 >= lo)
        nl = sum(1 for tt in range(5) if 224*tt <= hi and 224*tt+223 >= lo)
        exp.append(npv + nl)
    packed = sum(e << (4*j) for j, e in enumerate(exp))
    role_split(a, "k4f")
    def tail(a, V, S, vlane, t, buf):
        sT = S.alloc(); sBase = S.alloc()
        a("s_barrier")
        a(f"s_lshl_b32 {s(sBase)}, {s(sR)}, 10"); a(f"s_add_u32 {s(sBase)}, {s(sBase)}, {s(sCol)}")
        store_rows(a, V, vlane, SW, t, 128, RS, 0, 8, 1024, srdO, sBase, buf, 8, sT, sf=sf)
    V = Regs(1, 252, "v"); S = Regs(52, 72, "s")
    vlane = V.alloc(); t = V.alloc(8, 4)
    opW = OpT(64, WRES); opW.alloc(V, S, 2, 1, role='c')
    opM = OpK(64, RING); opM.alloc(V, S, NS, role='c')
    sWm = S.alloc(); sWn = S.alloc()
    acc = V.alloc(16, 4); frb = V.alloc(32, 4); fr = [frb+8*k for k in range(4)]; vXr = V.alloc(8, 2)
    a(f"v_and_b32 {v(vlane)}, 63, v0")
    a(f"s_and_b32 {s(sWm)}, {s(SW)}, 1"); a(f"s_lshr_b32 {s(sWn)}, {s(SW)}, 1")
    vrow = V.alloc(); vXo = V.alloc(); vStg = V.alloc()
    a(f"v_and_b32 {v(t)}, 31, {v(vlane)}"); a(f"s_lshl_b32 s99, {s(sWn)}, 5"); a(f"v_add_u32 {v(vrow)}, s99, {v(t)}")
    opM.setup_read(a, vlane, t, 0, vrow, 8192)
    opW.setup_read(a, vlane, t, sWm, 65536)
    a(f"v_add_u32 {v(t)}, {s(sR)}, {v(vrow)}"); a(f"v_lshlrev_b32 {v(t)}, 10, {v(t)}")
    a(f"v_lshrrev_b32 {v(t+1)}, 5, {v(vlane)}"); a(f"v_lshl_add_u32 {v(t)}, {v(t+1)}, 3, {v(t)}")
    a(f"s_lshl_b32 s99, {s(sWm)}, 6"); a(f"s_add_u32 s99, s99, {s(sCol)}"); a(f"v_add_u32 {v(vXo)}, s99, {v(t)}")
    a(f"v_mul_u32_u24 {v(vStg)}, {RS}, {v(vrow)}"); a(f"v_lshl_add_u32 {v(vStg)}, {v(t+1)}, 3, {v(vStg)}")
    a(f"s_lshl_b32 s99, {s(sWm)}, 6"); a(f"v_add_u32 {v(vStg)}, s99, {v(vStg)}")
    a("s_waitcnt lgkmcnt(0)")
    def xo_srd(a):
        a(f"s_mul_i32 s38, {s(sB)}, 1024000")
        a(f"s_add_u32 {s(srdX)}, s4, s38"); a(f"s_addc_u32 {s(srdX+1)}, s5, 0"); a(f"s_mov_b32 {s(srdX+2)}, 1024000"); a(f"s_mov_b32 {s(srdX+3)}, 0x20000")
        a(f"s_add_u32 {s(srdO)}, s42, s38"); a(f"s_addc_u32 {s(srdO+1)}, s43, 0"); a(f"s_mov_b32 {s(srdO+2)}, 1024000"); a(f"s_mov_b32 {s(srdO+3)}, 0x20000")
    xo_srd(a)
    for q in range(4): a(f"buffer_load_dwordx2 {v(vXr+2*q,2)}, {v(vXo)}, {s(srdX,4)}, 0 offen offset:{16*q}")
    stamp(a, 1)
    def reads(sl, ks, st, stage):
        o = opW.read(fr[st], stage >> 3, 0, ks)
        o = [x.replace(f"offset:{int(x.split('offset:')[1])}", f"offset:{int(x.split('offset:')[1]) + (stage & 7)*8192}") for x in o]
        return o + opM.read(fr[st]+4, sl, ks)
    def mfma(i, ks, st): return [f"{MFMA} {v(acc,16)}, {v(fr[st],4)}, {v(fr[st]+4,4)}, " + ("0" if (i == 0 and ks == 0) else v(acc,16))]
    a("s_barrier")
    emit_compute(a, n, NS, reads, mfma, depth=3, pass_stage=True)
    stamp(a, 3)
    vP = V.alloc(8, 2); vU = V.alloc(4, 2)
    a("s_waitcnt vmcnt(0)"); a("s_nop 7")
    a("s_barrier")
    for q in range(4):
        for d in range(2):
            x_ = vXr + 2*q + d; r0 = acc + 4*q + 2*d
            a(f"v_lshlrev_b32 {v(vU)}, 16, {v(x_)}"); a(f"v_and_b32 {v(vU+1)}, 0xffff0000, {v(x_)}")
            a(f"v_pk_add_f32 {v(r0,2)}, {v(r0,2)}, {v(vU,2)}")
            a(f"v_cvt_pk_bf16_f32 {v(vP+2*q+d)}, {v(r0)}, {v(r0+1)}")
        a(f"ds_write_b64 {v(vStg)}, {v(vP+2*q,2)} offset:{q*16}")
    a("s_waitcnt lgkmcnt(0)")
    stamp(a, 4)
    tail(a, V, S, vlane, t, frb)
    stamp(a, 5); finish(a, 3, t, 0)
    a("k4f_loader:")
    V = Regs(1, 252, "v"); S = Regs(52, 72, "s")
    vlane = V.alloc(); t = V.alloc(8, 4)
    opW = OpT(64, WRES); opW.alloc(V, S, 1, 1, role='l')
    opM = OpK(64, 0); opM.alloc(V, S, NS, role='l'); sKc = S.alloc()
    a(f"v_and_b32 {v(vlane)}, 63, v0")
    opW.setup_dma(a, vlane, SL, t, 1024, colbase_s=sCol)
    opM.setup_dma(a, vlane, SL, t, MC_LD, srowbase=sR)
    a("s_waitcnt lgkmcnt(0)")
    srd_from(a, srdW, 40, SIZES[WM])
    vm = Vm()
    for st_ in range(16):
        a(f"s_mov_b32 {s(opW.s_k)}, {st_*65536}")
        for l in opW.dma(srdW, st_*8192): a(l)
        vm.issue("w", opW.nper)
    batch_srd(a, srdM, sB, O_MC, 1000*MC_LD, 1000*MC_LD)
    xo_srd(a)
    stamp(a, 1)
    a(f"s_cmp_eq_u32 {s(SL)}, 0"); a("s_cbranch_scc0 k4f_gd")
    a(f"s_add_u32 s76, s30, {O_CNT}"); a("s_addc_u32 s77, s31, 0"); a("s_mov_b32 s78, 4096"); a("s_mov_b32 s79, 0x20000")
    a(f"s_lshl_b32 s98, {s(sB)}, 4"); a(f"s_add_u32 s98, s98, {s(sJ)}"); a("s_lshl_b32 s98, s98, 7")
    a(f"v_mov_b32 {v(t)}, s98")
    a(f"s_mov_b32 s72, {packed & 0xffffffff}"); a(f"s_mov_b32 s73, {packed >> 32}")
    a(f"s_lshl_b32 s98, {s(sJ)}, 2"); a("s_lshr_b64 s[72:73], s[72:73], s98"); a("s_and_b32 s72, s72, 15"); a("s_lshl_b32 s72, s72, 3")
    a("s_mov_b32 s98, 0")
    a("k4f_gp:")
    a(f"buffer_load_dword {v(t+1)}, {v(t)}, s[76:79], 0 offen sc1")
    a("s_waitcnt vmcnt(0)")
    a(f"v_readfirstlane_b32 s99, {v(t+1)}")
    a("s_add_u32 s98, s98, 1"); a("s_nop 3")
    a("s_cmp_eq_u32 s99, s72"); a("s_cbranch_scc1 k4f_gd")
    a(f"s_sleep {OPT.get('slp', 2)}")
    a("s_cmp_lt_u32 s98, 0x20000"); a("s_cbranch_scc1 k4f_gp")
    a("k4f_gd:")
    a("s_barrier")
    stamp(a, 2)
    def ksets(): return [f"s_lshl_b32 {s(opM.s_k)}, {s(sKc)}, 7"]
    def kadv(): return [f"s_add_u32 {s(sKc)}, {s(sKc)}, 1\n" + "\n".join(ksets())]
    a(f"s_mov_b32 {s(sKc)}, 0")
    for l in ksets(): a(l)
    def dma(so): return opM.dma(srdM, so + RING, flags="sc1" if OPT.get("dmasc1", 1) else "")
    emit_loader(a, vm, n, NS, 8192, dma, opM.nper, kadv, lag=1, npre=2, ahead=2)
    stamp(a, 3)
    buf = V.alloc(32, 4)
    a("s_barrier")
    tail(a, V, S, vlane, t, buf)
    finish(a, 3, t, 4)
    return a.text(), 163840

def k3_PV(a, sf):
    name = "k3P"
    DEP = OPT.get("k3pd", 3)
    NS = OPT.get("k3pns", 4); n = 16
    sB, sTt, sTc, sT0, sCol = 21, 22, 23, 26, 27
    srdP, srdVT, srdML, srdDW, srdMC = 8, 12, 16, 44, 48
    slot = 64*128 + 128*128
    FT = NS*slot
    TB = FT + 8192
    GT = TB + TB_BYTES
    OUT = 0
    lds_total = GT + 64*384
    a(f"s_mul_i32 {s(sT0)}, {s(sTt)}, 96")
    a(f"s_lshl_b32 {s(sCol)}, {s(sTc)}, 7")
    role_split(a, name)
    def mkops(V, S, role):
        opV = OpK(64, 0); opP = OpK(128, opV.bytes)
        opV.alloc(V, S, NS, role=role); opP.alloc(V, S, NS, role=role)
        return opV, opP
    def tail(a, V, OV, vlane, t, vD):
        cv = Conv(OV, GT, 384, TB, OUT, residual=True, nch=8)
        op = OutPass(OV, 96)
        return cv, op
    V = Regs(1, 252, "v"); S = Regs(52, 72, "s")
    vlane = V.alloc(); t = V.alloc(8, 4)
    opV, opP = mkops(V, S, 'c')
    sWm = S.alloc(); sWn = S.alloc()
    a(f"v_and_b32 {v(vlane)}, 63, v0")
    a(f"s_and_b32 {s(sWm)}, {s(SW)}, 1"); a(f"s_lshr_b32 {s(sWn)}, {s(SW)}, 1")
    vrowV = V.alloc(); vrowP = V.alloc()
    a(f"v_and_b32 {v(t)}, 31, {v(vlane)}")
    a(f"s_lshl_b32 s99, {s(sWm)}, 5"); a(f"v_add_u32 {v(vrowV)}, s99, {v(t)}")
    a(f"s_lshl_b32 s99, {s(sWn)}, 6"); a(f"v_add_u32 {v(vrowP)}, s99, {v(t)}")
    opV.setup_read(a, vlane, t, 0, vrowV, slot); opP.setup_read(a, vlane, t, 0, vrowP, slot)
    cur = [V.alloc(32, 4), V.alloc(32, 4)]; tot = V.alloc(32, 4); frb = V.alloc(max(24, 12*(DEP+1)), 4); fr = [frb+12*k for k in range(DEP+1)]
    vF = V.alloc(16); vFa = V.alloc()
    a(f"v_lshlrev_b32 {v(vFa)}, 2, {v(vrowP)}"); a(f"v_add_u32 {v(vFa)}, {FT}, {v(vFa)}")
    if OPT.get("pvrot"):
        a(f"s_lshl_b32 s99, {s(sTc)}, 9"); a(f"v_add_u32 {v(vFa)}, s99, {v(vFa)}")
    vML = cur[1]; shr = V.alloc(12, 4); vz = shr; vTap = shr+4; vValid = V.alloc(); vMo = cur[1]+28; bt = V.alloc(4)
    a(f"v_and_b32 {v(t)}, 127, v0")
    a(f"s_sub_u32 s99, {s(sT0)}, 16"); a(f"v_add_u32 {v(t)}, s99, {v(t)}")
    a(f"v_cmp_gt_u32 vcc, 1000, {v(t)}")
    a(f"v_mov_b32 {v(t+2)}, 0"); a(f"v_mov_b32 {v(t+3)}, 1.0")
    a(f"v_cndmask_b32 {v(vValid)}, {v(t+2)}, {v(t+3)}, vcc")
    a(f"v_max_i32 {v(t+1)}, 0, {v(t)}"); a(f"v_min_i32 {v(t+1)}, 999, {v(t+1)}")
    a(f"s_lshl_b32 s99, {s(sB)}, 10"); a(f"v_add_u32 {v(t+1)}, s99, {v(t+1)}")
    a(f"v_lshlrev_b32 {v(vMo)}, 6, {v(t+1)}")
    a("s_waitcnt lgkmcnt(0)")
    gate(a, 2, False, t)
    srd_from(a, srdML, 30, ML_BYTES, O_ML)
    for k in range(4): a(f"buffer_load_dwordx4 {v(vML+4*k,4)}, {v(vMo)}, {s(srdML,4)}, 0 offen offset:{16*k}")
    srd_from(a, srdDW, 6, SIZES[DWM])
    taps_load(a, 0, t, vTap, srdDW, sCol, 2048)
    batch_srd(a, srdMC, sB, O_MC, 1000*MC_LD, 1000*MC_LD)
    stamp(a, 1)
    bgx = {}
    r = Rec(); F = vML; M = bt
    r("s_waitcnt vmcnt(8)")
    r(f"v_max3_f32 {v(M)}, {v(F)}, {v(F+2)}, {v(F+4)}"); r(f"v_max3_f32 {v(M)}, {v(M)}, {v(F+6)}, {v(F+8)}")
    r(f"v_max3_f32 {v(M)}, {v(M)}, {v(F+10)}, {v(F+12)}"); r(f"v_max_f32 {v(M)}, {v(M)}, {v(F+14)}")
    for k in range(8): r(f"v_sub_f32 {v(F+2*k)}, {v(F+2*k)}, {v(M)}")
    for k in range(8): r(f"v_exp_f32 {v(F+2*k)}, {v(F+2*k)}")
    r(f"s_nop 0\nv_mul_f32 {v(bt+1)}, {v(F)}, {v(F+1)}")
    for k in range(1, 8): r(f"v_fmac_f32 {v(bt+1)}, {v(F+2*k)}, {v(F+2*k+1)}")
    r(f"v_rcp_f32 {v(bt+1)}, {v(bt+1)}\ns_nop 0\nv_mul_f32 {v(bt+1)}, {v(bt+1)}, {v(vValid)}")
    r(f"v_and_b32 {v(bt+2)}, 127, v0"); r(f"v_lshlrev_b32 {v(bt+2)}, 2, {v(bt+2)}")
    r(f"v_lshrrev_b32 {v(bt+3)}, 7, v0"); r(f"v_lshl_add_u32 {v(bt+2)}, {v(bt+3)}, 12, {v(bt+2)}"); r(f"v_add_u32 {v(bt+2)}, {FT}, {v(bt+2)}")
    for k in range(8): r(f"v_mul_f32 {v(F+2*k)}, {v(F+2*k)}, {v(bt+1)}")
    for k in range(8): r(f"ds_write_b32 {v(bt+2)}, {v(F+2*k)} offset:{k*512}")
    distribute(bgx, r.atoms, 0, 1, ks_list=(0, 1, 2, 3))
    r = Rec(); zero_lds(r, 0, vz, TB, TB_BYTES + 64*384, bt); distribute(bgx, r.atoms, 3, 5)
    r = Rec(); r("s_waitcnt vmcnt(0)"); taps_write(r, 0, bt, vTap, TB); distribute(bgx, r.atoms, 6, 8)
    r = Rec()
    vAd = [[shr + 4*x + y for y in range(4)] for x in range(2)]
    for nt in range(2):
        r(f"v_add_u32 {v(bt)}, {32*nt}, {v(vrowP)}")
        r(f"v_lshrrev_b32 {v(bt+1)}, 3, {v(bt)}")
        r(f"v_lshrrev_b32 {v(bt+2)}, 5, {v(vlane)}")
        r(f"v_lshlrev_b32 {v(bt+3)}, 1, {v(bt+2)}")
        r(f"v_xor_b32 {v(bt+1)}, {v(bt+1)}, {v(bt+3)}")
        r(f"v_and_b32 {v(bt)}, 7, {v(bt)}")
        r(f"v_lshlrev_b32 {v(bt)}, 1, {v(bt)}")
        r(f"v_mul_u32_u24 {v(bt+2)}, {4*384}, {v(bt+2)}")
        r(f"v_add_u32 {v(bt)}, {v(bt)}, {v(bt+2)}")
        r(f"s_mul_i32 s99, {s(sWm)}, {32*384}\ns_add_u32 s99, s99, {GT}\nv_add_u32 {v(bt)}, s99, {v(bt)}")
        for var in range(4):
            st_ = ((var >> 1) << 2) | (var & 1)
            r(f"v_xor_b32 {v(bt+2)}, {st_}, {v(bt+1)}")
            r(f"v_lshl_add_u32 {v(vAd[nt][var])}, {v(bt+2)}, 4, {v(bt)}")
    OV = Overlay(V, cur[0], frb + max(24, 12*(DEP+1)))
    cv = Conv(OV, GT, 384, TB, OUT, residual=True, nch=8, nsets=4); cv.setup(r, vlane, SW, bt)
    op = OutPass(Overlay(V, 0, 0, pool=[shr+8, shr+9, shr+10, shr+11], minbig=99), 96); op.setup(r, bt, OUT, sT0, sCol, 11)
    distribute(bgx, r.atoms, 9, 15)
    def reads(sl, ks, st):
        o = opV.read(fr[st], sl, ks)
        for i in range(2): o += opP.read(fr[st]+4+4*i, sl, ks, tile_rows=32*i)
        return o
    def mfma(i, ks, st):
        c = cur[(i >> 1) & 1]
        return [f"{MFMA} {v(c+16*nt,16)}, {v(fr[st],4)}, {v(fr[st]+4+4*nt,4)}, " + ("0" if (ks == 0 and i % 2 == 0) else v(c+16*nt,16))
                for nt in range(2)]
    def fmas(c_):
        c = cur[c_ & 1]
        op_ = "v_mul_f32" if c_ == 0 else "v_fmac_f32"
        return [f"{op_} {v(tot+16*nt+r)}, {v(c+16*nt+r)}, {v(vF+2*c_+nt)}" for nt in range(2) for r in range(16)]
    extra = dict(bgx)
    extra[(2, 0)] = extra.get((2, 0), []) + [f"ds_read_b32 {v(vF+2*c_+nt)}, {v(vFa)} offset:{c_*512 + nt*128}" for c_ in range(8) for nt in range(2)]
    for c_ in range(7):
        slots = [(2*c_+2, 1), (2*c_+2, 2), (2*c_+2, 3), (2*c_+3, 0), (2*c_+3, 1), (2*c_+3, 2)]
        for sl, p in zip(slots, split(fmas(c_), len(slots))): extra[sl] = extra.get(sl, []) + p
    emit_compute(a, n, NS, reads, mfma, extra=extra, depth=DEP)
    stamp(a, 3)
    a("s_nop 7"); a("s_nop 7")
    for l in fmas(7): a(l)
    vP = frb
    for nt in range(2):
        for q in range(4):
            for rp in range(2):
                r0 = tot + 16*nt + 4*q + 2*rp
                a(f"v_cvt_pk_bf16_f32 {v(vP+8*nt+2*q+rp)}, {v(r0)}, {v(r0+1)}")
        for q in range(4):
            for rp in range(2):
                ad = vAd[nt][((q & 1) << 1) + rp]
                a(f"ds_write_b16 {v(ad)}, {v(vP+8*nt+2*q+rp)} offset:{(8*q + 2*rp)*384}")
                a(f"ds_write_b16_d16_hi {v(ad)}, {v(vP+8*nt+2*q+rp)} offset:{(8*q + 2*rp + 1)*384}")
    a("s_waitcnt lgkmcnt(0)")
    a("s_barrier")
    stamp(a, 4)
    cv.emit(a, 6)
    a("s_waitcnt lgkmcnt(0)")
    a("s_barrier")
    op.emit(a, cur[0], srdMC, sf)
    stamp(a, 5); finish(a, 2, t, 0, arr=(sB, sT0, 96))
    a(f"{name}_loader:"); loader_start(a)
    V = Regs(1, 252, "v"); S = Regs(52, 72, "s")
    vlane = V.alloc(); t = V.alloc(8, 4); vl = V.alloc()
    opV, opP = mkops(V, S, 'l'); sKc = S.alloc(); sR = S.alloc()
    a(f"v_and_b32 {v(vlane)}, 63, v0"); a(f"v_and_b32 {v(vl)}, 255, v0")
    a(f"s_sub_u32 {s(sR)}, {s(sT0)}, 16")
    opP.setup_dma(a, vlane, SL, t, P_LD, srowbase=sR)
    a(f"s_lshl_b32 {s(sR)}, {s(sTc)}, 6"); a(f"s_lshl_b32 s98, {s(sB)}, 9"); a(f"s_add_u32 {s(sR)}, {s(sR)}, s98")
    opV.setup_dma(a, vlane, SL, t, VT_LD, srowbase=sR)
    def ksets(): return [f"s_lshl_b32 {s(opV.s_k)}, {s(sKc)}, 7", f"s_mov_b32 {s(opP.s_k)}, {s(opV.s_k)}"]
    def kadv(): return [f"s_add_u32 {s(sKc)}, {s(sKc)}, 1\ns_and_b32 {s(sKc)}, {s(sKc)}, 15\n" + "\n".join(ksets())]
    if not OPT.get("pvrot"): a(f"s_mov_b32 {s(sKc)}, 0")
    else: a(f"s_lshl_b32 {s(sKc)}, {s(sTc)}, 1")
    for l in ksets(): a(l)
    a("s_waitcnt lgkmcnt(0)")
    batch_srd(a, srdP, sB, O_P, 1024*P_LD, 1000*P_LD)
    srd_from(a, srdVT, 30, VT_BYTES, O_VT)
    stamp(a, 1)
    gate(a, 2, True, t); stamp(a, 2)
    vm = Vm()
    def dma(so): return opP.dma(srdP, so) + opV.dma(srdVT, so)
    fa_blk = V.alloc(104, 4)
    cvL = Conv(Overlay(V, fa_blk, fa_blk+104), GT, 384, TB, OUT, residual=True, nch=8, nsets=4); opL = OutPass(V, 96)
    def setups(a):
        cvL.setup(a, vlane, SW, t); opL.setup(a, t, OUT, sT0, sCol, 11)
    sTch = S.alloc()
    def tch(a):
        batch_srd(a, srdMC, sB, O_MC, 1000*MC_LD, 1000*MC_LD)
        a(f"s_lshl_b32 {s(sTch)}, {s(sT0)}, 11")
        touch(a, vm, t, srdMC, sTch, 96*MC_LD)
    bg = {n-2: [setups], 0: [tch]}
    if gcore.CODEPF: bg[5] = [lambda a: code_prefetch(a, "k3_kernel", "k4_exit", 33, SL, 255, 254)]
    bg[n-1] = [lambda a: l2_prefetch(a, vm, t, [(56, SIZES[WM])])]
    emit_loader(a, vm, n, NS, slot, dma, 6, kadv, bg=bg, lag=(1 if DEP > 1 else 0), npre=OPT.get("pvpre", 2), ahead=OPT.get("pvahead", 2))
    stamp(a, 3)
    a("s_barrier")
    cvL.emit(a, 6)
    a("s_waitcnt lgkmcnt(0)")
    a("s_barrier")
    vD = V.alloc(8, 4)
    opL.emit(a, vD, srdMC, sf)
    finish(a, 2, t, 4, arr=(sB, sT0, 96))
    return lds_total

def k3_L(a, sf):
    name = "k3L"
    DEP = OPT.get("k3ld", 1)
    NS = 3; n = 8
    sB, sTt, sTe, sC0, sT0, sCol, sCol2 = 21, 22, 23, 24, 26, 27, 28
    srdZ, srdW, srdDW, srdMC = 8, 12, 44, 48
    slot = 256*128 + 64*128
    GS_ = 640
    TB = NS*slot; GT = 0; OUT = 64*GS_
    lds_total = TB + TB_BYTES
    a(f"s_mul_i32 {s(sT0)}, {s(sTt)}, 224")
    a(f"s_lshl_b32 {s(sCol)}, {s(sTe)}, 7")
    a(f"s_add_u32 {s(sCol2)}, {s(sCol)}, 1024")
    role_split(a, name)
    def mkops(V, S, role):
        opZ = OpK(256, 0); opW = OpT(64, opZ.bytes)
        opZ.alloc(V, S, NS, role=role); opW.alloc(V, S, NS, 2, role=role)
        return opZ, opW
    V = Regs(1, 252, "v"); S = Regs(52, 72, "s")
    vlane = V.alloc(); t = V.alloc(8, 4)
    opZ, opW = mkops(V, S, 'c'); sZero = S.alloc()
    acc = V.alloc(64, 4); frb = V.alloc(max(32, 16*(DEP+1)), 4); fr = [frb+16*k for k in range(DEP+1)]
    A_ = lambda mt, nt: acc + (mt*2+nt)*16
    vrowZ = V.alloc()
    a(f"v_and_b32 {v(vlane)}, 63, v0")
    a(f"v_and_b32 {v(t)}, 31, {v(vlane)}")
    a(f"s_lshl_b32 s99, {s(SW)}, 6"); a(f"v_add_u32 {v(vrowZ)}, s99, {v(t)}")
    opZ.setup_read(a, vlane, t, 0, vrowZ, slot)
    a(f"s_mov_b32 {s(sZero)}, 0"); opW.setup_read(a, vlane, t, sZero, slot)
    vAd = V.alloc(8); vPz = V.alloc(); vz = V.alloc(4, 4); vTap = V.alloc(8); bt = V.alloc(5)
    a("s_waitcnt lgkmcnt(0)")
    srd_from(a, srdDW, 6, SIZES[DWM])
    taps_load(a, 0, t, vTap, srdDW, sCol2, 2048)
    batch_srd(a, srdMC, sB, O_MC, 1000*MC_LD, 1000*MC_LD)
    extra = {}
    r = Rec(); zero_lds(r, 0, vz, TB, TB_BYTES, bt); distribute(extra, r.atoms, 0, 1)
    r = Rec(); r("s_waitcnt vmcnt(0)"); taps_write(r, 0, bt, vTap, TB); distribute(extra, r.atoms, 2, 4)
    r = Rec()
    r(f"v_and_b32 {v(bt)}, 31, {v(vlane)}")
    r(f"v_bfe_u32 {v(bt+1)}, {v(vlane)}, 1, 3")
    r(f"v_mul_u32_u24 {v(bt)}, {GS_}, {v(bt)}")
    r(f"v_lshrrev_b32 {v(bt+2)}, 5, {v(vlane)}")
    r(f"v_lshl_add_u32 {v(bt)}, {v(bt+2)}, 3, {v(bt)}")
    r(f"s_lshl_b32 s99, {s(SW)}, 7\ns_add_u32 s99, s99, {GT}\nv_add_u32 {v(bt)}, s99, {v(bt)}")
    for k in range(8):
        r(f"v_xor_b32 {v(bt+2)}, {k}, {v(bt+1)}")
        r(f"v_lshl_add_u32 {v(vAd+k)}, {v(bt+2)}, 4, {v(bt)}")
    r(f"v_lshrrev_b32 {v(bt+3)}, 2, v0"); r(f"v_mul_u32_u24 {v(bt+3)}, {GS_}, {v(bt+3)}")
    r(f"v_and_b32 {v(bt+4)}, 3, v0"); r(f"v_lshl_add_u32 {v(vPz)}, {v(bt+4)}, 5, {v(bt+3)}")
    cv = Conv(Overlay(V, acc, frb+max(32, 16*(DEP+1))), GT, GS_, TB, OUT, residual=True, nch=8, nsets=3); cv.setup(r, vlane, SW, bt)
    op = OutPass(V, 224); op.setup(r, bt, OUT, sT0, sCol2, 11)
    distribute(extra, r.atoms, 4, 8, ks_list=(0, 1, 2))
    stamp(a, 1)
    gate(a, 2, False, t)
    def reads(sl, ks, st):
        o = []
        for i in range(2): o += opZ.read(fr[st]+4*i, sl, ks, tile_rows=32*i)
        for i in range(2): o += opW.read(fr[st]+8+4*i, sl, i, ks)
        return o
    def mfma(i, ks, st):
        return [f"{MFMA} {v(A_(mt,nt),16)}, {v(fr[st]+4*mt,4)}, {v(fr[st]+8+4*nt,4)}, " + ("0" if (i == 0 and ks == 0) else v(A_(mt,nt),16))
                for mt in range(2) for nt in range(2)]
    emit_compute(a, n, NS, reads, mfma, extra=extra, depth=DEP)
    stamp(a, 3)
    vP = V.alloc(8, 2)
    a("s_nop 7")
    a("s_barrier")
    a(f"ds_write_b128 {v(vPz)}, {v(vz,4)} offset:{GT + 512}")
    a(f"ds_write_b128 {v(vPz)}, {v(vz,4)} offset:{GT + 528}")
    for nt in range(2):
        for mt in range(2):
            ac = A_(mt, nt)
            for q in range(4):
                a(f"v_cvt_pk_bf16_f32 {v(vP+2*q)}, {v(ac+4*q)}, {v(ac+4*q+1)}")
                a(f"v_cvt_pk_bf16_f32 {v(vP+2*q+1)}, {v(ac+4*q+2)}, {v(ac+4*q+3)}")
            for q in range(4):
                a(f"ds_write_b64 {v(vAd+4*mt+q)}, {v(vP+2*q,2)} offset:{nt*32*GS_}")
    a("s_waitcnt lgkmcnt(0)")
    a("s_barrier")
    stamp(a, 4)
    cv.emit(a, 14)
    a("s_waitcnt lgkmcnt(0)")
    a("s_barrier")
    vD = V.alloc(16, 4)
    op.emit(a, vD, srdMC, sf)
    stamp(a, 5); finish(a, 2, t, 0, arr=(sB, sT0, 224))
    a(f"{name}_loader:"); loader_start(a)
    V = Regs(1, 252, "v"); S = Regs(52, 72, "s")
    vlane = V.alloc(); t = V.alloc(8, 4); vl = V.alloc()
    opZ, opW = mkops(V, S, 'l'); sKc = S.alloc(); sR = S.alloc()
    a(f"v_and_b32 {v(vlane)}, 63, v0"); a(f"v_and_b32 {v(vl)}, 255, v0")
    a(f"s_sub_u32 {s(sR)}, {s(sT0)}, 16")
    opZ.setup_dma(a, vlane, SL, t, Z_LD, srowbase=sR)
    opW.setup_dma(a, vlane, SL, t, 1024, colbase_s=sCol)
    def ksets(): return [f"s_lshl_b32 {s(opZ.s_k)}, {s(sKc)}, 7", f"s_lshl_b32 {s(opW.s_k)}, {s(sKc)}, 16"]
    def kadv(): return [f"s_add_u32 {s(sKc)}, {s(sKc)}, 1\ns_and_b32 {s(sKc)}, {s(sKc)}, 7\n" + "\n".join(ksets())]
    a(f"s_mov_b32 {s(sKc)}, {s(sC0)}")
    for l in ksets(): a(l)
    a("s_waitcnt lgkmcnt(0)")
    batch_srd(a, srdZ, sB, O_Z, 1000*Z_LD, 1000*Z_LD)
    srd_from(a, srdW, 4, SIZES[WMO])
    stamp(a, 1)
    gate(a, 2, True, t); stamp(a, 2)
    vm = Vm()
    def dma(so): return opZ.dma(srdZ, so) + opW.dma(srdW, so)
    fa_blk = V.alloc(104, 4)
    cvL = Conv(Overlay(V, fa_blk, fa_blk+104), GT, GS_, TB, OUT, residual=True, nch=8, nsets=4); opL = OutPass(V, 224)
    def setups(a):
        cvL.setup(a, vlane, SW, t); opL.setup(a, t, OUT, sT0, sCol2, 11)
    sTch = S.alloc()
    def tch(a):
        batch_srd(a, srdMC, sB, O_MC, 1000*MC_LD, 1000*MC_LD)
        a(f"s_lshl_b32 {s(sTch)}, {s(sT0)}, 11")
        touch(a, vm, t, srdMC, sTch, 224*MC_LD)
    bg = {n-2: [setups], 0: [tch]}
    if gcore.CODEPF: bg[4] = [lambda a: code_prefetch(a, "k3_kernel", "k4_exit", 33, SL, 255, 254)]
    bg[n-1] = [lambda a: l2_prefetch(a, vm, t, [(56, SIZES[WM])])]
    emit_loader(a, vm, n, NS, slot, dma, 10, kadv, bg=bg, npre=2, lag=(1 if DEP > 1 else 0))
    stamp(a, 3)
    a("s_barrier")
    a("s_barrier")
    cvL.emit(a, 14)
    a("s_waitcnt lgkmcnt(0)")
    a("s_barrier")
    vD = V.alloc(16, 4)
    opL.emit(a, vD, srdMC, sf)
    finish(a, 2, t, 4, arr=(sB, sT0, 224))
    return lds_total

def k3(sf=""):
    a = Asm(); stamp(a, 0)
    a("""
    s_cmp_ge_u32 s2, 256
    s_cbranch_scc1 k3_exit
    """)
    a("k3_begin:")
    if FUSED[0]: stamp(a, 0)
    a("""
    s_load_dwordx2 s[30:31], s[0:1], 80       ; ws
    s_load_dwordx2 s[4:5], s[0:1], 40         ; w_mlp_out
    s_load_dwordx2 s[6:7], s[0:1], 48         ; dw_merge
    v_lshrrev_b32 v1, 6, v0
    s_and_b32 s32, s2, 7                      ; xcd
    s_lshr_b32 s33, s2, 3                     ; li
    v_readfirstlane_b32 s20, v1               ; wave
    s_cmp_ge_u32 s33, 22
    s_cbranch_scc1 k3_typeL
    s_lshr_b32 s21, s32, 2                    ; b
    s_and_b32 s34, s32, 3
    s_mul_i32 s34, s34, 22
    s_add_u32 s34, s34, s33                   ; n = 22q + li
    s_lshr_b32 s22, s34, 3                    ; tt
    s_and_b32 s23, s34, 7                     ; tc
    """)
    la = k3_PV(a, sf)
    a("""k3_typeL:
    s_mul_i32 s34, s32, 10
    s_add_u32 s34, s34, s33
    s_sub_u32 s34, s34, 22                    ; n = 10x + li - 22
    s_lshr_b32 s35, s34, 3                    ; bt 0..9
    s_and_b32 s23, s34, 7                     ; te
    s_cmp_ge_u32 s35, 5
    s_cselect_b32 s21, 1, 0                   ; b
    s_mul_i32 s36, s21, 5
    s_sub_u32 s22, s35, s36                   ; tt
    s_add_u32 s24, s23, s22
    s_and_b32 s24, s24, 7                     ; c0
    """)
    if OPT.get("k3norot"): a("s_mov_b32 s24, 0")
    lb = k3_L(a, sf)
    a("k3_exit:"); a("s_endpgm")
    return ("k3_kernel", a.text(), 256, 100, None), max(la, lb)

def y_srd(a): batch_srd(a, 8, 21, O_Y, 1000*Y_LD, 1000*Y_LD)

def k2_S(a, sf):
    name = "k2S"
    DEP = OPT.get("k2sd", 2)
    NS = OPT.get("k2sns", 4); n = 8
    sB, sTq, sTs, sC0, sBase = 21, 22, 23, 24, 26
    srdY, srdP, srdML = 8, 12, 16
    slot = 2*128*128
    RS = 272
    MX = NS*slot
    lds_total = MX + 2048
    a(f"s_lshl_b32 s99, {s(sB)}, 10"); a(f"s_lshl_b32 s98, {s(sTq)}, 7"); a(f"s_add_u32 s99, s99, s98")
    a(f"s_mul_i32 {s(sBase)}, s99, {P_LD}"); a(f"s_lshl_b32 s98, {s(sTs)}, 8"); a(f"s_add_u32 {s(sBase)}, {s(sBase)}, s98")
    role_split(a, name)
    def mkops(V, S, role):
        opK = OpK(128, 0); opQ = OpK(128, opK.bytes)
        opK.alloc(V, S, NS, role=role); opQ.alloc(V, S, NS, role=role)
        return opK, opQ
    V = Regs(1, 252, "v"); S = Regs(52, 72, "s")
    vlane = V.alloc(); t = V.alloc(8, 4)
    opK, opQ = mkops(V, S, 'c')
    acc = V.alloc(64, 4); frb = V.alloc(max(32, 16*(DEP+1)), 4); fr = [frb+16*k for k in range(DEP+1)]
    A_ = lambda mt, nt: acc + (mt*2+nt)*16
    sWm = S.alloc(); sWn = S.alloc(); sT = S.alloc()
    a(f"v_and_b32 {v(vlane)}, 63, v0")
    a(f"s_and_b32 {s(sWm)}, {s(SW)}, 1"); a(f"s_lshr_b32 {s(sWn)}, {s(SW)}, 1")
    vrowK = V.alloc(); vrowQ = V.alloc()
    a(f"v_and_b32 {v(t)}, 31, {v(vlane)}")
    a(f"s_lshl_b32 s99, {s(sWm)}, 6"); a(f"v_add_u32 {v(vrowK)}, s99, {v(t)}")
    a(f"s_lshl_b32 s99, {s(sWn)}, 6"); a(f"v_add_u32 {v(vrowQ)}, s99, {v(t)}")
    opK.setup_read(a, vlane, t, 0, vrowK, slot); opQ.setup_read(a, vlane, t, 0, vrowQ, slot)
    vStg = V.alloc(); vMo = V.alloc(); vMxW = V.alloc(); vMxR = V.alloc()
    a(f"v_mul_u32_u24 {v(vStg)}, {RS}, {v(vrowQ)}")
    a(f"v_lshrrev_b32 {v(t)}, 5, {v(vlane)}")
    a(f"v_lshl_add_u32 {v(vStg)}, {v(t)}, 3, {v(vStg)}")
    a(f"s_lshl_b32 s99, {s(sWm)}, 7"); a(f"v_add_u32 {v(vStg)}, s99, {v(vStg)}")
    a(f"s_lshl_b32 s99, {s(sB)}, 10"); a(f"s_lshl_b32 s98, {s(sTq)}, 7"); a(f"s_add_u32 s99, s99, s98")
    a(f"v_add_u32 {v(vMo)}, s99, {v(vrowQ)}"); a(f"v_lshlrev_b32 {v(vMo)}, 6, {v(vMo)}")
    a(f"s_lshl_b32 s99, {s(sTs)}, 3"); a(f"v_add_u32 {v(vMo)}, s99, {v(vMo)}")
    a(f"v_lshlrev_b32 {v(t)}, 2, {v(vrowQ)}")
    a(f"s_lshl_b32 s99, {s(sWm)}, 9"); a(f"s_add_u32 s99, s99, {MX}"); a(f"v_add_u32 {v(vMxW)}, s99, {v(t)}")
    a(f"s_xor_b32 s99, {s(sWm)}, 1"); a(f"s_lshl_b32 s99, s99, 9"); a(f"s_add_u32 s99, s99, {MX}"); a(f"v_add_u32 {v(vMxR)}, s99, {v(t)}")
    sC = S.alloc(2, 2)
    a(f"s_mov_b32 {s(sC)}, {f2u(CSC)}"); a(f"s_mov_b32 {s(sC+1)}, {f2u(CSC)}")
    a("s_waitcnt lgkmcnt(0)")
    srd_from(a, srdP, 30, P_BYTES, O_P); srd_from(a, srdML, 30, ML_BYTES, O_ML)
    stamp(a, 1)
    gate(a, 1, False, t)
    def reads(sl, ks, st):
        o = []
        for i in range(2): o += opK.read(fr[st]+4*i, sl, ks, tile_rows=32*i)
        for i in range(2): o += opQ.read(fr[st]+8+4*i, sl, ks, tile_rows=32*i)
        return o
    def mfma(i, ks, st):
        return [f"{MFMA} {v(A_(mt,nt),16)}, {v(fr[st]+4*mt,4)}, {v(fr[st]+8+4*nt,4)}, " + ("0" if (i == 0 and ks == 0) else v(A_(mt,nt),16))
                for mt in range(2) for nt in range(2)]
    emit_compute(a, n, NS, reads, mfma, depth=DEP)
    stamp(a, 3)
    a("s_nop 7"); a("s_nop 3")
    a(f"s_cmp_eq_u32 {s(sTs)}, 7"); a(f"s_cbranch_scc0 {name}_nomask")
    a(f"s_cmp_eq_u32 {s(sWm)}, 1"); a(f"s_cbranch_scc0 {name}_nomask")
    for nt in range(2):
        for r in range(4, 16): a(f"v_mov_b32 {v(A_(1,nt)+r)}, 0xff800000")
    a(f"{name}_nomask:")
    vM = V.alloc(4, 2); vL = V.alloc(4, 2); vP = V.alloc(8, 2); vO = V.alloc(2)
    for nt in range(2):
        regs = [A_(mt, nt) + r for mt in range(2) for r in range(16)]
        m = vM + 2*nt
        a(f"v_max3_f32 {v(m)}, {v(regs[0])}, {v(regs[1])}, {v(regs[2])}")
        a(f"v_max3_f32 {v(m+1)}, {v(regs[3])}, {v(regs[4])}, {v(regs[5])}")
        k = 6; tog = 0
        while k < 32:
            a(f"v_max3_f32 {v(m+tog)}, {v(m+tog)}, {v(regs[k])}, {v(regs[k+1])}"); k += 2; tog ^= 1
        a(f"v_max_f32 {v(m)}, {v(m)}, {v(m+1)}")
        halfop(a, "v_max_f32", m, t)
        a(f"ds_write_b32 {v(vMxW)}, {v(m)} offset:{nt*128}")
    a("s_waitcnt lgkmcnt(0)")
    a("s_barrier")
    for nt in range(2): a(f"ds_read_b32 {v(vO+nt)}, {v(vMxR)} offset:{nt*128}")
    a("s_waitcnt lgkmcnt(0)")
    for nt in range(2):
        m = vM + 2*nt
        a(f"v_max_f32 {v(m)}, {v(m)}, {v(vO+nt)}")
        a(f"v_mul_f32 {v(m)}, {f2u(CSC)}, {v(m)}")
        a(f"v_sub_f32 {v(m+1)}, 0, {v(m)}")
        l = vL + 2*nt
        a(f"v_mov_b32 {v(l)}, 0"); a(f"v_mov_b32 {v(l+1)}, 0")
        for mt in range(2):
            ac = A_(mt, nt)
            for pr in range(8):
                a(f"v_pk_fma_f32 {v(ac+2*pr,2)}, {v(ac+2*pr,2)}, {s(sC,2)}, {v(m,2)} op_sel:[0,0,1] op_sel_hi:[1,1,1]")
            for r in range(16): a(f"v_exp_f32 {v(ac+r)}, {v(ac+r)}")
            for pr in range(8): a(f"v_pk_add_f32 {v(l,2)}, {v(l,2)}, {v(ac+2*pr,2)}")
            for q in range(4):
                a(f"v_cvt_pk_bf16_f32 {v(vP+2*q)}, {v(ac+4*q)}, {v(ac+4*q+1)}")
                a(f"v_cvt_pk_bf16_f32 {v(vP+2*q+1)}, {v(ac+4*q+2)}, {v(ac+4*q+3)}")
            for q in range(4):
                a(f"ds_write_b64 {v(vStg)}, {v(vP+2*q,2)} offset:{nt*32*RS + mt*64 + q*16}")
        a(f"v_add_f32 {v(l)}, {v(l)}, {v(l+1)}")
        halfop(a, "v_add_f32", l, t)
        a(f"ds_write_b32 {v(vMxW)}, {v(l)} offset:{1024 + nt*128}")
        a("s_waitcnt lgkmcnt(0)")
        if nt == 1: stamp(a, 4)
        a("s_barrier")
    a(f"s_cmp_eq_u32 {s(sWm)}, 0"); a(f"s_cbranch_scc0 {name}_noml")
    for nt in range(2): a(f"ds_read_b32 {v(vO+nt)}, {v(vMxR)} offset:{1024 + nt*128}")
    a("s_waitcnt lgkmcnt(0)")
    for nt in range(2): a(f"v_add_f32 {v(vM+2*nt+1)}, {v(vL+2*nt)}, {v(vO+nt)}")
    a(f"v_add_u32 {v(t)}, {32*64}, {v(vMo)}")
    a("s_mov_b32 exec_hi, 0")
    a(f"buffer_store_dwordx2 {v(vM,2)}, {v(vMo)}, {s(srdML,4)}, 0 offen {sf}")
    a(f"buffer_store_dwordx2 {v(vM+2,2)}, {v(t)}, {s(srdML,4)}, 0 offen {sf}")
    a("s_mov_b32 exec_hi, -1")
    a(f"{name}_noml:")
    sR0 = S.alloc()
    a(f"s_lshr_b32 s99, {s(SW)}, 2"); a("s_lshl_b32 s99, s99, 6"); a(f"s_and_b32 {s(sR0)}, {s(SW)}, 3"); a(f"s_lshl_b32 {s(sR0)}, {s(sR0)}, 3")
    a(f"s_add_u32 {s(sR0)}, {s(sR0)}, s99"); a(f"s_add_u32 {s(sR0)}, {s(sR0)}, 32")
    store_rows(a, V, vlane, SW, t, 256, RS, 0, 8, P_LD, srdP, sBase, frb, 8, sT, sf=sf, s_row0=sR0)
    stamp(a, 5); finish(a, 1, t, 0)
    a(f"{name}_loader:"); loader_start(a)
    V = Regs(1, 252, "v"); S = Regs(52, 72, "s")
    vlane = V.alloc(); t = V.alloc(8, 4)
    opK, opQ = mkops(V, S, 'l'); sKc = S.alloc(); sR = S.alloc(); sT = S.alloc()
    a(f"v_and_b32 {v(vlane)}, 63, v0")
    a(f"s_lshl_b32 {s(sR)}, {s(sTs)}, 7"); opK.setup_dma(a, vlane, SL, t, Y_LD, srowbase=sR)
    a(f"s_lshl_b32 {s(sR)}, {s(sTq)}, 7"); opQ.setup_dma(a, vlane, SL, t, Y_LD, srowbase=sR)
    def ksets(): return [f"s_lshl_b32 {s(opQ.s_k)}, {s(sKc)}, 7", f"s_add_u32 {s(opK.s_k)}, {s(opQ.s_k)}, 1024"]
    def kadv(): return [f"s_add_u32 {s(sKc)}, {s(sKc)}, 1\ns_and_b32 {s(sKc)}, {s(sKc)}, 7\n" + "\n".join(ksets())]
    a(f"s_mov_b32 {s(sKc)}, {s(sC0)}")
    for l in ksets(): a(l)
    a("s_waitcnt lgkmcnt(0)")
    y_srd(a)
    stamp(a, 1)
    gate(a, 1, True, t); stamp(a, 2)
    vm = Vm()
    def dma(so): return opK.dma(srdY, so) + opQ.dma(srdY, so)
    bg = {0: [lambda a: (srd_from(a, srdP, 30, P_BYTES, O_P), touch(a, vm, t, srdP, sBase, 128*P_LD))]}
    if gcore.CODEPF: bg[1] = [lambda a: code_prefetch(a, "k2_kernel", "k3_exit", 33, SL, 255, 254)]
    bg[n-1] = [lambda a: l2_prefetch(a, vm, t, [(40, SIZES[WMO]), (48, SIZES[DWM])])]
    emit_loader(a, vm, n, NS, slot, dma, 8, kadv, bg=bg, npre=2, lag=(1 if DEP > 1 else 0))
    stamp(a, 3)
    buf = V.alloc(32, 4)
    sR0 = S.alloc()
    a("s_barrier")
    a("s_barrier")
    a(f"s_lshr_b32 s99, {s(SL)}, 1"); a("s_lshl_b32 s99, s99, 6"); a(f"s_and_b32 {s(sR0)}, {s(SL)}, 1"); a(f"s_lshl_b32 {s(sR0)}, {s(sR0)}, 4")
    a(f"s_add_u32 {s(sR0)}, {s(sR0)}, s99")
    store_rows(a, V, vlane, SW, t, 256, RS, 0, 16, P_LD, srdP, sBase, buf, 8, sT, sf=sf, s_row0=sR0)
    a("s_barrier")
    a(f"s_lshr_b32 s99, {s(SW)}, 2"); a("s_lshl_b32 s99, s99, 6"); a(f"s_and_b32 {s(sR0)}, {s(SW)}, 3"); a(f"s_lshl_b32 {s(sR0)}, {s(sR0)}, 3")
    a(f"s_add_u32 {s(sR0)}, {s(sR0)}, s99"); a(f"s_add_u32 {s(sR0)}, {s(sR0)}, 32")
    store_rows(a, V, vlane, SW, t, 256, RS, 0, 8, P_LD, srdP, sBase, buf, 8, sT, sf=sf, s_row0=sR0)
    finish(a, 1, t, 4)
    return lds_total

def k2_V(a, sf):
    name = "k2V"
    DEP = OPT.get("k2vd", 2)
    NS = OPT.get("k2vns", 4); n = 8
    RS = 272
    slot = 128*128 + 64*128
    GT = NS*slot; TB = GT + 64*384; OUT = TB + TB_BYTES; ST = OUT; STG = 0
    lds_total = OUT + 128*128
    sB, sTc, sTs, sC0, sT0, sT, sBase = 21, 22, 23, 24, 26, 27, 28
    srdY, srdWo, srdVT, srdGS, srdDW, srdZ = 8, 44, 48, 52, 56, 60
    a(f"s_lshl_b32 {s(sT0)}, {s(sTs)}, 7")
    a(f"s_lshl_b32 {s(sT)}, {s(sTc)}, 7")
    a(f"s_lshl_b32 s99, {s(sB)}, 9"); a(f"s_lshl_b32 s98, {s(sTc)}, 6"); a(f"s_add_u32 s99, s99, s98")
    a(f"s_mul_i32 {s(sBase)}, s99, {VT_LD}"); a(f"s_lshl_b32 s98, {s(sTs)}, 8"); a(f"s_add_u32 {s(sBase)}, {s(sBase)}, s98")
    role_split(a, name)
    def mkops(V, S, role):
        opV = OpK(128, 0); opW = OpT(64, opV.bytes)
        opV.alloc(V, S, NS, role=role); opW.alloc(V, S, NS, 1, role=role)
        return opV, opW
    def zpass(a, V, t, op, vU, vGc):
        vA = t+4; vB = t+6
        op.reads(a, vGc)
        a("s_waitcnt lgkmcnt(0)")
        for i in range(2):
            for d in range(4):
                g_, u_ = vGc+4*i+d, vU+4*i+d
                a(f"v_lshlrev_b32 {v(vA)}, 16, {v(g_)}")
                a(f"v_and_b32 {v(vA+1)}, 0xffff0000, {v(g_)}")
                a(f"v_lshlrev_b32 {v(vB)}, 16, {v(u_)}")
                a(f"v_and_b32 {v(vB+1)}, 0xffff0000, {v(u_)}")
                a(f"v_pk_mul_f32 {v(vA,2)}, {v(vA,2)}, {v(vB,2)}")
                a(f"v_cvt_pk_bf16_f32 {v(g_)}, {v(vA)}, {v(vA+1)}")
            a(f"buffer_store_dwordx4 {v(vGc+4*i,4)}, {v(op.vZo[i])}, {s(srdZ,4)}, 0 offen {sf}")
    def uload(a, V, t):
        vU = V.alloc(8, 4)
        a(f"v_lshrrev_b32 {v(t)}, 3, v0")
        a(f"v_add_u32 {v(t)}, {s(sT0)}, {v(t)}")
        a(f"v_mul_u32_u24 {v(t)}, {Y_LD}, {v(t)}")
        a(f"v_and_b32 {v(t+1)}, 7, v0")
        a(f"v_lshl_add_u32 {v(t)}, {v(t+1)}, 4, {v(t)}")
        a(f"s_add_u32 s99, {s(sT)}, 3072")
        a(f"v_add_u32 {v(t)}, s99, {v(t)}")
        for i in range(2):
            a(f"s_mov_b32 s99, {64*i*Y_LD}")
            a(f"buffer_load_dwordx4 {v(vU+4*i,4)}, {v(t)}, {s(srdY,4)}, s99 offen")
        return vU
    def z_srd(a): batch_srd(a, srdZ, sB, O_Z, 1000*Z_LD, 1000*Z_LD)
    V = Regs(1, 252, "v"); S = Regs(64, 72, "s")
    vlane = V.alloc(); t = V.alloc(8, 4)
    opV, opW = mkops(V, S, 'c')
    acc = V.alloc(32, 4); frb = V.alloc(max(32, 12*(DEP+1)), 4); fr = [frb+12*k for k in range(DEP+1)]
    A_ = lambda mt: acc + mt*16
    sWm = S.alloc(); sWn = S.alloc(); sTmp = S.alloc()
    a(f"v_and_b32 {v(vlane)}, 63, v0")
    a(f"s_and_b32 {s(sWm)}, {s(SW)}, 1"); a(f"s_lshr_b32 {s(sWn)}, {s(SW)}, 1")
    vrowV = V.alloc(); vStg = V.alloc()
    a(f"v_and_b32 {v(t)}, 31, {v(vlane)}")
    a(f"s_lshl_b32 s99, {s(sWm)}, 6"); a(f"v_add_u32 {v(vrowV)}, s99, {v(t)}")
    opV.setup_read(a, vlane, t, 0, vrowV, slot); opW.setup_read(a, vlane, t, sWn, slot)
    a(f"v_and_b32 {v(t)}, 31, {v(vlane)}")
    a(f"s_lshl_b32 s99, {s(sWn)}, 5"); a(f"v_add_u32 {v(t)}, s99, {v(t)}")
    a(f"v_mul_u32_u24 {v(vStg)}, {RS}, {v(t)}")
    a(f"v_lshrrev_b32 {v(t)}, 5, {v(vlane)}")
    a(f"v_lshl_add_u32 {v(vStg)}, {v(t)}, 3, {v(vStg)}")
    a(f"s_lshl_b32 s99, {s(sWm)}, 7"); a(f"s_add_u32 s99, s99, {STG}"); a(f"v_add_u32 {v(vStg)}, s99, {v(vStg)}")
    op = OutPass(V, 128)
    blk = V.alloc(104, 4)
    vGSd = blk; vTap = blk+16; vG = blk+24; vAB = blk+44; vX = blk+84; vPk = blk+92; vz = blk+96
    vGo = V.alloc(); vValid = V.alloc(); vW = [V.alloc(), V.alloc()]; vSt = V.alloc(); bt = V.alloc(6, 2)
    cvC = Conv(Overlay(V, blk, blk+104), GT, 384, TB, OUT, residual=False, nch=8, nsets=4)
    vGSo = V.alloc()
    a(f"s_sub_u32 s99, {s(sT0)}, 16"); a(f"v_add_u32 {v(t)}, s99, v0")
    a(f"v_max_i32 {v(t+1)}, 0, {v(t)}"); a(f"v_min_i32 {v(t+1)}, 999, {v(t+1)}")
    a(f"s_mul_i32 s99, {s(sB)}, 1000"); a(f"v_add_u32 {v(t+1)}, s99, {v(t+1)}")
    a(f"v_lshlrev_b32 {v(vGSo)}, 3, {v(t+1)}")
    a(f"v_cmp_gt_u32 vcc, 1000, {v(t)}")
    a(f"v_mov_b32 {v(t+2)}, 0"); a(f"v_mov_b32 {v(t+3)}, 1.0")
    a(f"v_cndmask_b32 {v(vValid)}, {v(t+2)}, {v(t+3)}, vcc")
    a(f"v_lshrrev_b32 {v(t)}, 5, {v(vlane)}"); a(f"v_lshlrev_b32 {v(t)}, 2, {v(t)}")
    a(f"s_lshl_b32 s99, {s(SW)}, 3"); a(f"s_add_u32 s99, s99, {s(sT0)}"); a(f"s_sub_u32 s99, s99, 16")
    a(f"v_add_u32 {v(t)}, s99, {v(t)}")
    a(f"v_mul_i32_i24 {v(t)}, {Y_LD}, {v(t)}")
    a(f"v_and_b32 {v(t+1)}, 31, {v(vlane)}"); a(f"v_lshl_add_u32 {v(t)}, {v(t+1)}, 2, {v(t)}")
    a(f"s_add_u32 s99, {s(sT)}, 4096"); a(f"v_add_u32 {v(vGo)}, s99, {v(t)}")
    a(f"v_lshrrev_b32 {v(t)}, 5, {v(vlane)}")
    a(f"s_lshl_b32 s99, {s(SW)}, 6"); a(f"v_lshl_add_u32 {v(vSt)}, {v(t)}, 5, s99"); a(f"v_add_u32 {v(vSt)}, {ST}, {v(vSt)}")
    a(f"v_and_b32 {v(t+1)}, 31, {v(vlane)}"); a(f"v_and_b32 {v(t+2)}, 7, {v(t+1)}")
    a(f"v_xor_b32 {v(t+2)}, {s(SW)}, {v(t+2)}")
    a(f"v_mul_u32_u24 {v(t+1)}, 768, {v(t+1)}"); a(f"v_lshl_add_u32 {v(t+1)}, {v(t)}, 3, {v(t+1)}")
    a(f"v_add_u32 {v(t+1)}, {GT}, {v(t+1)}")
    a(f"v_lshl_add_u32 {v(vW[0])}, {v(t+2)}, 4, {v(t+1)}")
    a(f"v_xor_b32 {v(t+2)}, 4, {v(t+2)}"); a(f"v_lshl_add_u32 {v(vW[1])}, {v(t+2)}, 4, {v(t+1)}")
    a("s_waitcnt lgkmcnt(0)")
    y_srd(a); srd_from(a, srdGS, 30, GS_BYTES, O_GS); srd_from(a, srdDW, 6, SIZES[DWC])
    gate(a, 1, False, t)
    for k in range(8):
        a(f"s_mov_b32 s99, {k*16384}")
        a(f"buffer_load_dwordx2 {v(vGSd+2*k,2)}, {v(vGSo)}, {s(srdGS,4)}, s99 offen")
    srd_from(a, srdVT, 30, VT_BYTES, O_VT); z_srd(a)
    stamp(a, 1)
    extra = {}
    r = Rec()
    taps_load(r, 0, bt, vTap, srdDW, sT, 1024)
    for gi in range(5):
        for r_ in range(4):
            r(f"v_add_u32 {v(bt)}, {(32*gi + r_)*Y_LD}, {v(vGo)}\nbuffer_load_dword {v(vG+4*gi+r_)}, {v(bt)}, {s(srdY,4)}, 0 offen")
    vU = V.alloc(8, 4)
    r(f"v_lshrrev_b32 {v(bt)}, 3, v0"); r(f"v_add_u32 {v(bt)}, {s(sT0)}, {v(bt)}"); r(f"v_mul_u32_u24 {v(bt)}, {Y_LD}, {v(bt)}")
    r(f"v_and_b32 {v(bt+1)}, 7, v0"); r(f"v_lshl_add_u32 {v(bt)}, {v(bt+1)}, 4, {v(bt)}")
    r(f"s_add_u32 s99, {s(sT)}, 3072\nv_add_u32 {v(bt)}, s99, {v(bt)}")
    for i_ in range(2):
        r(f"s_mov_b32 s99, {64*i_*Y_LD}\nbuffer_load_dwordx4 {v(vU+4*i_,4)}, {v(bt)}, {s(srdY,4)}, s99 offen")
    zero_lds(r, 0, vz, GT, 64*384 + TB_BYTES, bt)
    distribute(extra, r.atoms, 0, 1)
    r = Rec()
    r("s_waitcnt vmcnt(30)")
    r(f"v_add_f32 {v(bt)}, {v(vGSd)}, {v(vGSd+2)}"); r(f"v_add_f32 {v(bt+1)}, {v(vGSd+1)}, {v(vGSd+3)}")
    for k in range(2, 8):
        r(f"v_add_f32 {v(bt)}, {v(bt)}, {v(vGSd+2*k)}"); r(f"v_add_f32 {v(bt+1)}, {v(bt+1)}, {v(vGSd+2*k+1)}")
    r(f"v_mul_f32 {v(bt)}, {f2u(1/512)}, {v(bt)}"); r(f"v_mul_f32 {v(bt+1)}, {f2u(1/512)}, {v(bt+1)}")
    r(f"v_fma_f32 {v(bt+1)}, -{v(bt)}, {v(bt)}, {v(bt+1)}")
    r(f"v_max_f32 {v(bt+1)}, 0, {v(bt+1)}"); r(f"v_add_f32 {v(bt+1)}, {f2u(1e-5)}, {v(bt+1)}")
    r(f"v_rsq_f32 {v(bt+2)}, {v(bt+1)}\ns_nop 0\nv_mul_f32 {v(bt+2)}, {v(bt+2)}, {v(vValid)}")
    r(f"v_mul_f32 {v(bt+3)}, -{v(bt)}, {v(bt+2)}")
    r(f"v_lshlrev_b32 {v(bt+4)}, 3, v0"); r(f"v_add_u32 {v(bt+4)}, {ST}, {v(bt+4)}")
    r(f"ds_write_b64 {v(bt+4)}, {v(bt+2,2)}")
    distribute(extra, r.atoms, 1, 2)
    r = Rec(); r("s_waitcnt vmcnt(22)"); taps_write(r, 0, bt, vTap, TB); distribute(extra, r.atoms, 2, 3)
    r = Rec()
    for gi in range(5):
        r(f"ds_read_b128 {v(vAB+8*gi,4)}, {v(vSt)} offset:{gi*256}"); r(f"ds_read_b128 {v(vAB+8*gi+4,4)}, {v(vSt)} offset:{gi*256+16}")
    distribute(extra, r.atoms, 3, 4, ks_list=(0, 1, 2))
    r = Rec()
    for gi in range(5):
        AB = vAB + 8*gi
        for r_ in range(4):
            r(f"v_lshlrev_b32 {v(vX+2*r_)}, 16, {v(vG+4*gi+r_)}"); r(f"v_and_b32 {v(vX+2*r_+1)}, 0xffff0000, {v(vG+4*gi+r_)}")
        for r_ in range(4):
            r(f"v_fma_f32 {v(vX+2*r_)}, {v(vX+2*r_)}, {v(AB+2*r_)}, {v(AB+2*r_+1)}")
            r(f"v_fma_f32 {v(vX+2*r_+1)}, {v(vX+2*r_+1)}, {v(AB+2*r_)}, {v(AB+2*r_+1)}")
        r(f"v_cvt_pk_bf16_f32 {v(vPk)}, {v(vX)}, {v(vX+2)}"); r(f"v_cvt_pk_bf16_f32 {v(vPk+1)}, {v(vX+4)}, {v(vX+6)}")
        r(f"v_cvt_pk_bf16_f32 {v(vPk+2)}, {v(vX+1)}, {v(vX+3)}"); r(f"v_cvt_pk_bf16_f32 {v(vPk+3)}, {v(vX+5)}, {v(vX+7)}")
        r(f"ds_write_b64 {v(vW[gi&1])}, {v(vPk,2)} offset:{(gi>>1)*128}")
        r(f"ds_write_b64 {v(vW[gi&1])}, {v(vPk+2,2)} offset:{(gi>>1)*128 + 384}")
    r.atoms.insert(0, "s_waitcnt vmcnt(2)")
    distribute(extra, r.atoms, 4, 7)
    r = Rec(); cvC.setup(r, vlane, SW, bt); op.setup(r, bt, OUT, sT0, sT, 10); distribute(extra, r.atoms, 7, 8)
    def reads(sl, ks, st):
        o = []
        for i in range(2): o += opV.read(fr[st]+4*i, sl, ks, tile_rows=32*i)
        o += opW.read(fr[st]+8, sl, 0, ks)
        return o
    def mfma(i, ks, st):
        return [f"{MFMA} {v(A_(mt),16)}, {v(fr[st]+4*mt,4)}, {v(fr[st]+8,4)}, " + ("0" if (i == 0 and ks == 0) else v(A_(mt),16))
                for mt in range(2)]
    emit_compute(a, n, NS, reads, mfma, extra=extra, depth=DEP)
    stamp(a, 3)
    vP = frb + 16
    a("s_nop 7"); a("s_nop 1")
    a("s_barrier")
    for mt in range(2):
        ac = A_(mt)
        for q in range(4):
            a(f"v_cvt_pk_bf16_f32 {v(vP+2*q)}, {v(ac+4*q)}, {v(ac+4*q+1)}")
            a(f"v_cvt_pk_bf16_f32 {v(vP+2*q+1)}, {v(ac+4*q+2)}, {v(ac+4*q+3)}")
        for q in range(4):
            a(f"ds_write_b64 {v(vStg)}, {v(vP+2*q,2)} offset:{mt*64 + q*16}")
    a("s_waitcnt vmcnt(0) lgkmcnt(0)")
    stamp(a, 4)
    a("s_barrier")
    store_rows(a, V, vlane, SW, t, 256, RS, STG, 8, VT_LD, srdVT, sBase, frb, 8, sTmp, sf=sf)
    cvC.emit(a, 8)
    a("s_waitcnt lgkmcnt(0)")
    a("s_barrier")
    zpass(a, V, t, op, vU, acc)
    stamp(a, 5); finish(a, 1, t, 0)
    a(f"{name}_loader:"); loader_start(a)
    V = Regs(1, 252, "v"); S = Regs(64, 72, "s")
    vlane = V.alloc(); t = V.alloc(8, 4); vl = V.alloc()
    opV, opW = mkops(V, S, 'l'); sKc = S.alloc(); sTmp = S.alloc()
    a(f"v_and_b32 {v(vlane)}, 63, v0"); a(f"v_and_b32 {v(vl)}, 255, v0")
    opV.setup_dma(a, vlane, SL, t, Y_LD, srowbase=sT0)
    opW.setup_dma(a, vlane, SL, t, 1024, colbase_s=sT)
    def ksets(): return [f"s_lshl_b32 {s(opV.s_k)}, {s(sKc)}, 7\ns_add_u32 {s(opV.s_k)}, {s(opV.s_k)}, 2048", f"s_lshl_b32 {s(opW.s_k)}, {s(sKc)}, 16"]
    def kadv(): return [f"s_add_u32 {s(sKc)}, {s(sKc)}, 1\ns_and_b32 {s(sKc)}, {s(sKc)}, 7\n" + "\n".join(ksets())]
    a(f"s_mov_b32 {s(sKc)}, {s(sC0)}")
    for l in ksets(): a(l)
    a("s_waitcnt lgkmcnt(0)")
    y_srd(a); srd_from(a, srdWo, 4, SIZES[WO])
    stamp(a, 1)
    gate(a, 1, True, t); stamp(a, 2)
    vm = Vm()
    def dma(so): return opV.dma(srdY, so) + opW.dma(srdWo, so)
    fa_blk = V.alloc(104, 4)
    cv = Conv(Overlay(V, fa_blk, fa_blk+104), GT, 384, TB, OUT, residual=False, nch=8, nsets=4)
    op = OutPass(V, 128)
    uref = {}
    def setups(a):
        cv.setup(a, vlane, SW, t); op.setup(a, t, OUT, sT0, sT, 10)
        uref['u'] = uload(a, V, t); vm.issue("u", 2)
    def tch(a):
        srd_from(a, srdVT, 30, VT_BYTES, O_VT); z_srd(a)
        touch(a, vm, t, srdVT, sBase, 64*VT_LD)
        a(f"s_lshl_b32 {s(sTmp)}, {s(sT0)}, 10")
        touch(a, vm, t, srdZ, sTmp, 128*Z_LD)
    bg = {n-2: [setups], 0: [tch]}
    if gcore.CODEPF: bg[4] = [lambda a: code_prefetch(a, "k2_kernel", "k3_exit", 33, SL, 255, 254)]
    bg[n-1] = [lambda a: l2_prefetch(a, vm, t, [(40, SIZES[WMO]), (48, SIZES[DWM])])]
    emit_loader(a, vm, n, NS, slot, dma, 6, kadv, bg=bg, lag=(1 if DEP > 1 else 0))
    stamp(a, 3)
    a(f"s_waitcnt vmcnt({vm.wait('u')})")
    a("s_barrier")
    a("s_barrier")
    buf = V.alloc(16, 4)
    store_rows(a, V, vlane, SW, t, 256, RS, STG, 8, VT_LD, srdVT, sBase, buf, 4, sTmp, sf=sf)
    cv.emit(a, 8)
    a("s_waitcnt lgkmcnt(0)")
    a("s_barrier")
    zpass(a, V, t, op, uref['u'], buf+8)
    finish(a, 1, t, 4)
    return lds_total

def k2(sf=""):
    a = Asm(); stamp(a, 0)
    a("""
    s_cmp_ge_u32 s2, 256
    s_cbranch_scc1 k2_exit
    """)
    a("k2_begin:")
    if FUSED[0]: stamp(a, 0)
    a("""
    s_load_dwordx2 s[30:31], s[0:1], 80       ; ws
    s_load_dwordx2 s[4:5], s[0:1], 16         ; w_att_out
    s_load_dwordx2 s[6:7], s[0:1], 32         ; dw_csgu
    v_lshrrev_b32 v1, 6, v0
    s_and_b32 s32, s2, 7                      ; xcd
    s_lshr_b32 s33, s2, 3                     ; li
    v_readfirstlane_b32 s20, v1               ; wave
    s_lshr_b32 s21, s32, 2                    ; b
    s_and_b32 s34, s32, 3                     ; quadrant
    s_and_b32 s35, s33, 3                     ; li&3
    s_bfe_u32 s36, s33, 0x20002               ; (li>>2)&3
    s_and_b32 s37, s34, 1
    s_lshl_b32 s37, s37, 2
    s_add_u32 s23, s37, s35
    s_lshr_b32 s37, s34, 1
    s_lshl_b32 s37, s37, 2
    s_add_u32 s22, s37, s36
    s_lshl_b32 s24, s35, 1
    s_add_u32 s24, s24, s36
    s_and_b32 s24, s24, 7                     ; c0
    """)
    if not OPT.get("k2rot"): a("s_mov_b32 s24, 0")
    if OPT.get("k2rot2"): a("s_add_u32 s24, s35, s36\ns_lshl_b32 s24, s24, 1\ns_and_b32 s24, s24, 7")
    a("""
    s_cmp_ge_u32 s33, 16
    s_cbranch_scc1 k2_typeV
    """)
    la = k2_S(a, sf)
    a("k2_typeV:")
    lb = k2_V(a, sf)
    a("k2_exit:"); a("s_endpgm")
    return ("k2_kernel", a.text(), 256, 100, None), max(la, lb)

def k1_type(a, typ, sf):
    name = f"k1{typ}"
    NE = 192 if typ == 'A' else 128
    MT = NE // 64
    DEP = OPT.get("k1d"+typ, 1 if typ == 'A' else 2)
    NS = OPT.get("k1ns"+typ, 3 if typ == 'A' else 4); n = 8
    WB = 64*NE*2
    slot = WB + 128*128
    CS = NS*slot; STAT = CS + 768
    lds_total = STAT + 1024
    RS = NE*2 + 16
    sTi, sTj, sC0, sG, sNidx, sRow0, sBase = 21, 22, 23, 36, 35, 26, 27
    srdX, srdW, srdY, srdG, srdXS, srdF = 8, 12, 16, 52, 44, 48
    ldW = 3072 if typ == 'A' else 2048
    colbase = 0 if typ == 'A' else 1536
    a(f"s_mul_i32 {s(sRow0)}, {s(sTi)}, 125")
    a(f"s_mul_i32 {s(sBase)}, {s(sRow0)}, {Y_LD}"); a(f"s_mul_i32 s99, {s(sTj)}, {NE*2}")
    a(f"s_add_u32 {s(sBase)}, {s(sBase)}, s99"); a(f"s_add_u32 {s(sBase)}, {s(sBase)}, {colbase*2}")
    role_split(a, name)
    def mkops(V, S, role):
        opW = OpT(NE, 0); opX = OpK(128, opW.bytes)
        opW.alloc(V, S, NS, MT, role=role); opX.alloc(V, S, NS, 1, role=role)
        return opW, opX
    rows_pw = 16
    class RowStats:
        def __init__(self, V):
            self.a = [V.alloc(), V.alloc()]; self.sum = V.alloc(2, 2); self.sq = V.alloc(2, 2); self.d = V.alloc(8, 4); self.u = V.alloc(8, 2); self.t = V.alloc(6, 2)
        def setup(self, a):
            t = self.t
            a(f"v_lshrrev_b32 {v(t)}, 2, v0"); a(f"v_and_b32 {v(t+1)}, 3, v0")
            a(f"v_bfe_u32 {v(t+2)}, {v(t)}, 1, 1")
            a(f"v_lshlrev_b32 {v(t+1)}, 1, {v(t+1)}"); a(f"v_xor_b32 {v(t+1)}, {v(t+1)}, {v(t+2)}")
            a(f"v_lshlrev_b32 {v(t)}, 7, {v(t)}"); a(f"v_lshl_add_u32 {v(t)}, {v(t+1)}, 4, {v(t)}")
            a(f"v_add_u32 {v(self.a[0])}, {WB}, {v(t)}"); a(f"v_xor_b32 {v(self.a[1])}, 16, {v(t)}"); a(f"v_add_u32 {v(self.a[1])}, {WB}, {v(self.a[1])}")
            for r in (self.sum, self.sum+1, self.sq, self.sq+1): a(f"v_mov_b32 {v(r)}, 0")
        def reads(self, i):
            so = (i % NS)*slot; o = []
            for k in range(2):
                if so < 32768: o.append(f"ds_read_b128 {v(self.d+4*k,4)}, {v(self.a[k])} offset:{so}")
                else: o.append(f"v_add_u32 {v(self.t)}, {so}, {v(self.a[k])}\nds_read_b128 {v(self.d+4*k,4)}, {v(self.t)}")
            return o
        def math(self):
            o = []
            for k in range(2):
                for d in range(4):
                    r = self.d + 4*k + d; lo = self.u + 2*d
                    o += [f"v_lshlrev_b32 {v(lo)}, 16, {v(r)}", f"v_and_b32 {v(lo+1)}, 0xffff0000, {v(r)}"]
                for d in range(4):
                    lo = self.u + 2*d
                    o += [f"v_add_f32 {v(self.sum)}, {v(self.sum)}, {v(lo)}", f"v_add_f32 {v(self.sum+1)}, {v(self.sum+1)}, {v(lo+1)}",
                          f"v_fmac_f32 {v(self.sq)}, {v(lo)}, {v(lo)}", f"v_fmac_f32 {v(self.sq+1)}, {v(lo+1)}, {v(lo+1)}"]
            return o
        def final(self):
            t = self.t; o = []
            o += [f"v_add_f32 {v(t)}, {v(self.sum)}, {v(self.sum+1)}", f"v_add_f32 {v(t+1)}, {v(self.sq)}, {v(self.sq+1)}"]
            for dpp in ("quad_perm:[1,0,3,2]", "quad_perm:[2,3,0,1]"):
                o += [f"s_nop 1\nv_add_f32_dpp {v(t)}, {v(t)}, {v(t)} {dpp} row_mask:0xf bank_mask:0xf\nv_add_f32_dpp {v(t+1)}, {v(t+1)}, {v(t+1)} {dpp} row_mask:0xf bank_mask:0xf"]
            o += [f"v_mul_f32 {v(t)}, {f2u(1/512)}, {v(t)}", f"v_mul_f32 {v(t+1)}, {f2u(1/512)}, {v(t+1)}",
                  f"v_fma_f32 {v(t+1)}, -{v(t)}, {v(t)}, {v(t+1)}", f"v_max_f32 {v(t+1)}, 0, {v(t+1)}", f"v_add_f32 {v(t+1)}, {f2u(1e-5)}, {v(t+1)}",
                  f"v_rsq_f32 {v(t+2)}, {v(t+1)}\ns_nop 0\nv_mul_f32 {v(t+3)}, {v(t)}, {v(t+2)}",
                  f"v_lshrrev_b32 {v(t+4)}, 2, v0", f"v_lshlrev_b32 {v(t+4)}, 3, {v(t+4)}", f"v_add_u32 {v(t+4)}, {STAT}, {v(t+4)}",
                  f"ds_write_b64 {v(t+4)}, {v(t+2,2)}"]
            return o
    V = Regs(1, 252, "v"); S = Regs(56, 72, "s")
    vlane = V.alloc(); t = V.alloc(8, 4)
    opW, opX = mkops(V, S, 'c')
    acc = V.alloc(MT*2*16, 4); frb = V.alloc(max(4*(DEP+1)*(MT+2), 16*MT, 32), 4); fr = [frb + 4*(MT+2)*k for k in range(DEP+1)]
    fW = lambda st, mt: fr[st] + 4*mt
    fX = lambda st, nt: fr[st] + 4*MT + 4*nt
    A_ = lambda mt, nt: acc + (mt*2 + nt)*16
    sWm = S.alloc(); sWn = S.alloc(); sSeg = S.alloc(); sT = S.alloc(); sCol = S.alloc()
    a(f"v_and_b32 {v(vlane)}, 63, v0")
    a(f"s_and_b32 {s(sWm)}, {s(SW)}, 1"); a(f"s_lshr_b32 {s(sWn)}, {s(SW)}, 1")
    a(f"s_mul_i32 {s(sSeg)}, {s(sWm)}, {MT}")
    opW.setup_read(a, vlane, t, sSeg, slot)
    vrow = V.alloc()
    a(f"v_and_b32 {v(t)}, 31, {v(vlane)}")
    a(f"s_lshl_b32 s99, {s(sWn)}, 6"); a(f"v_add_u32 {v(vrow)}, s99, {v(t)}")
    opX.setup_read(a, vlane, t, 0, vrow, slot)
    rsC = RowStats(V); rsC.setup(a)
    vCsA = V.alloc(); vStA = V.alloc(); vStg = V.alloc()
    a(f"v_lshrrev_b32 {v(t)}, 5, {v(vlane)}")
    a(f"v_lshlrev_b32 {v(vCsA)}, 4, {v(t)}")
    a(f"s_mul_i32 s99, {s(sWm)}, {NE*2}"); a(f"s_add_u32 s99, s99, {CS}"); a(f"v_add_u32 {v(vCsA)}, s99, {v(vCsA)}")
    a(f"v_lshlrev_b32 {v(vStA)}, 3, {v(vrow)}"); a(f"v_add_u32 {v(vStA)}, {STAT}, {v(vStA)}")
    a(f"v_mul_u32_u24 {v(vStg)}, {RS}, {v(vrow)}")
    a(f"v_lshl_add_u32 {v(vStg)}, {v(t)}, 3, {v(vStg)}")
    a(f"s_mul_i32 s99, {s(sWm)}, {NE}"); a(f"v_add_u32 {v(vStg)}, s99, {v(vStg)}")
    if typ == 'B':
        sC = S.alloc(2, 2); vC = V.alloc(4, 2)
        k1c = 2*0.7978845608028654*1.4426950408889634
        a(f"s_mov_b32 {s(sC)}, {f2u(1.0)}"); a(f"s_mov_b32 {s(sC+1)}, {f2u(1.0)}")
        a(f"v_mov_b32 {v(vC)}, {f2u(-k1c*0.044715)}"); a(f"v_mov_b32 {v(vC+1)}, {f2u(-k1c*0.044715)}")
        a(f"v_mov_b32 {v(vC+2)}, {f2u(-k1c)}"); a(f"v_mov_b32 {v(vC+3)}, {f2u(-k1c)}")
        vG = [[V.alloc(2,2), V.alloc(2,2)] for _ in range(2)]
        for nt in range(2):
            for r in vG[nt]: a(f"v_mov_b32 {v(r)}, 0"); a(f"v_mov_b32 {v(r+1)}, 0")
    a("s_waitcnt lgkmcnt(0)")
    a("s_mov_b32 s30, s42"); a("s_mov_b32 s31, s43")
    srd_from(a, srdY, 30, Y_BYTES, O_Y)
    if typ == 'B': srd_from(a, srdG, 30, GS_BYTES, O_GS)
    if OPT.get("f34") and typ == 'A':
        a("s_cmp_eq_u32 s2, 0"); a(f"s_cbranch_scc0 {name}_nz34")
        a(f"s_cmp_eq_u32 {s(SW)}, 0"); a(f"s_cbranch_scc0 {name}_nz34")
        a(f"s_add_u32 s76, s30, {O_CNT}"); a("s_addc_u32 s77, s31, 0"); a("s_mov_b32 s78, 4096"); a("s_mov_b32 s79, 0x20000")
        a(f"v_lshlrev_b32 {v(t)}, 7, {v(vlane)}"); a(f"v_mov_b32 {v(t+1)}, 0")
        a("s_mov_b32 exec_hi, 0")
        a(f"buffer_store_dword {v(t+1)}, {v(t)}, s[76:79], 0 offen sc1")
        a("s_mov_b64 exec, -1")
        a(f"{name}_nz34:")
    if FUSED[0] and typ == 'A':
        a("s_cmp_eq_u32 s2, 0"); a(f"s_cbranch_scc0 {name}_nz")
        a(f"s_cmp_eq_u32 {s(SW)}, 0"); a(f"s_cbranch_scc0 {name}_nz")
        a(f"s_add_u32 s76, s30, {O_BAR}"); a("s_addc_u32 s77, s31, 0"); a("s_mov_b32 s78, 4096"); a("s_mov_b32 s79, 0x20000")
        a(f"v_lshlrev_b32 {v(t)}, 7, {v(vlane)}"); a(f"v_mov_b32 {v(t+1)}, 0")
        a("s_mov_b32 exec_hi, 0")
        a(f"buffer_store_dword {v(t+1)}, {v(t)}, s[76:79], 0 offen sc1")
        a("s_mov_b64 exec, -1")
        a(f"{name}_nz:")
    stamp(a, 1)
    def reads(sl, ks, st):
        o = []
        for nt in range(2): o += opX.read(fX(st, nt), sl, ks, tile_rows=32*nt)
        for mt in range(MT): o += opW.read(fW(st, mt), sl, mt, ks)
        return o
    def mfma(i, ks, st):
        if OPT.get("nomfma"): return ["s_nop 0"]*(2*MT)
        return [f"{MFMA} {v(A_(mt,nt),16)}, {v(fW(st,mt),4)}, {v(fX(st,nt),4)}, " + ("0" if (i == 0 and ks == 0) else v(A_(mt,nt),16))
                for mt in range(MT) for nt in range(2)]
    extra = {}
    for i in range(n):
        extra[(i, 0)] = rsC.reads(i)
        for k_, p_ in enumerate(split(rsC.math(), 3)): extra[(i, k_+1)] = p_
    emit_compute(a, n, NS, reads, mfma, extra=extra, depth=DEP)
    for l in rsC.final(): a(l)
    stamp(a, 3)
    a("s_nop 7"); a("s_nop 3")
    a(f"s_cmp_eq_u32 {s(sWn)}, 1"); a(f"s_cbranch_scc0 {name}_nocs")
    a(f"s_mov_b32 exec_lo, {1<<29}"); a(f"s_mov_b32 exec_hi, {1<<29}")
    for mt in range(MT):
        for q in range(4): a(f"ds_write_b128 {v(vCsA)}, {v(A_(mt,1)+4*q,4)} offset:{mt*128+q*32}")
    a("s_mov_b64 exec, -1")
    a(f"{name}_nocs:")
    a("s_waitcnt lgkmcnt(0)")
    a("s_barrier")
    stamp(a, 2)
    vCS = frb; vXS = [V.alloc(2, 2), V.alloc(2, 2)]
    for nt in range(2): a(f"ds_read_b64 {v(vXS[nt],2)}, {v(vStA)} offset:{nt*256}")
    for mt in range(MT):
        for q in range(4): a(f"ds_read_b128 {v(vCS+16*mt+4*q,4)}, {v(vCsA)} offset:{mt*128+q*32}")
    vT = V.alloc(16, 2); vP = V.alloc(8, 2)
    a("s_waitcnt lgkmcnt(0)")
    sR0 = S.alloc()
    for nt in range(2):
        for mt in range(MT):
            ac = A_(mt, nt)
            P_ = range(8); R_ = lambda pr: ac + 2*pr; T_ = lambda pr: vT + 2*pr
            for pr in P_: a(f"v_pk_mul_f32 {v(T_(pr),2)}, {v(vCS+16*mt+2*pr,2)}, {v(vXS[nt],2)} op_sel:[0,1] op_sel_hi:[1,1]")
            for pr in P_: a(f"v_pk_fma_f32 {v(R_(pr),2)}, {v(R_(pr),2)}, {v(vXS[nt],2)}, {v(T_(pr),2)} op_sel_hi:[1,0,1] neg_lo:[0,0,1] neg_hi:[0,0,1]")
            if typ == 'B':
                for pr in P_: a(f"v_pk_mul_f32 {v(T_(pr),2)}, {v(R_(pr),2)}, {v(R_(pr),2)}")
                for pr in P_: a(f"v_pk_fma_f32 {v(T_(pr),2)}, {v(T_(pr),2)}, {v(vC,2)}, {v(vC+2,2)}")
                for pr in P_: a(f"v_pk_mul_f32 {v(T_(pr),2)}, {v(T_(pr),2)}, {v(R_(pr),2)}")
                for pr in P_: a(f"v_exp_f32 {v(T_(pr))}, {v(T_(pr))}"); a(f"v_exp_f32 {v(T_(pr)+1)}, {v(T_(pr)+1)}")
                for pr in P_: a(f"v_pk_add_f32 {v(T_(pr),2)}, {v(T_(pr),2)}, {s(sC,2)}")
                for pr in P_: a(f"v_rcp_f32 {v(T_(pr))}, {v(T_(pr))}"); a(f"v_rcp_f32 {v(T_(pr)+1)}, {v(T_(pr)+1)}")
                for pr in P_: a(f"v_pk_mul_f32 {v(R_(pr),2)}, {v(R_(pr),2)}, {v(T_(pr),2)}")
                for pr in P_:
                    a(f"v_pk_add_f32 {v(vG[nt][0],2)}, {v(vG[nt][0],2)}, {v(R_(pr),2)}")
                    a(f"v_pk_fma_f32 {v(vG[nt][1],2)}, {v(R_(pr),2)}, {v(R_(pr),2)}, {v(vG[nt][1],2)}")
            for q in range(4):
                a(f"v_cvt_pk_bf16_f32 {v(vP+2*q)}, {v(ac+4*q)}, {v(ac+4*q+1)}")
                a(f"v_cvt_pk_bf16_f32 {v(vP+2*q+1)}, {v(ac+4*q+2)}, {v(ac+4*q+3)}")
            for q in range(4):
                a(f"ds_write_b64 {v(vStg)}, {v(vP+2*q,2)} offset:{nt*32*RS + mt*64 + q*16}")
        a("s_waitcnt lgkmcnt(0)")
        if nt == 1: stamp(a, 4)
        a("s_barrier")
    a(f"s_lshr_b32 s99, {s(SW)}, 2"); a("s_lshl_b32 s99, s99, 6"); a(f"s_and_b32 {s(sR0)}, {s(SW)}, 3"); a(f"s_lshl_b32 {s(sR0)}, {s(sR0)}, 3")
    a(f"s_add_u32 {s(sR0)}, {s(sR0)}, s99"); a(f"s_add_u32 {s(sR0)}, {s(sR0)}, 32")
    store_rows(a, V, vlane, SW, t, NE*2, RS, 0, 8, Y_LD, srdY, sBase, frb, 8, sT, rowlimit=125, sf=sf, s_row0=sR0, maxrow=120)
    if typ == 'B':
        a(f"s_cmp_ge_u32 {s(sTj)}, 4"); a(f"s_cbranch_scc0 {name}_end")
        a(f"s_sub_u32 s99, {s(sTj)}, 4"); a(f"s_lshl_b32 s99, s99, 1"); a(f"s_add_u32 s99, s99, {s(sWm)}")
        a(f"s_lshl_b32 {s(sCol)}, s99, 14")
        for nt in range(2):
            a(f"v_add_f32 {v(t)}, {v(vG[nt][0])}, {v(vG[nt][0]+1)}")
            a(f"v_add_f32 {v(t+1)}, {v(vG[nt][1])}, {v(vG[nt][1]+1)}")
            halfop(a, "v_add_f32", t, t+2); halfop(a, "v_add_f32", t+1, t+3)
            a(f"v_add_u32 {v(t+5)}, {32*nt}, {v(vrow)}")
            a(f"v_add_u32 {v(t+4)}, {s(sRow0)}, {v(t+5)}")
            a(f"v_lshlrev_b32 {v(t+4)}, 3, {v(t+4)}")
            a(f"v_cmp_gt_u32 vcc, 125, {v(t+5)}")
            a(f"v_mov_b32 {v(t+6)}, 0x80000000"); a("s_nop 0")
            a(f"v_cndmask_b32 {v(t+4)}, {v(t+6)}, {v(t+4)}, vcc")
            a("s_mov_b32 exec_hi, 0")
            a(f"buffer_store_dwordx2 {v(t,2)}, {v(t+4)}, {s(srdG,4)}, {s(sCol)} offen {sf}")
            a("s_mov_b32 exec_hi, -1"); a("s_nop 1")
    a(f"{name}_end:")
    stamp(a, 5); finish(a, 0, t, 0)
    a(f"{name}_loader:"); loader_start(a)
    V = Regs(1, 252, "v"); S = Regs(56, 72, "s")
    vlane = V.alloc(); t = V.alloc(8, 4)
    opW, opX = mkops(V, S, 'l')
    sMask = S.alloc(2, 2); sKc = S.alloc(); sCol = S.alloc(); sT = S.alloc(); sFo = S.alloc()
    a(f"v_and_b32 {v(vlane)}, 63, v0")
    opX.setup_dma(a, vlane, SL, t, 1024, srowbase=sRow0)
    a(f"s_cmp_eq_u32 {s(SL)}, 3")
    a(f"s_cselect_b32 {s(sMask)}, 0xffffffff, 0xffffffff"); a(f"s_cselect_b32 {s(sMask+1)}, 0xff, 0xffffffff")
    def ksets(): return [f"s_mul_i32 {s(opW.s_k)}, {s(sKc)}, {64*ldW}", f"s_lshl_b32 {s(opX.s_k)}, {s(sKc)}, 7"]
    def kadv(): return [f"s_add_u32 {s(sKc)}, {s(sKc)}, 1\ns_and_b32 {s(sKc)}, {s(sKc)}, 7\n" + "\n".join(ksets())]
    a(f"s_mov_b32 {s(sKc)}, {s(sC0)}")
    for l in ksets(): a(l)
    a(f"s_mul_i32 {s(sCol)}, {s(sTj)}, {NE*2}")
    opW.setup_dma(a, vlane, SL, t, ldW, colbase_s=sCol)
    a("s_waitcnt lgkmcnt(0)")
    a("s_mov_b32 s30, s42"); a("s_mov_b32 s31, s43")
    srd_from(a, srdX, 4, SIZES[X])
    if typ == 'A': srd_from(a, srdW, 6, SIZES[WQKV])
    else: srd_from(a, srdW, 28, SIZES[WIN])
    stamp(a, 1)
    vm = Vm()
    def dma(so): return opX.dma(srdX, so, masks={3: sMask}) + opW.dma(srdW, so)
    ndma = opW.nper + opX.nper
    buf = V.alloc(32, 4)
    bg = {}
    rsL = RowStats(V)
    def pre(a):
        a(f"v_mov_b32 {v(t+4)}, 0x3f803f80")
        for k in range(1, 4): a(f"v_mov_b32 {v(t+4+k)}, 0x3f803f80")
        a(f"v_lshlrev_b32 {v(t)}, 4, {v(vlane)}")
        a("s_mov_b64 exec, 0xffffff")
        for sl in range(NS):
            a(f"v_add_u32 {v(t+1)}, {sl*slot + WB + 125*128}, {v(t)}")
            a(f"ds_write_b128 {v(t+1)}, {v(t+4,4)}")
        a("s_mov_b64 exec, -1")
        a("s_waitcnt lgkmcnt(0)")
        srd_from(a, srdY, 30, Y_BYTES, O_Y)
        touch(a, vm, t, srdY, sBase, 125*Y_LD)
        rsL.setup(a)
    def stats(i):
        def f(a):
            for l in rsL.reads(i): a(l)
            a("s_waitcnt lgkmcnt(0)")
            for l in rsL.math(): a(l)
            if i == n-1:
                for l in rsL.final(): a(l)
                a("s_waitcnt lgkmcnt(0)")
        return f
    bg[-1] = [pre]
    mix = {i: stats(i) for i in range(n)}
    if gcore.CODEPF: bg[3] = [lambda a: code_prefetch(a, "k1_kernel", "k4_exit", 33, SL, 255, 254)]
    bg[n-3] = [lambda a: l2_prefetch(a, vm, t, [(40, SIZES[WMO]), (56, SIZES[WM]), (48, SIZES[DWM])], once=True)]
    bg[n-2] = [lambda a: l2_prefetch(a, vm, t, [(16, SIZES[WO]), (32, SIZES[DWC])], once=bool(OPT.get("k1once")))]
    emit_loader(a, vm, n, NS, slot, (lambda so: [] ) if OPT.get('nodma') else dma, ndma, kadv, bg=bg, mix=mix, npre=OPT.get('npre', 2), lag=(1 if DEP > 1 else 0))
    stamp(a, 3)
    sR0 = S.alloc()
    a("s_barrier")
    a("s_barrier")
    a(f"s_lshr_b32 s99, {s(SL)}, 1"); a("s_lshl_b32 s99, s99, 6"); a(f"s_and_b32 {s(sR0)}, {s(SL)}, 1"); a(f"s_lshl_b32 {s(sR0)}, {s(sR0)}, 4")
    a(f"s_add_u32 {s(sR0)}, {s(sR0)}, s99")
    store_rows(a, V, vlane, SW, t, NE*2, RS, 0, 16, Y_LD, srdY, sBase, buf, 8, sT, sf=sf, s_row0=sR0)
    a("s_barrier")
    a(f"s_lshr_b32 s99, {s(SW)}, 2"); a("s_lshl_b32 s99, s99, 6"); a(f"s_and_b32 {s(sR0)}, {s(SW)}, 3"); a(f"s_lshl_b32 {s(sR0)}, {s(sR0)}, 3")
    a(f"s_add_u32 {s(sR0)}, {s(sR0)}, s99"); a(f"s_add_u32 {s(sR0)}, {s(sR0)}, 32")
    store_rows(a, V, vlane, SW, t, NE*2, RS, 0, 8, Y_LD, srdY, sBase, buf, 8, sT, rowlimit=125, sf=sf, s_row0=sR0, maxrow=120)
    finish(a, 0, t, 4)
    return lds_total

def k1(sf=""):
    a = Asm(); stamp(a, 0)
    a("""
    s_cmp_ge_u32 s2, 256
    s_cbranch_scc1 k1_exit
    s_load_dwordx4 s[4:7], s[0:1], 0          ; x, wqkv
    s_load_dwordx2 s[28:29], s[0:1], 24       ; win
    s_load_dwordx4 s[40:43], s[0:1], 72
    v_lshrrev_b32 v1, 6, v0
    s_and_b32 s32, s2, 7                      ; xcd
    s_lshr_b32 s33, s2, 3                     ; li
    v_readfirstlane_b32 s20, v1               ; wave
    s_and_b32 s34, s33, 7
    s_and_b32 s21, s32, 1
    s_lshl_b32 s21, s21, 3
    s_add_u32 s21, s21, s34                   ; ti
    s_lshr_b32 s35, s33, 3                    ; nidx 0..3
    s_lshl_b32 s23, s35, 1
    s_add_u32 s23, s23, s34
    s_and_b32 s23, s23, 7                     ; c0
    s_lshr_b32 s36, s32, 1                    ; g
    s_lshl_b32 s22, s36, 1
    s_and_b32 s37, s35, 1
    s_add_u32 s22, s22, s37
    """)
    if OPT.get("k1norot"): a("s_mov_b32 s23, 0")
    if OPT.get("k1rot2") == 1: a("s_and_b32 s23, s34, 1\ns_lshl_b32 s23, s23, 2")
    if OPT.get("k1rot2") == 2: a("s_and_b32 s23, s34, 3\ns_lshl_b32 s23, s23, 1")
    if OPT.get("k1rot2") == 3: a("s_and_b32 s23, s35, 1\ns_lshl_b32 s23, s23, 2")
    if OPT.get("k1rot2") == 4: a("s_lshl_b32 s23, s35, 1")
    if OPT.get("k1rot2") == 5: a("s_lshl_b32 s23, s36, 1\ns_and_b32 s37, s32, 1\ns_add_u32 s23, s23, s37\ns_and_b32 s23, s23, 7")
    if OPT.get("k1rot2") == 6: a("s_lshl_b32 s23, s36, 1\ns_and_b32 s37, s32, 1\ns_lshl_b32 s37, s37, 2\ns_add_u32 s23, s23, s37\ns_and_b32 s23, s23, 7")
    if OPT.get("k1rot2") == 7: a("s_mov_b32 s23, s32")
    a("""
    s_cmp_ge_u32 s35, 2
    s_cbranch_scc1 k1_typeB
    """)
    la = k1_type(a, 'A', sf)
    a("k1_typeB:")
    lb = k1_type(a, 'B', sf)
    a("k1_exit:"); a("s_endpgm")
    return ("k1_kernel", a.text(), 256, 100, None), max(la, lb)

KNAME = "standalone__conformer_family_e_branchformer__speech_kernel"
def build_fused(prof=False, sf="", sf_last="", as_list=True):
    gcore.PROF = prof; FUSED[0] = True
    A, la = k1(sf); B, lb = k2(sf); C, lc = k3(sf); D, ld = k4(sf_last)
    FUSED[0] = False
    lds = max(la, lb, lc, ld)
    body = A[1].replace("k1_kernel", KNAME) + B[1].replace("k1_kernel", KNAME) + C[1] + D[1]
    body = body.replace('"k2_kernel"', "k2_begin")
    for nm in ("k2_kernel", "k3_kernel", "k4_kernel"): body = body.replace(nm, nm[:2] + "_begin")
    if as_list:
        return make_file([(KNAME, 256, 512, lds)], [(KNAME, body, 256, 100, None)])
    t = make_file([(KNAME, 256, 512, lds)], [(KNAME, body, 256, 100, None)])
    return t.replace(f"; @launch kernel={KNAME} grid", "; @launch grid")

def build_all(prof=False, sf="", sf_last=""):
    if OPT.get("fused"): return build_fused(prof, sf, sf_last)
    gcore.PROF = prof
    FL = {0: "", 1: "sc1", 2: "nt", 3: "sc1 nt", 4: "sc0 sc1"}
    sfs = [FL[OPT[f"sf{k}"]] if f"sf{k}" in OPT else d for k, d in zip((1, 2, 3, 4), (sf, sf, sf, sf_last))]
    A, la = k1(sfs[0]); B, lb = k2(sfs[1]); C, lc = k3(sfs[2]); D, ld = k4(sfs[3])
    print("lds", la, lb, lc, ld)
    if OPT.get("f34"):
        txt, l4 = k4f(sfs[3])
        body = C[1].replace("k4_exit", "k34_end") + txt
        A = (A[0], A[1].replace("k4_exit", "k34_end"), A[2], A[3], A[4])
        body = body + "k34_end:\n    s_endpgm\n"
        return make_file([("k1_kernel",256,512,la),("k2_kernel",256,512,lb),("k3_kernel",256,512,max(lc, l4))], [A, B, ("k3_kernel", body, 256, 100, None)])
    return make_file([("k1_kernel",256,512,la),("k2_kernel",256,512,lb),("k3_kernel",256,512,lc),("k4_kernel",256,512,ld)], [A,B,C,D])
if __name__ == "__main__":
    import build, sys
    gcore.CODEPF = "nocodepf" not in sys.argv
    if "fused" in sys.argv: OPT["fused"] = 1
    sf = " ".join(x for x in sys.argv[1:] if x in ("sc1","sc0","nt"))
    open("all.s","w").write(build_all("prof" in sys.argv, sf, sf))
    build.build("all.s","all.co")
```
